```python
import torch

def _softmax(x, axis=-1):
    return torch.softmax(x, dim=axis)
def _gelu(x):
    return torch.nn.functional.gelu(x, approximate="tanh")
def _silu(x):
    return torch.nn.functional.silu(x)
def _sigmoid(x):
    return torch.sigmoid(x)
def _layernorm(x, axis=-1, eps=1e-5):
    m = x.mean(dim=axis, keepdim=True)
    v = x.var(dim=axis, keepdim=True, unbiased=False)
    return (x - m) / torch.sqrt(v + eps)
def _scatter_add(tgt, idx, src, axis=0):
    return tgt.clone().index_add_(axis, idx, src)
def _segment_sum(src, seg, n):
    out = torch.zeros((n,) + src.shape[1:], dtype=src.dtype)
    return out.index_add_(0, seg, src)
def _pad(x, pw):
    flat = tuple(v for pair in reversed(pw) for v in pair)
    return torch.nn.functional.pad(x, flat)

kernel_name = 'concat_heads__compressed_kv_cla__gqa_block_cached__decode'

def setup_inputs():

    _w = (lambda a: (lambda t: t.to(torch.bfloat16) if t.is_floating_point() else t)(torch.as_tensor(a)))
    def _A_setup():
        B, H, Sq, Sk, D, M = 2, 32, 1, 8192, 128, 512
        Dc = 4 * D
        return {
            "x": _w((lambda *s: torch.randn(*s, dtype=torch.bfloat16) * 3.2)(B, Sq, M)),
            "c_kv": _w((lambda *s: torch.randn(*s, dtype=torch.bfloat16) * 0.1)(B, Sk, Dc)),
            "w_q": _w((lambda *s: torch.randn(*s, dtype=torch.bfloat16) * 6.4)(M, H, D) * (M ** -0.5)),
            "w_uk": _w((lambda *s: torch.randn(*s, dtype=torch.bfloat16) * 6.4)(Dc, H, D) * (Dc ** -0.5)),
            "w_uv": _w((lambda *s: torch.randn(*s, dtype=torch.bfloat16) * 0.1)(Dc, H, D) * (Dc ** -0.5)),
            "w_o": _w((lambda *s: torch.randn(*s, dtype=torch.bfloat16) * 0.1)(H, D, M) * ((H * D) ** -0.5)),
        }
    _A_in = _A_setup()

    def _B_setup():
        B, Sq, D = 2, 1, 512
        Hq, Hkv, Sk, Dh = 32, 8, 8192, 128
        assert Hq % Hkv == 0, (Hq, Hkv)
        return {
            "x": _w((lambda *s: torch.randn(*s, dtype=torch.bfloat16) * 1.6)(B, Sq, D)),
            "k_cache": _w((lambda *s: torch.randn(*s, dtype=torch.bfloat16) * 1.6)(B, Hkv, Sk, Dh)),
            "v_cache": _w((lambda *s: torch.randn(*s, dtype=torch.bfloat16) * 0.05)(B, Hkv, Sk, Dh)),
            "wq": _w((lambda *s: torch.randn(*s, dtype=torch.bfloat16) * 1.6)(D, Hq * Dh) * (D ** -0.5)),
            "wo": _w((lambda *s: torch.randn(*s, dtype=torch.bfloat16) * 0.05)(Hq * Dh, D) * ((Hq * Dh) ** -0.5)),
        }
    _B_in = _B_setup()

    return {
        "A_x": _A_in["x"],
        "A_c_kv": _A_in["c_kv"],
        "A_w_q": _A_in["w_q"],
        "A_w_uk": _A_in["w_uk"],
        "A_w_uv": _A_in["w_uv"],
        "A_w_o": _A_in["w_o"],
        "B_x": _B_in["x"],
        "B_k_cache": _B_in["k_cache"],
        "B_v_cache": _B_in["v_cache"],
        "B_wq": _B_in["wq"],
        "B_wo": _B_in["wo"],
    }

def reference(A_x, A_c_kv, A_w_q, A_w_uk, A_w_uv, A_w_o, B_x, B_k_cache, B_v_cache, B_wq, B_wo):
    def _A_ref(x, c_kv, w_q, w_uk, w_uv, w_o):
        B, Sq, M = x.shape[0], x.shape[1], x.shape[2]
        Sk = c_kv.shape[1]
        H, D = w_q.shape[1], w_q.shape[2]
        q = torch.einsum("bqm,mhd->bhqd", x, w_q)
        k = torch.einsum("bkc,chd->bhkd", c_kv, w_uk)
        v = torch.einsum("bkc,chd->bhkd", c_kv, w_uv)
        scores = torch.einsum("bhqd,bhkd->bhqk", q, k) * (D ** -0.5)
        off = Sk - Sq
        qi = torch.arange(Sq)[:, None]
        kj = torch.arange(Sk)[None, :]
        cmask = kj <= (qi + off)
        scores = torch.where(cmask[None, None], scores, -1e9)
        p = _softmax(scores, axis=-1)
        ctx = torch.einsum("bhqk,bhkd->bhqd", p, v)
        return torch.einsum("bhqd,hdm->bqm", ctx, w_o)

    def _B_ref(x, k_cache, v_cache, wq, wo):
        B, Sq, D = x.shape
        Hq, Dh = 32, 128
        Hkv = k_cache.shape[1]
        rep = Hq // Hkv
        q = (lambda x, *d: x.permute(*d))((x @ wq).reshape(B, Sq, Hq, Dh), 0, 2, 1, 3)
        k = (lambda x, n, axis: torch.repeat_interleave(x, n, dim=axis))(k_cache, rep, axis=1)
        v = (lambda x, n, axis: torch.repeat_interleave(x, n, dim=axis))(v_cache, rep, axis=1)
        scores = torch.einsum("bhqd,bhkd->bhqk", q, k) * (Dh ** -0.5)
        p = _softmax(scores, axis=-1)
        o = torch.einsum("bhqk,bhkd->bhqd", p, v)
        return (lambda x, *d: x.permute(*d))(o, 0, 2, 1, 3).reshape(B, Sq, Hq * Dh) @ wo

    a = _A_ref(A_x, A_c_kv, A_w_q, A_w_uk, A_w_uv, A_w_o)
    b = _B_ref(B_x, B_k_cache, B_v_cache, B_wq, B_wo)
    return torch.concatenate([a, b], axis=-1)
```

```python
import re

TRANS = ("v_exp_f32", "v_log_f32", "v_rcp_f32", "v_rsq_f32", "v_sqrt_f32")
MFMA_PASS = {"v_mfma_f32_16x16x32_bf16": 4, "v_mfma_f32_16x16x16_bf16": 4, "v_mfma_f32_32x32x16_bf16": 8}


def regs_of(op):
    op = op.strip()
    op = re.sub(r"^-|^\||\|$", "", op)
    m = re.fullmatch(r"([vs])(\d+)", op)
    if m:
        return {op}
    m = re.fullmatch(r"([vs])\[(\d+):(\d+)\]", op)
    if m:
        return {f"{m.group(1)}{i}" for i in range(int(m.group(2)), int(m.group(3)) + 1)}
    if op in ("vcc", "vcc_lo", "vcc_hi"):
        return {"vcc"}
    if op in ("exec", "exec_lo", "exec_hi"):
        return {"exec"}
    if op == "m0":
        return {"m0"}
    return set()


class Ins:
    def __init__(self, text):
        self.text = text
        body = text.split(";")[0].strip()
        parts = body.split(None, 1)
        self.mn = parts[0]
        rest = parts[1] if len(parts) > 1 else ""
        toks = [t.strip() for t in rest.split(",")] if rest else []
        ops = []
        self.mods = ""
        for i, t in enumerate(toks):
            sp = t.split()
            ops.append(sp[0] if sp else "")
            if len(sp) > 1:
                self.mods += " " + " ".join(sp[1:])
        self.ops = ops
        mn = self.mn
        self.is_mfma = mn.startswith("v_mfma")
        self.is_valu = mn.startswith("v_") and not self.is_mfma
        self.is_vmem = mn.startswith(("global_", "buffer_"))
        self.is_ds = mn.startswith("ds_")
        self.is_salu = mn.startswith("s_")
        self.is_trans = mn in TRANS or mn.replace("_e32", "").replace("_e64", "") in TRANS
        self.is_dpp = "_dpp" in mn or "row_" in self.mods or "quad_perm" in self.mods
        self.is_permlane = mn.startswith("v_permlane")
        self.is_readlane = mn.startswith(("v_readlane", "v_readfirstlane"))
        self.wide_store = False
        R = [regs_of(o) for o in ops]
        allr = set().union(*R) if R else set()
        self.w = set()
        self.r = set()
        self.c = set()
        self.ab = set()
        if self.is_mfma:
            self.w = R[0]; self.ab = R[1] | R[2]; self.c = R[3]; self.r = self.ab | self.c
        elif self.is_permlane:
            self.w = R[0] | R[1]; self.r = R[0] | R[1]
        elif mn.startswith("v_cmp"):
            self.w = R[0]; self.r = set().union(*R[1:])
        elif mn.startswith(("v_add_co", "v_sub_co", "v_addc_co")):
            self.w = R[0] | R[1]; self.r = set().union(*R[2:])
        elif self.is_valu:
            self.w = R[0]; self.r = set().union(*R[1:]) if len(R) > 1 else set()
            if mn.startswith(("v_fmac", "v_mac")) or self.is_dpp:
                self.r |= R[0]
            if mn.startswith("v_cndmask") and len(ops) == 3:
                self.r |= {"vcc"}
        elif self.is_vmem:
            if "store" in mn:
                self.r = allr
                if "x4" in mn or "x3" in mn:
                    self.wide_store = True
                    self.sdata = R[1] if mn.startswith("global_") else R[0]
            elif "lds" in mn:
                self.r = allr | {"m0"}
            else:
                self.w = R[0]; self.r = set().union(*R[1:])
        elif self.is_ds:
            if "write" in mn:
                self.r = allr
            else:
                self.w = R[0]; self.r = set().union(*R[1:])
        elif self.is_salu:
            if mn.startswith(("s_cmp", "s_cbranch", "s_branch", "s_waitcnt", "s_nop", "s_barrier", "s_endpgm", "s_setprio", "s_bitcmp")):
                self.r = allr
            else:
                self.w = R[0] if R else set(); self.r = set().union(*R[1:]) if len(R) > 1 else set()
                if "saveexec" in mn:
                    self.w |= {"exec"}
        self.states = 1
        if mn == "s_nop":
            self.states = int(ops[0], 0) + 1


def need(p, c):
    n = 0
    sg = lambda s: {x for x in s if x[0] == "s" or x == "vcc"}
    vg = lambda s: {x for x in s if x[0] == "v" and x != "vcc"}
    if p.is_valu:
        pv = vg(p.w); ps = sg(p.w)
        if c.is_mfma and pv & c.r: n = max(n, 2)
        if c.is_readlane and pv & c.r: n = max(n, 1)
        if (c.is_dpp or c.is_permlane) and pv & c.r: n = max(n, 2)
        if p.is_trans and c.is_valu and not c.is_trans and pv & c.r: n = max(n, 1)
        if p.is_trans and (c.is_mfma) and pv & c.r: n = max(n, 2)
        if (c.is_valu or c.is_mfma) and ps & c.r: n = max(n, 4 if c.is_readlane else 2)
        if c.is_vmem and ps & c.r: n = max(n, 5)
        if c.is_salu and ps & c.r: n = max(n, 1)
    if p.is_mfma:
        ps = MFMA_PASS[p.mn]
        full = {4: 8, 8: 12}[ps]
        if c.is_mfma:
            if p.w & c.ab: n = max(n, full)
            if p.w & c.c:
                if not (p.w == c.c and p.mn == c.mn): n = max(n, {4: 6, 8: 10}[ps])
            elif p.w & c.w: n = max(n, full)
        else:
            if p.w & (c.r | c.w): n = max(n, full)
            if c.is_valu and p.c & c.w: n = max(n, {4: 3, 8: 7}[ps])
    if p.wide_store and p.sdata & c.w:
        n = max(n, 2)
    if p.is_salu and "m0" in p.w and "m0" in c.r and c.is_vmem: n = max(n, 1)
    return n


def insert_nops(lines):
    out = []
    win = []
    snaps = {}
    W = 24
    for ln in lines:
        s = ln.strip()
        if not s or s.startswith((";", ".")) and not s.endswith(":"):
            out.append(ln); continue
        if s.endswith(":"):
            lab = s[:-1]
            for sw in snaps.pop(lab, []):
                win = win + [list(x) for x in sw]
            out.append(ln); continue
        ins = Ins(s)
        req = 0
        for p, d in win:
            req = max(req, need(p, ins) - d)
        while req > 0:
            k = min(req, 16)
            out.append(f"    s_nop {k-1}")
            for x in win: x[1] += k
            req -= k
        out.append(ln)
        for x in win: x[1] += ins.states
        win = [x for x in win if x[1] < W]
        win.append([ins, 0])
        if ins.mn.startswith(("s_cbranch", "s_branch")):
            snaps.setdefault(ins.ops[0], []).append([list(x) for x in win])
            if ins.mn == "s_branch":
                win = []
        if ins.mn == "s_endpgm":
            win = []
    return out


class Gen:
    def __init__(self):
        self.L = []
        self.vm_n = 0
        self.lg_n = 0
        self.cond = 0
        self.uid = 0

    def e(self, s):
        self.L.append("    " + s)

    def c(self, s):
        self.L.append("    ; " + s)

    def label(self, name):
        self.L.append(name + ":")

    def newlabel(self, p="L"):
        self.uid += 1
        return f"{p}_{self.uid}"

    def vm(self, s):
        self.e(s)
        if not self.cond:
            self.vm_n += 1
        return self.vm_n

    def vmwait(self, tok):
        n = self.vm_n - tok
        self.e(f"s_waitcnt vmcnt({min(n, 63)})")

    def ds(self, s):
        self.e(s)
        if not self.cond:
            self.lg_n += 1
        return self.lg_n

    def lgwait(self, tok=None):
        n = 0 if tok is None else min(self.lg_n - tok, 15)
        self.e(f"s_waitcnt lgkmcnt({n})")

    def barrier(self):
        self.e("s_waitcnt lgkmcnt(0)")
        self.e("s_barrier")

    def text(self):
        return "\n".join(insert_nops(self.L)) + "\n"


def vr(a, n=1):
    return f"v{a}" if n == 1 else f"v[{a}:{a+n-1}]"


def sr(a, n=2):
    return f"s{a}" if n == 1 else f"s[{a}:{a+n-1}]"
```

```python
import sys, struct
from asmlib import Gen, vr, sr

NAME = "concat_heads__compressed_kv_cla__gqa_block_cached__decode"
REF = "cdna_kernels/" + NAME + ".s.ref"

WS_QP = 0x010000
WS_QA = 0x060000
WS_LSEA = 0x090000
WS_LSEB = 0x0A0000
WS_OP = 0x0B0000
WS_OUTP = 0x120000
WS_LATP = 0x200000
WS_STAMP = 128 << 20

NT, NA, NB = 32, 64, 160
NCB = 10
SCALE = (128 ** -0.5) * 1.4426950408889634


def f2u(x):
    return struct.unpack("<I", struct.pack("<f", x))[0]


S_AX, S_CKV, S_WQA, S_WUK, S_WUV, S_WOA, S_BX, S_K, S_V, S_WQB, S_WOB, S_OUT, S_DBG, S_WS = range(4, 32, 2)
S_E, S_T = 32, 33
S_SEL = 34
S_LO, S_HI = 38, 39
S_A, S_B, S_C, S_D = 40, 42, 44, 46
S_X0, S_X1, S_X2 = 48, 49, 50
S_SC = 51
S_SPIN = 52
S_P = 53
S_BAD = 60
S_TMP = 62
S_STAMP = 64
V_L, V_N, V_J, V_T = 0, 1, 2, 3
SPIN_MAX = 1 << 18


class K(Gen):
    def __init__(self, opt):
        super().__init__()
        self.o = opt

    def stamp(self, k):
        if self.o.get("stamps"):
            self.e(f"s_memrealtime {sr(S_STAMP + 2 * k)}")

    def addr(self, dst, base, off_s=None, off_i=0):
        if off_s is not None:
            self.e(f"s_add_u32 s{dst}, s{base}, s{off_s}")
            self.e(f"s_addc_u32 s{dst+1}, s{base+1}, 0")
            base = dst
        if off_i or off_s is None:
            self.e(f"s_add_u32 s{dst}, s{base}, {off_i}")
            self.e(f"s_addc_u32 s{dst+1}, s{base+1}, 0")

    def adv(self, a, n):
        self.e(f"s_add_u32 s{a}, s{a}, {n}")
        self.e(f"s_addc_u32 s{a+1}, s{a+1}, 0")

    def ld4(self, dst, voff, sbase, off=0, fl="nt"):
        return self.vm(f"global_load_dwordx4 {vr(dst,4)}, v{voff}, {sr(sbase)} offset:{off} {fl}")

    def throttle(self, d):
        if d:
            self.e(f"s_waitcnt vmcnt({d-1})")

    def tag4(self, r):
        for k in range(4):
            self.e(f"v_perm_b32 v{r+k}, v{r+k}, v{V_T}, s{S_SEL+k}")

    def chk4(self, r, tmp, first):
        self.e(f"v_perm_b32 v{tmp}, v{r+1}, v{r}, s{S_X0}")
        self.e(f"v_perm_b32 v{tmp}, v{r+2}, v{tmp}, s{S_X1}")
        self.e(f"v_perm_b32 v{tmp}, v{r+3}, v{tmp}, s{S_X2}")
        if first:
            self.e(f"v_cmp_ne_u32 {sr(S_BAD)}, v{tmp}, v{V_T}")
        else:
            self.e(f"v_cmp_ne_u32 vcc, v{tmp}, v{V_T}")
            self.e(f"s_or_b64 {sr(S_BAD)}, {sr(S_BAD)}, vcc")

    def poll(self, issue, check, pre_issued=None):
        top, done = self.newlabel("L_poll"), self.newlabel("L_got")
        self.e(f"s_mov_b32 s{S_SPIN}, {SPIN_MAX}")
        if pre_issued is not None:
            self.vmwait(pre_issued)
            check()
            self.e(f"s_cmp_eq_u64 {sr(S_BAD)}, 0")
            self.e(f"s_cbranch_scc1 {done}")
        self.label(top)
        self.cond += 1
        issue()
        self.e("s_waitcnt vmcnt(0)")
        check()
        self.cond -= 1
        self.e(f"s_cmp_eq_u64 {sr(S_BAD)}, 0")
        self.e(f"s_cbranch_scc1 {done}")
        self.e(f"s_sub_u32 s{S_SPIN}, s{S_SPIN}, 1")
        self.e(f"s_cmp_lg_u32 s{S_SPIN}, 0")
        self.e(f"s_cbranch_scc1 {top}")
        self.label(done)

    def xrow(self, op, r, tmp, which=(16, 32)):
        for w in which:
            self.e(f"v_mov_b32 v{tmp}, v{r}")
            self.e(f"v_permlane{w}_swap_b32 v{tmp}, v{r}")
            self.e(f"{op} v{r}, v{r}, v{tmp}")

    def xrow_multi(self, op, regs, tmps, which=(16, 32)):
        for w in which:
            for r, t in zip(regs, tmps):
                self.e(f"v_mov_b32 v{t}, v{r}")
            for r, t in zip(regs, tmps):
                self.e(f"v_permlane{w}_swap_b32 v{t}, v{r}")
            for r, t in zip(regs, tmps):
                self.e(f"{op} v{r}, v{r}, v{t}")

    def frag(self, dst, raw, i, nld):
        for p in range(nld // 2):
            self.e(f"v_perm_b32 v{dst+p}, v{raw + 4*(2*p+1) + (i >> 1)}, v{raw + 4*(2*p) + (i >> 1)}, s{S_HI if i & 1 else S_LO}")

    def exec_set(self, lo, hi):
        self.e(f"s_mov_b32 exec_lo, {lo:#x}")
        self.e(f"s_mov_b32 exec_hi, {hi:#x}")

    def exec_all(self):
        self.e("s_mov_b64 exec, -1")

    def prologue(self):
        e = self.e
        e("s_cmp_ge_u32 s2, 256")
        e("s_cbranch_scc1 L_end")
        self.stamp(0)
        e("s_load_dwordx16 s[4:19], s[0:1], 0")
        e("s_load_dwordx8 s[20:27], s[0:1], 64")
        e("s_load_dwordx4 s[28:31], s[0:1], 96")
        e("v_lshrrev_b32 v4, 6, v0")
        e("v_and_b32 v0, 63, v0")
        e("v_readfirstlane_b32 s3, v4")
        e(f"v_and_b32 v{V_N}, 15, v0")
        e(f"v_lshrrev_b32 v{V_J}, 4, v0")
        for k in range(4):
            e(f"s_mov_b32 s{S_SEL+k}, {0x07060500 + k:#x}")
        e(f"s_mov_b32 s{S_LO}, 0x05040100")
        e(f"s_mov_b32 s{S_HI}, 0x07060302")
        e(f"s_mov_b32 s{S_X0}, 0x0c0c0400")
        e(f"s_mov_b32 s{S_X1}, 0x0c040100")
        e(f"s_mov_b32 s{S_X2}, 0x04020100")
        e(f"s_mov_b32 s{S_SC}, {f2u(SCALE):#x}")
        e(f"v_lshlrev_b32 v4, 15, v{V_J}")
        e(f"v_lshl_add_u32 v4, v{V_N}, 4, v4")
        e(f"v_bfe_u32 v5, v{V_N}, 2, 1")
        e("v_lshlrev_b32 v5, 10, v5")
        e(f"v_lshl_add_u32 v5, v{V_J}, 3, v5")
        e(f"s_and_b32 s{S_TMP}, s2, 3")
        e(f"s_lshl_b32 s{S_TMP}, s{S_TMP}, 3")
        e(f"s_add_u32 s{S_TMP}, s{S_TMP}, s3")
        e(f"s_lshl_b32 s{S_TMP}, s{S_TMP}, 4")
        e(f"s_bfe_u32 s{S_TMP+1}, s2, 0x50002")
        e(f"s_lshl_b32 s{S_TMP+1}, s{S_TMP+1}, 8")
        e("s_cmp_ge_u32 s2, 128")
        e("s_waitcnt lgkmcnt(0)")
        e(f"s_load_dword s{S_E}, {sr(S_WS)}, 0")
        e(f"s_cselect_b32 s{S_A}, s{S_WQB}, s{S_WQA}")
        e(f"s_cselect_b32 s{S_A+1}, s{S_WQB+1}, s{S_WQA+1}")
        e(f"s_cselect_b32 s{S_B}, s{S_BX}, s{S_AX}")
        e(f"s_cselect_b32 s{S_B+1}, s{S_BX+1}, s{S_AX+1}")
        e(f"s_lshl_b32 s{S_P}, s{S_TMP}, 13")
        e(f"s_add_u32 s{S_P}, s{S_P}, s{S_TMP+1}")
        self.addr(S_A, S_A, S_P)
        e(f"s_lshl_b32 s{S_TMP}, s{S_TMP}, 1")
        self.addr(S_B, S_B, S_TMP)
        self.vm(f"global_load_dwordx2 v[6:7], v5, {sr(S_B)}")
        for t in range(4):
            self.p1_tok = self.ld4(16 + 4 * t, 4, S_A)
            if t < 3:
                self.adv(S_A, 8192)

    def p1_compute(self, d0):
        e = self.e
        e(f"v_lshlrev_b32 v4, 5, v{V_N}")
        e(f"v_lshl_add_u32 v4, v{V_J}, 9, v4")
        e(f"s_lshl_b32 s{S_TMP}, s3, 10")
        e(f"v_add_u32 v4, s{S_TMP}, v4")
        self.vmwait(self.p1_tok)
        for i in range(8):
            t = 8 + 2 * (i & 3)
            self.frag(t, 16, i, 4)
            e(f"v_mfma_f32_16x16x16_bf16 {vr(d0+4*i,4)}, v[6:7], {vr(t,2)}, 0")
        self.exec_set(0xffffffff, 0)
        for i in range(0, 8, 2):
            self.ds(f"ds_write2_b32 v4, v{d0+4*i}, v{d0+4*i+4} offset0:{i} offset1:{i+1}")
        self.exec_all()
        e("s_waitcnt lgkmcnt(0)")
        e(f"s_add_u32 s{S_T}, s{S_E}, 0x01010101")
        e(f"v_mov_b32 v{V_T}, s{S_T}")
        e("s_barrier")
        skip = self.newlabel("L_p1skip")
        e("s_cmp_lg_u32 s3, 0")
        e(f"s_cbranch_scc1 {skip}")
        self.cond += 1
        e("v_lshlrev_b32 v4, 4, v0")
        for w in range(8):
            self.ds(f"ds_read_b128 {vr(d0+4*w,4)}, v4 offset:{w*1024}")
        e(f"s_lshl_b32 s{S_TMP}, s2, 10")
        self.addr(S_B, S_WS, S_TMP, WS_QP)
        e("s_waitcnt lgkmcnt(0)")
        for st in (4, 2, 1):
            for w in range(st):
                for k in range(4):
                    e(f"v_add_f32 v{d0+4*w+k}, v{d0+4*w+k}, v{d0+4*(w+st)+k}")
        self.tag4(d0)
        self.vm(f"global_store_dwordx4 v4, {vr(d0,4)}, {sr(S_B)} sc1")
        self.cond -= 1
        self.label(skip)
        self.stamp(1)

    def role_B(self):
        e = self.e
        o = self.o
        D = o.get("depth_b", 4)
        KR, QF, SR, ACC, VS = 144, 128, 100, 64, 16
        QS, ST, OS = 8192, 9216, 10240
        sPair, sChunk, sTile, sN7, sBq = S_P, S_P + 1, S_P + 2, S_P + 3, S_P + 4
        self.label("L_roleB")
        e(f"s_sub_u32 s{S_TMP}, s2, {NT+NA}")
        e(f"s_mul_i32 s{sPair}, s{S_TMP}, 6554")
        e(f"s_lshr_b32 s{sPair}, s{sPair}, 16")
        e(f"s_mul_i32 s{sChunk}, s{sPair}, {NCB}")
        e(f"s_sub_u32 s{sChunk}, s{S_TMP}, s{sChunk}")
        e(f"s_min_u32 s{S_TMP}, s{sChunk}, 2")
        e(f"s_mul_i32 s{sTile}, s{sChunk}, 51")
        e(f"s_add_u32 s{sTile}, s{sTile}, s{S_TMP}")
        e(f"s_cmp_lt_u32 s{sChunk}, 2")
        e(f"s_cselect_b32 s{sN7}, 4, 3")
        e(f"s_min_u32 s{S_TMP}, s3, s{sN7}")
        e(f"s_add_u32 s{sTile}, s{sTile}, s{S_TMP}")
        e(f"s_mul_i32 s{S_TMP}, s3, 6")
        e(f"s_add_u32 s{sTile}, s{sTile}, s{S_TMP}")
        e(f"s_lshl_b32 s{S_TMP}, s{sPair}, 21")
        e(f"s_lshl_b32 s{S_TMP+1}, s{sTile}, 12")
        e(f"s_add_u32 s{S_TMP}, s{S_TMP}, s{S_TMP+1}")
        self.addr(S_C, S_K, S_TMP)
        self.addr(S_D, S_V, S_TMP)
        e(f"v_and_b32 v32, 3, v{V_N}")
        e("v_lshlrev_b32 v32, 10, v32")
        e(f"v_lshrrev_b32 v33, 2, v{V_N}")
        e("v_lshl_add_u32 v32, v33, 8, v32")
        e(f"v_lshl_add_u32 v96, v{V_J}, 4, v32")
        e("v_lshlrev_b32 v97, 4, v0")
        ktok = {}

        def ktile(t, thr=True):
            for ks in range(4):
                if thr:
                    self.throttle(D)
                ktok[t] = self.ld4(KR + 16 * t + 4 * ks, 96, S_C, ks * 64)
            self.adv(S_C, 4096)

        npre = o.get("b_pre", 1)
        for t in range(npre):
            ktile(t, thr=False)
        self.p1_compute(ACC)
        e(f"s_and_b32 s{S_TMP}, s{sPair}, 7")
        e(f"s_lshl_b32 s{S_TMP}, s{S_TMP}, 2")
        e(f"s_lshr_b32 s{S_TMP+1}, s3, 1")
        e(f"s_add_u32 s{S_TMP}, s{S_TMP}, s{S_TMP+1}")
        e(f"s_lshl_b32 s{S_TMP}, s{S_TMP}, 12")
        e(f"s_lshr_b32 s{sBq}, s{sPair}, 3")
        e(f"s_lshl_b32 s{S_TMP+1}, s{sBq}, 9")
        e(f"s_add_u32 s{S_TMP}, s{S_TMP}, s{S_TMP+1}")
        e(f"s_and_b32 s{S_TMP+1}, s3, 1")
        e(f"s_lshl_b32 s{S_TMP+1}, s{S_TMP+1}, 8")
        e(f"s_add_u32 s{S_TMP}, s{S_TMP}, s{S_TMP+1}")
        self.addr(S_A, S_WS, S_TMP, WS_QP + 128 * 1024)
        e(f"v_lshlrev_b32 v98, 10, v{V_J}")
        e(f"v_lshl_add_u32 v98, v{V_N}, 4, v98")
        qat = o.get("b_qat", 4)
        qtok = None
        for t in range(npre, 6):
            if t == qat:
                qtok = self.ld4(8, 98, S_A, 0, "sc1")
            ktile(t)
        lab7 = self.newlabel("L_k7")
        e(f"s_cmp_ge_u32 s3, s{sN7}")
        e(f"s_cbranch_scc1 {lab7}")
        self.cond += 1
        ktile(6)
        self.cond -= 1
        self.label(lab7)
        vtok = {}

        def vgroup(u, dst, n=8):
            for t in range(n):
                self.throttle(D)
                vtok[u] = self.ld4(dst + 4 * t, 97, S_D, (t & 3) * 1024)
                if t & 3 == 3:
                    self.adv(S_D, 4096)

        vgroup(0, VS)
        self.stamp(2)
        self.poll(lambda: self.ld4(8, 98, S_A, 0, "sc1"), lambda: self.chk4(8, 4, True), pre_issued=qtok)
        self.stamp(3)
        self.xrow_multi("v_add_f32", [8, 9, 10, 11], [12, 13, 14, 15])
        e("v_cvt_pk_bf16_f32 v8, v8, v9")
        e("v_cvt_pk_bf16_f32 v9, v10, v11")
        e(f"s_lshl_b32 s{S_TMP}, s3, 7")
        e(f"v_lshlrev_b32 v4, 3, v{V_N}")
        e(f"v_add_u32 v4, s{S_TMP}, v4")
        self.exec_set(0xffff, 0)
        self.ds(f"ds_write_b64 v4, v[8:9] offset:{QS}")
        self.exec_all()
        e(f"v_lshrrev_b32 v4, 2, v{V_N}")
        e("v_lshlrev_b32 v4, 8, v4")
        e(f"v_lshl_add_u32 v4, v{V_J}, 4, v4")
        self.barrier()
        for ks in range(4):
            self.ds(f"ds_read_b128 {vr(QF+4*ks,4)}, v4 offset:{QS+ks*64}")
        self.lgwait()

        def qk(t):
            self.vmwait(ktok[t])
            for ks in range(4):
                c = "0" if ks == 0 else vr(SR + 4 * t, 4)
                e(f"v_mfma_f32_16x16x32_bf16 {vr(SR+4*t,4)}, {vr(KR+16*t+4*ks,4)}, {vr(QF+4*ks,4)}, {c}")

        for t in range(6):
            qk(t)
        for r in range(4):
            e(f"v_mov_b32 v{SR+24+r}, 0xff800000")
        lab = self.newlabel("L_q7")
        e(f"s_cmp_ge_u32 s3, s{sN7}")
        e(f"s_cbranch_scc1 {lab}")
        self.cond += 1
        qk(6)
        self.cond -= 1
        self.label(lab)
        self.stamp(4)
        e(f"v_max3_f32 v4, v{SR}, v{SR+1}, v{SR+2}")
        for k in range(3, 27, 2):
            e(f"v_max3_f32 v4, v4, v{SR+k}, v{SR+k+1}")
        e(f"v_max_f32 v4, v4, v{SR+27}")
        self.xrow("v_max_f32", 4, 5)
        e(f"v_mul_f32 v4, s{S_SC}, v4")
        for k in range(28):
            e(f"v_fma_f32 v{SR+k}, v{SR+k}, s{S_SC}, -v4")
        for k in range(28):
            e(f"v_exp_f32 v{SR+k}, v{SR+k}")
        e(f"v_add_f32 v5, v{SR}, v{SR+1}")
        for k in range(2, 28):
            e(f"v_add_f32 v5, v5, v{SR+k}")
        for k in range(14):
            e(f"v_cvt_pk_bf16_f32 v{SR+k}, v{SR+2*k}, v{SR+2*k+1}")
        self.xrow("v_add_f32", 5, 6)
        e(f"s_lshl_b32 s{S_TMP}, s3, 5")
        e(f"v_lshlrev_b32 v6, 1, v{V_N}")
        e(f"v_add_u32 v6, s{S_TMP}, v6")
        self.exec_set(0x1111, 0)
        self.ds(f"ds_write_b64 v6, v[4:5] offset:{ST}")
        self.exec_all()

        def pv(u, raw, n=8, first=False):
            self.vmwait(vtok[u])
            for i in range(8):
                t = 48 + 4 * (i & 3)
                self.frag(t, raw, i, n)
                c = "0" if first else vr(ACC + 4 * i, 4)
                if n == 8:
                    e(f"v_mfma_f32_16x16x32_bf16 {vr(ACC+4*i,4)}, {vr(SR+4*u,4)}, {vr(t,4)}, {c}")
                else:
                    e(f"v_mfma_f32_16x16x16_bf16 {vr(ACC+4*i,4)}, {vr(SR+12,2)}, {vr(t,2)}, {c}")

        vgroup(1, KR)
        pv(0, VS, first=True)
        self.barrier()
        e(f"v_lshlrev_b32 v6, 3, v{V_J}")
        for w in range(8):
            self.ds(f"ds_read_b64 {vr(16+2*w,2)}, v6 offset:{ST+w*32}")
        e(f"s_lshl_b32 s{S_TMP}, s3, 5")
        e(f"v_add_u32 v6, s{S_TMP}, v6")
        self.ds(f"ds_read_b64 v[4:5], v6 offset:{ST}")
        vgroup(2, KR + 32)
        lab = self.newlabel("L_v7")
        e(f"s_cmp_ge_u32 s3, s{sN7}")
        e(f"s_cbranch_scc1 {lab}")
        self.cond += 1
        vgroup(3, KR + 64, 4)
        self.cond -= 1
        self.label(lab)
        self.lgwait()
        e("v_max3_f32 v7, v16, v18, v20")
        e("v_max3_f32 v7, v7, v22, v24")
        e("v_max3_f32 v7, v7, v26, v28")
        e("v_max_f32 v7, v7, v30")
        for w in range(8):
            e(f"v_sub_f32 v{16+2*w}, v{16+2*w}, v7")
        e("v_sub_f32 v4, v4, v7")
        for w in range(8):
            e(f"v_exp_f32 v{16+2*w}, v{16+2*w}")
        e("v_exp_f32 v4, v4")
        e("v_mul_f32 v5, v16, v17")
        for w in range(1, 8):
            e(f"v_fmac_f32 v5, v{16+2*w}, v{17+2*w}")
        e("v_rcp_f32 v6, v5")
        e("v_log_f32 v5, v5")
        e("v_mul_f32 v99, v4, v6")
        lab = self.newlabel("L_lse")
        e("s_cmp_lg_u32 s3, 0")
        e(f"s_cbranch_scc1 {lab}")
        self.cond += 1
        for k in range(4):
            e(f"v_add_f32 v{8+k}, v5, v7")
        self.tag4(8)
        e(f"s_and_b32 s{S_TMP}, s{sPair}, 7")
        e(f"s_lshl_b32 s{S_TMP}, s{S_TMP}, 3")
        e(f"s_add_u32 s{S_TMP}, s{S_TMP}, s{sBq}")
        e(f"s_lshl_b32 s{S_TMP}, s{S_TMP}, 4")
        e(f"s_add_u32 s{S_TMP}, s{S_TMP}, s{sChunk}")
        e(f"s_lshl_b32 s{S_TMP}, s{S_TMP}, 4")
        self.addr(S_A, S_WS, S_TMP, WS_LSEB)
        e(f"v_lshlrev_b32 v4, 9, v{V_J}")
        self.exec_set(0x00010001, 0x00010001)
        self.vm(f"global_store_dwordx4 v4, v[8:11], {sr(S_A)} sc1")
        self.exec_all()
        self.cond -= 1
        self.label(lab)
        e(f"s_and_b32 s{S_TMP}, s{sPair}, 7")
        e(f"s_lshl_b32 s{S_TMP}, s{S_TMP}, 2")
        e(f"s_lshl_b32 s{S_TMP+1}, s3, 1")
        e(f"s_add_u32 s{S_TMP}, s{S_TMP}, s{S_TMP+1}")
        e(f"s_lshl_b32 s{S_TMP}, s{S_TMP}, 1")
        e(f"s_add_u32 s{S_TMP}, s{S_TMP}, s{sBq}")
        e(f"s_mul_i32 s{S_TMP}, s{S_TMP}, {NCB}")
        e(f"s_add_u32 s{S_TMP}, s{S_TMP}, s{sChunk}")
        e(f"s_lshl_b32 s{S_TMP}, s{S_TMP}, 9")
        self.addr(S_A, S_WS, S_TMP, WS_OP)
        e("v_lshrrev_b32 v4, 5, v0")
        e(f"v_mul_u32_u24 v4, {2*NCB*512}, v4")
        e("v_and_b32 v5, 31, v0")
        e("v_lshl_add_u32 v98, v5, 4, v4")
        e(f"s_lshl_b32 s{S_TMP}, s3, 11")
        e(f"v_lshlrev_b32 v4, 9, v{V_J}")
        e(f"v_lshl_add_u32 v4, v{V_N}, 5, v4")
        e(f"v_add_u32 v96, s{S_TMP}, v4")
        e(f"s_lshl_b32 s{S_TMP}, s3, 10")
        e(f"v_add_u32 v97, s{S_TMP}, v97")
        pv(1, KR)
        pv(2, KR + 32)
        lab = self.newlabel("L_p7")
        e(f"s_cmp_ge_u32 s3, s{sN7}")
        e(f"s_cbranch_scc1 {lab}")
        self.cond += 1
        pv(3, KR + 64, 4)
        self.cond -= 1
        self.label(lab)
        self.stamp(5)
        for i in range(8):
            e(f"v_mul_f32 v{16+i}, v99, v{ACC+4*i}")
        self.ds(f"ds_write_b128 v96, v[16:19] offset:{OS}")
        self.ds(f"ds_write_b128 v96, v[20:23] offset:{OS+16}")
        self.barrier()
        e("s_cmp_ge_u32 s3, 2")
        e("s_cbranch_scc1 L_fin")
        for w in range(8):
            self.ds(f"ds_read_b128 {vr(16+4*w,4)}, v97 offset:{OS+w*2048}")
        self.lgwait()
        for st in (4, 2, 1):
            for w in range(st):
                for k in range(4):
                    e(f"v_add_f32 v{16+4*w+k}, v{16+4*w+k}, v{16+4*(w+st)+k}")
        self.tag4(16)
        self.vm(f"global_store_dwordx4 v98, v[16:19], {sr(S_A)} sc1")
        self.stamp(6)
        e("s_branch L_fin")

    def role_A(self):
        e = self.e
        C0, C1, G, SR, ACC = 128, 192, 64, 48, 96
        Q = 131072
        PB, ST, ST2 = Q, Q + 16384, Q + 17408
        sB, sChunk = S_P, S_P + 1
        self.label("L_roleA")
        e(f"s_sub_u32 s{S_TMP}, s2, {NT}")
        e(f"s_lshr_b32 s{sB}, s{S_TMP}, 5")
        e(f"s_and_b32 s{sChunk}, s{S_TMP}, 31")
        e(f"s_lshl_b32 s{S_TMP}, s{S_TMP}, 18")
        e(f"s_lshl_b32 s{S_TMP+1}, s3, 14")
        e(f"s_add_u32 s{S_TMP}, s{S_TMP}, s{S_TMP+1}")
        self.addr(S_C, S_CKV, S_TMP)
        e(f"v_lshlrev_b32 v32, 10, v{V_N}")
        e(f"v_lshl_add_u32 v32, v{V_J}, 4, v32")
        ctok = {}
        for ks in range(16):
            ctok[ks] = self.ld4(C0 + 4 * ks, 32, S_C, ks * 64)
        self.adv(S_C, 131072)
        for ks in range(16):
            ctok[16 + ks] = self.ld4(C1 + 4 * ks, 32, S_C, ks * 64)
        self.p1_compute(64)
        e(f"v_lshrrev_b32 v4, 2, v{V_N}")
        e("v_lshrrev_b32 v5, 1, v4")
        e("v_xor_b32 v4, v4, v5")
        e("v_and_b32 v4, 1, v4")
        e("v_lshl_add_u32 v4, v4, 1, v5")
        e(f"v_and_b32 v5, 3, v{V_N}")
        e("v_lshl_add_u32 v4, v5, 2, v4")
        e(f"v_xor_b32 v4, v4, v{V_J}")
        e(f"s_lshl_b32 s{S_TMP}, s3, 14")
        e(f"v_lshlrev_b32 v5, 10, v{V_N}")
        e(f"v_add_u32 v5, s{S_TMP}, v5")
        e("v_lshl_add_u32 v40, v4, 4, v5")
        for k in range(1, 4):
            e(f"v_xor_b32 v{40+k}, {k*64}, v40")

        def cwrite(base, t0, wait):
            for ks in range(16):
                if wait:
                    self.vmwait(ctok[t0 + ks])
                self.ds(f"ds_write_b128 v{40+(ks&3)}, {vr(base+4*ks,4)} offset:{(ks>>2)*256}")

        cwrite(C0, 0, True)
        self.stamp(2)
        e(f"s_lshl_b32 s{S_TMP}, s{sB}, 16")
        e(f"s_lshl_b32 s{S_TMP+1}, s3, 13")
        e(f"s_add_u32 s{S_TMP}, s{S_TMP}, s{S_TMP+1}")
        self.addr(S_A, S_WS, S_TMP, WS_QA)
        self.addr(S_B, S_A, None, 4096)
        e("v_lshlrev_b32 v33, 4, v0")

        def issue():
            for k in range(8):
                self.ld4(G + 4 * k, 33, S_A if k < 4 else S_B, (k & 3) * 1024, "sc1")

        def check():
            for k in range(8):
                self.chk4(G + 4 * k, 4, k == 0)

        self.poll(issue, check)
        self.stamp(3)
        e("v_lshrrev_b32 v4, 1, v0")
        e(f"s_lshl_b32 s{S_TMP}, s3, 2")
        e(f"s_and_b32 s{S_TMP}, s{S_TMP}, 15")
        e(f"v_xor_b32 v4, s{S_TMP}, v4")
        e("v_and_b32 v5, 1, v0")
        e("v_lshlrev_b32 v5, 3, v5")
        e("v_lshl_add_u32 v4, v4, 4, v5")
        e(f"s_lshl_b32 s{S_TMP}, s3, 12")
        e(f"s_add_u32 s{S_TMP}, s{S_TMP}, {Q}")
        e(f"v_add_u32 v4, s{S_TMP}, v4")
        for k in range(8):
            hh, half = k >> 1, k & 1
            if half == 0:
                e(f"v_xor_b32 v5, {hh*16}, v4")
            e(f"v_cvt_pk_bf16_f32 v{G+4*k}, v{G+4*k}, v{G+4*k+1}")
            e(f"v_cvt_pk_bf16_f32 v{G+4*k+1}, v{G+4*k+2}, v{G+4*k+3}")
            self.ds(f"ds_write_b64 v5, {vr(G+4*k,2)} offset:{hh*1024+half*512}")
        e(f"v_xor_b32 v4, v{V_J}, v{V_N}")
        e(f"v_lshlrev_b32 v5, 10, v{V_N}")
        e(f"v_add_u32 v5, {Q}, v5")
        e("v_lshl_add_u32 v44, v4, 4, v5")
        for k in range(1, 4):
            e(f"v_xor_b32 v{44+k}, {k*64}, v44")
        e("s_waitcnt vmcnt(0)")
        self.barrier()
        QT = 64
        tk = {}

        def qread(ks):
            for hh in range(2):
                tk[ks] = self.ds(f"ds_read_b128 {vr(QT+8*(ks&3)+4*hh,4)}, v{44+(ks&3)} offset:{hh*16384+(ks>>2)*256}")

        for ks in range(3):
            qread(ks)
        for ks in range(16):
            if ks + 3 < 16:
                qread(ks + 3)
            self.lgwait(tk[ks])
            for hh in range(2):
                for rnd in range(2):
                    d = vr(SR + 8 * hh + 4 * rnd, 4)
                    e(f"v_mfma_f32_16x16x32_bf16 {d}, {vr((C0, C1)[rnd]+4*ks,4)}, {vr(QT+8*(ks&3)+4*hh,4)}, {'0' if ks == 0 else d}")
        self.stamp(4)
        for hh in range(2):
            s = SR + 8 * hh
            e(f"v_max3_f32 v{4+hh}, v{s}, v{s+1}, v{s+2}")
            e(f"v_max3_f32 v{4+hh}, v{4+hh}, v{s+3}, v{s+4}")
            e(f"v_max3_f32 v{4+hh}, v{4+hh}, v{s+5}, v{s+6}")
            e(f"v_max_f32 v{4+hh}, v{4+hh}, v{s+7}")
        self.xrow_multi("v_max_f32", [4, 5], [6, 7])
        e(f"s_lshl_b32 s{S_TMP}, s3, 7")
        e(f"s_add_u32 s{S_TMP}, s{S_TMP}, {ST}")
        e(f"v_lshlrev_b32 v6, 2, v{V_N}")
        e(f"v_add_u32 v34, s{S_TMP}, v6")
        e(f"v_add_u32 v35, {ST}, v6")
        self.barrier()
        self.exec_set(0xffff, 0)
        self.ds("ds_write2_b32 v34, v4, v5 offset0:0 offset1:16")
        self.exec_all()
        self.barrier()
        for w in range(8):
            self.ds(f"ds_read2_b32 {vr(64+2*w,2)}, v35 offset0:{w*32} offset1:{w*32+16}")
        e(f"v_lshrrev_b32 v6, 1, v{V_J}")
        e(f"s_lshl_b32 s{S_TMP}, s3, 1")
        e(f"v_add_u32 v6, s{S_TMP}, v6")
        e(f"v_xor_b32 v6, v6, v{V_N}")
        e("v_lshlrev_b32 v6, 4, v6")
        e(f"v_lshl_add_u32 v6, v{V_N}, 9, v6")
        e(f"v_and_b32 v7, 1, v{V_J}")
        e("v_lshl_add_u32 v6, v7, 3, v6")
        e(f"v_add_u32 v36, {PB}, v6")
        self.lgwait()
        for hh in range(2):
            e(f"v_max3_f32 v{4+hh}, v{64+hh}, v{66+hh}, v{68+hh}")
            e(f"v_max3_f32 v{4+hh}, v{4+hh}, v{70+hh}, v{72+hh}")
            e(f"v_max3_f32 v{4+hh}, v{4+hh}, v{74+hh}, v{76+hh}")
            e(f"v_max_f32 v{4+hh}, v{4+hh}, v{78+hh}")
            e(f"v_mul_f32 v{4+hh}, s{S_SC}, v{4+hh}")
        for k in range(16):
            e(f"v_fma_f32 v{SR+k}, v{SR+k}, s{S_SC}, -v{4+(k>>3)}")
        for k in range(16):
            e(f"v_exp_f32 v{SR+k}, v{SR+k}")
        for hh in range(2):
            s = SR + 8 * hh
            e(f"v_add_f32 v{6+hh}, v{s}, v{s+1}")
            for k in range(2, 8):
                e(f"v_add_f32 v{6+hh}, v{6+hh}, v{s+k}")
        for k in range(8):
            e(f"v_cvt_pk_bf16_f32 v{SR+k}, v{SR+2*k}, v{SR+2*k+1}")
        for hh in range(2):
            for rnd in range(2):
                self.ds(f"ds_write_b64 v36, {vr(SR+4*hh+2*rnd,2)} offset:{hh*8192+rnd*256}")
        self.xrow_multi("v_add_f32", [6, 7], [8, 9])
        e(f"v_add_u32 v37, {ST2-ST}, v34")
        self.exec_set(0xffff, 0)
        self.ds("ds_write2_b32 v37, v6, v7 offset0:0 offset1:16")
        self.exec_all()
        e("v_lshrrev_b32 v4, 5, v0")
        e("v_bfe_u32 v5, v0, 2, 2")
        e("v_lshl_add_u32 v6, v4, 3, v5")
        e("v_lshlrev_b32 v6, 10, v6")
        e("v_and_b32 v7, 1, v0")
        e("v_lshl_add_u32 v6, v7, 3, v6")
        e(f"s_lshr_b32 s{S_TMP}, s3, 1")
        e(f"s_lshl_b32 s{S_TMP}, s{S_TMP}, 8")
        e(f"v_add_u32 v6, s{S_TMP}, v6")
        e("v_bfe_u32 v7, v0, 4, 1")
        e("v_bfe_u32 v8, v0, 1, 1")
        e("v_lshl_add_u32 v7, v7, 1, v8")
        e(f"s_and_b32 s{S_TMP}, s3, 1")
        e(f"s_lshl_b32 s{S_TMP}, s{S_TMP}, 3")
        e(f"v_add_u32 v7, s{S_TMP}, v7")
        e("v_lshlrev_b32 v5, 2, v5")
        e("v_xor_b32 v7, v7, v5")
        e("v_mul_u32_u24 v8, 3, v4")
        for mt in range(2):
            for ee in range(2):
                r = 44 + 2 * mt + ee
                e(f"v_xor_b32 v{r}, v7, v8")
                e(f"v_xor_b32 v{r}, {4*mt + 2*ee}, v{r}")
                e(f"v_lshl_add_u32 v{r}, v{r}, 4, v6")
                if ee:
                    e(f"v_add_u32 v{r}, 4096, v{r}")
        e(f"v_xor_b32 v4, v4, v{V_N}")
        e("v_and_b32 v5, 31, v0")
        e("v_lshlrev_b32 v5, 9, v5")
        e("v_lshl_add_u32 v38, v4, 4, v5")
        e(f"v_add_u32 v38, {PB}, v38")
        self.barrier()
        FR = 48

        def pvround(rnd):
            tk = {}

            def rd(u):
                f = FR + 12 * (u % 3)
                if u == 4:
                    for r in range(44, 48):
                        e(f"v_add_u32 v{r}, 0x10000, v{r}")
                e(f"v_xor_b32 v39, {u*32}, v38")
                self.ds(f"ds_read_b128 {vr(f+8,4)}, v39 offset:{rnd*256}")
                for mt in range(2):
                    for ee in range(2):
                        tk[u] = self.ds(f"ds_read_b64_tr_b16 {vr(f+4*mt+2*ee,2)}, v{44+2*mt+ee} offset:{(u&3)*16384}")

            rd(0); rd(1)
            for u in range(8):
                if u + 2 < 8:
                    rd(u + 2)
                self.lgwait(tk[u])
                f = FR + 12 * (u % 3)
                for mt in range(2):
                    d = vr(ACC + 16 * mt, 16)
                    c = "0" if (rnd == 0 and u == 0) else d
                    e(f"v_mfma_f32_32x32x16_bf16 {d}, {vr(f+4*mt,4)}, {vr(f+8,4)}, {c}")
            for r in range(44, 48):
                e(f"v_subrev_u32 v{r}, 0x10000, v{r}")

        pvround(0)
        self.stamp(5)
        self.barrier()
        cwrite(C1, 16, False)
        self.barrier()
        pvround(1)
        self.stamp(6)
        e("v_and_b32 v4, 31, v0")
        e("v_lshlrev_b32 v5, 2, v4")
        e(f"v_add_u32 v5, {ST}, v5")
        for w in range(8):
            self.ds(f"ds_read_b32 v{64+w}, v5 offset:{w*128}")
            self.ds(f"ds_read_b32 v{72+w}, v5 offset:{ST2-ST+w*128}")
        e(f"s_and_b32 s{S_TMP}, s3, 1")
        e(f"s_lshl_b32 s{S_TMP}, s{S_TMP}, 3")
        e(f"v_xor_b32 v6, s{S_TMP}, v{V_N}")
        e("v_lshlrev_b32 v6, 4, v6")
        e("v_lshl_add_u32 v6, v4, 10, v6")
        e("v_lshrrev_b32 v7, 5, v0")
        e("v_lshl_add_u32 v6, v7, 3, v6")
        e(f"s_lshr_b32 s{S_TMP}, s3, 1")
        e(f"s_lshl_b32 s{S_TMP}, s{S_TMP}, 8")
        e(f"v_add_u32 v6, s{S_TMP}, v6")
        self.lgwait()
        e("v_max3_f32 v8, v64, v65, v66")
        e("v_max3_f32 v8, v8, v67, v68")
        e("v_max3_f32 v8, v8, v69, v70")
        e("v_max_f32 v8, v8, v71")
        e("v_add_f32 v9, v72, v73")
        for w in range(2, 8):
            e(f"v_add_f32 v9, v9, v{72+w}")
        e("v_rcp_f32 v10, v9")
        e("v_log_f32 v9, v9")
        e(f"v_fma_f32 v8, v8, s{S_SC}, v9")
        for k in range(32):
            e(f"v_mul_f32 v{ACC+k}, v10, v{ACC+k}")
        self.barrier()
        for g in range(8):
            e(f"v_cvt_pk_bf16_f32 v{ACC+4*g}, v{ACC+4*g}, v{ACC+4*g+1}")
            e(f"v_cvt_pk_bf16_f32 v{ACC+4*g+1}, v{ACC+4*g+2}, v{ACC+4*g+3}")
            e(f"v_xor_b32 v{16+g}, {g*16}, v6")
            self.ds(f"ds_write_b64 v{16+g}, {vr(ACC+4*g,2)}")
        e(f"s_lshl_b32 s{S_TMP}, s3, 18")
        e(f"s_lshl_b32 s{S_TMP+1}, s{sB}, 15")
        e(f"s_add_u32 s{S_TMP}, s{S_TMP}, s{S_TMP+1}")
        e(f"s_lshl_b32 s{S_TMP+1}, s{sChunk}, 10")
        e(f"s_add_u32 s{S_TMP}, s{S_TMP}, s{S_TMP+1}")
        self.addr(S_A, S_WS, S_TMP, WS_LATP)
        e(f"s_lshl_b32 s{S_TMP}, s3, 2")
        e(f"s_and_b32 s{S_TMP}, s{S_TMP}, 15")
        e(f"v_xor_b32 v4, s{S_TMP}, v0")
        e("v_lshlrev_b32 v4, 4, v4")
        e(f"s_lshl_b32 s{S_TMP}, s3, 12")
        e(f"v_add_u32 v4, s{S_TMP}, v4")
        self.barrier()
        tk = []
        for k in range(4):
            e(f"v_xor_b32 v{16+k}, {k*16}, v4")
            tk.append(self.ds(f"ds_read_b128 {vr(64+4*k,4)}, v{16+k} offset:{k*1024}"))
        for k in range(4):
            self.lgwait(tk[k])
            self.vm(f"global_store_dwordx4 v33, {vr(64+4*k,4)}, {sr(S_A)} sc1")
            if k < 3:
                self.adv(S_A, 65536)
        e(f"s_lshl_b32 s{S_TMP}, s{sB}, 5")
        e(f"s_add_u32 s{S_TMP}, s{S_TMP}, s{sChunk}")
        e(f"s_lshl_b32 s{S_TMP}, s{S_TMP}, 3")
        self.addr(S_B, S_WS, S_TMP, WS_LSEA)
        e("v_lshlrev_b32 v4, 9, v0")
        e(f"v_mov_b32 v9, v{V_T}")
        e("s_waitcnt vmcnt(0)")
        e("s_barrier")
        e("s_cmp_lg_u32 s3, 0")
        e("s_cbranch_scc1 L_fin")
        self.exec_set(0xffffffff, 0)
        self.vm(f"global_store_dwordx2 v4, v[8:9], {sr(S_B)} sc1")
        self.exec_all()
        self.stamp(7)
        e("s_branch L_fin")

    def role_T(self):
        e = self.e
        o = self.o
        D = o.get("depth_t", 8)
        R = [32 + 32 * k for k in range(7)]
        WSC, LATS, CS, OSUM, OB = 8192, 16384, 20480, 28672, 36864
        self.label("L_roleT")
        e(f"s_lshl_b32 s{S_TMP}, s3, 19")
        e(f"s_lshl_b32 s{S_TMP+1}, s2, 8")
        e(f"s_add_u32 s{S_TMP}, s{S_TMP}, s{S_TMP+1}")
        self.addr(S_C, S_WUK, S_TMP)
        self.addr(S_D, S_WUV, S_TMP)
        e(f"v_lshlrev_b32 v32, 13, v{V_N}")
        e(f"v_lshl_add_u32 v32, v{V_J}, 4, v32")
        UK = R[5]
        for t in range(4):
            for ks in range(4):
                uktok = self.ld4(UK + 16 * t + 4 * ks, 32, S_C, ks * 64)
            if t < 3:
                self.adv(S_C, 131072)
        self.p1_compute(R[1])
        e(f"s_lshl_b32 s{S_P}, s3, 10")
        e(f"s_add_u32 s{S_P}, s{S_P}, {WSC}")
        e(f"s_lshl_b32 s{S_TMP}, s2, 12")
        self.addr(S_A, S_WS, S_TMP, WS_QP)
        e("v_lshlrev_b32 v31, 4, v0")

        def issue():
            for k in range(4):
                self.ld4(8 + 4 * k, 31, S_A, k * 1024, "sc1")

        def check():
            for k in range(4):
                self.chk4(8 + 4 * k, 4, k == 0)

        self.poll(issue, check)
        self.stamp(2)
        for k in range(4):
            e(f"v_add_f32 v{8+k}, v{8+k}, v{12+k}")
            e(f"v_add_f32 v{16+k}, v{16+k}, v{20+k}")
        for k in range(4):
            e(f"v_add_f32 v{8+k}, v{8+k}, v{16+k}")
        e("v_cvt_pk_bf16_f32 v8, v8, v9")
        e("v_cvt_pk_bf16_f32 v9, v10, v11")
        e("v_lshlrev_b32 v4, 3, v0")
        e(f"v_add_u32 v30, s{S_P}, v4")
        self.ds("ds_write_b64 v30, v[8:9]")
        e(f"v_and_b32 v4, 1, v{V_N}")
        e("v_lshlrev_b32 v4, 8, v4")
        e(f"v_lshl_add_u32 v4, v{V_J}, 4, v4")
        e(f"v_add_u32 v4, s{S_P}, v4")
        self.lgwait()
        for ks in range(4):
            self.ds(f"ds_read_b128 {vr(8+4*ks,4)}, v4 offset:{ks*64}")
        self.lgwait()
        for t in range(4):
            for ks in range(4):
                d = vr(R[0] + 4 * t, 4)
                e(f"v_mfma_f32_16x16x32_bf16 {d}, {vr(UK+16*t+4*ks,4)}, {vr(8+4*ks,4)}, {'0' if ks == 0 else d}")
        e(f"v_lshrrev_b32 v4, 1, v{V_N}")
        for t in range(1, 4):
            e(f"v_cmp_eq_u32 vcc, {t}, v4")
            for r in range(4):
                e(f"v_cndmask_b32 v{R[0]+r}, v{R[0]+r}, v{R[0]+4*t+r}, vcc")
        self.tag4(R[0])
        e(f"s_lshl_b32 s{S_TMP}, s2, 11")
        e(f"s_lshl_b32 s{S_TMP+1}, s3, 8")
        e(f"s_add_u32 s{S_TMP}, s{S_TMP}, s{S_TMP+1}")
        self.addr(S_A, S_WS, S_TMP, WS_QA)
        e(f"v_and_b32 v5, 1, v{V_N}")
        e("v_lshlrev_b32 v5, 16, v5")
        e("v_lshl_add_u32 v5, v4, 6, v5")
        e(f"v_lshl_add_u32 v5, v{V_J}, 4, v5")
        self.exec_set(0x00ff00ff, 0x00ff00ff)
        self.vm(f"global_store_dwordx4 v5, {vr(R[0],4)}, {sr(S_A)} sc1")
        self.exec_all()
        self.stamp(3)
        e(f"v_lshlrev_b32 v28, 16, v{V_J}")
        e(f"v_lshl_add_u32 v28, v{V_N}, 4, v28")
        e(f"v_lshlrev_b32 v29, 13, v{V_J}")
        e(f"v_lshl_add_u32 v29, v{V_N}, 4, v29")
        e(f"s_lshl_b32 s{S_TMP}, s2, 17")
        e(f"s_lshr_b32 s{S_TMP+1}, s3, 2")
        e(f"s_lshl_b32 s{S_TMP+1}, s{S_TMP+1}, 16")
        e(f"s_add_u32 s{S_TMP}, s{S_TMP}, s{S_TMP+1}")
        e(f"s_and_b32 s{S_TMP+1}, s3, 3")
        e(f"s_lshl_b32 s{S_TMP+1}, s{S_TMP+1}, 8")
        e(f"s_add_u32 s{S_TMP}, s{S_TMP}, s{S_TMP+1}")
        self.addr(S_A, S_WOA, S_TMP)
        self.addr(S_B, S_WOB, S_TMP)
        gtok = {}

        def gload(g):
            for t in range(8):
                self.throttle(D)
                if g < 2:
                    gtok[g] = self.ld4(R[g + 1] + 4 * t, 28, S_D)
                    self.adv(S_D, 8192 if t < 7 else 8192 * 25)
                else:
                    a = S_A if g < 4 else S_B
                    gtok[g] = self.ld4(R[g + 1] + 4 * t, 29, a, (t & 3) * 1024)
                    if t & 3 == 3:
                        self.adv(a, 4096 if t == 3 else 4096 * 7)

        def gperm(g):
            self.vmwait(gtok[g])
            for i in range(8):
                self.frag(R[g] + 4 * i, R[g + 1], i, 8)

        gload(0)
        for g in range(1, 6):
            gload(g)
            gperm(g - 1)
        gperm(5)
        self.stamp(4)
        X = R[6]
        e(f"s_lshl_b32 s{S_TMP}, s2, 9")
        self.addr(S_A, S_WS, S_TMP, WS_LSEA)
        e("v_lshlrev_b32 v4, 3, v0")

        def check_a():
            e(f"v_cmp_ne_u32 {sr(S_BAD)}, v9, v{V_T}")

        self.poll(lambda: self.vm(f"global_load_dwordx2 v[8:9], v4, {sr(S_A)} sc1"), check_a)
        self.stamp(5)
        e(f"s_lshl_b32 s{S_TMP}, s2, 16")
        e(f"s_lshr_b32 s{S_TMP+1}, s3, 2")
        e(f"s_lshl_b32 s{S_TMP+1}, s{S_TMP+1}, 15")
        e(f"s_add_u32 s{S_TMP}, s{S_TMP}, s{S_TMP+1}")
        e(f"s_and_b32 s{S_TMP+1}, s3, 3")
        e(f"s_lshl_b32 s{S_TMP+1}, s{S_TMP+1}, 8")
        e(f"s_add_u32 s{S_TMP}, s{S_TMP}, s{S_TMP+1}")
        self.addr(S_A, S_WS, S_TMP, WS_LATP)
        for t in range(8):
            ltok = self.ld4(X + 4 * t, 29, S_A, (t & 3) * 1024, "sc1")
            if t == 3:
                self.adv(S_A, 4096)

        def red32(op, r, tmp):
            for sh in (8, 4, 2, 1):
                e(f"{op}_dpp v{r}, v{r}, v{r} row_ror:{sh} row_mask:0xf bank_mask:0xf")
            self.xrow(op, r, tmp, (16,))

        e("v_mov_b32 v10, v8")
        red32("v_max_f32", 10, 11)
        e("v_sub_f32 v8, v8, v10")
        e("v_exp_f32 v8, v8")
        e("v_mov_b32 v10, v8")
        red32("v_add_f32", 10, 11)
        e("v_rcp_f32 v10, v10")
        e("v_mul_f32 v8, v8, v10")
        e("v_cvt_pk_bf16_f32 v9, v8, v8")
        e("v_and_b32 v10, 0xffff0000, v9")
        e("v_sub_f32 v8, v8, v10")
        e("v_cvt_pk_bf16_f32 v10, v8, v8")
        e("v_lshrrev_b32 v4, 5, v0")
        e("v_lshlrev_b32 v4, 7, v4")
        e("v_and_b32 v5, 31, v0")
        e("v_lshl_add_u32 v4, v5, 1, v4")
        e(f"v_add_u32 v4, s{S_P}, v4")
        self.ds("ds_write_b16 v4, v9")
        self.ds("ds_write_b16 v4, v10 offset:64")
        e(f"s_lshr_b32 s{S_TMP}, s3, 2")
        e(f"s_lshl_b32 s{S_TMP}, s{S_TMP}, 7")
        e(f"s_add_u32 s{S_TMP}, s{S_TMP}, s{S_P}")
        e(f"v_and_b32 v4, 1, v{V_N}")
        e("v_lshlrev_b32 v4, 6, v4")
        e(f"v_lshl_add_u32 v4, v{V_J}, 4, v4")
        e(f"v_add_u32 v4, s{S_TMP}, v4")
        self.lgwait()
        self.ds("ds_read_b128 v[4:7], v4")
        self.lgwait()
        self.vmwait(ltok)
        for half in range(2):
            for i in range(4):
                self.frag(24, X, 4 * half + i, 8)
                e(f"v_mfma_f32_16x16x32_bf16 {vr(8+4*i,4)}, v[4:7], v[24:27], 0")
            for i in range(4):
                e(f"v_add_f32 v{8+4*i}, v{8+4*i}, v{9+4*i}")
            dst = (X, X + 2)[half]
            if half == 0:
                e("v_cvt_pk_bf16_f32 v30, v8, v12")
                e("v_cvt_pk_bf16_f32 v31, v16, v20")
            else:
                e(f"v_cvt_pk_bf16_f32 v{X+2}, v8, v12")
                e(f"v_cvt_pk_bf16_f32 v{X+3}, v16, v20")
                e(f"v_mov_b32 v{X}, v30")
                e(f"v_mov_b32 v{X+1}, v31")
        e(f"s_lshl_b32 s{S_TMP}, s3, 8")
        e(f"v_lshlrev_b32 v4, 4, v{V_N}")
        e(f"v_add_u32 v4, s{S_TMP}, v4")
        self.exec_set(0xffff, 0)
        self.ds(f"ds_write_b128 v4, {vr(X,4)} offset:{LATS}")
        self.exec_all()
        e("v_lshlrev_b32 v31, 4, v0")
        e("v_lshlrev_b32 v4, 3, v0")
        e(f"v_add_u32 v30, s{S_P}, v4")
        e(f"v_bfe_u32 v26, v{V_N}, 2, 1")
        e("v_lshlrev_b32 v4, 10, v26")
        e(f"v_lshl_add_u32 v4, v{V_J}, 4, v4")
        e(f"s_lshl_b32 s{S_TMP}, s3, 7")
        e(f"v_add_u32 v4, s{S_TMP}, v4")
        e(f"v_lshlrev_b32 v27, 5, v{V_N}")
        self.barrier()

        def proj(F, areg_addr, aoff):
            for kg in range(2):
                self.ds(f"ds_read_b128 {vr(8+4*kg,4)}, v{areg_addr} offset:{aoff+kg*64}")
            self.lgwait()
            for kg in range(2):
                for i in range(8):
                    d = vr(X + 4 * i, 4)
                    e(f"v_mfma_f32_16x16x32_bf16 {d}, {vr(8+4*kg,4)}, {vr(F+32*kg+4*i,4)}, {'0' if kg == 0 else d}")

        def put8(addr, off):
            self.exec_set(0xffffffff, 0)
            for i in range(0, 8, 2):
                self.ds(f"ds_write2_b32 v{addr}, v{X+4*i}, v{X+4*i+4} offset0:{off//4+i} offset1:{off//4+i+1}")
            self.exec_all()

        proj(R[0], 4, LATS)
        e(f"s_lshl_b32 s{S_TMP}, s3, 10")
        e(f"s_add_u32 s{S_TMP}, s{S_TMP}, {CS}")
        e(f"v_lshl_add_u32 v4, v{V_J}, 9, v27")
        e(f"v_add_u32 v4, s{S_TMP}, v4")
        put8(4, 0)
        self.barrier()
        for w in range(8):
            self.ds(f"ds_read_b128 {vr(X+4*w,4)}, v31 offset:{CS+w*1024}")
        e(f"s_lshr_b32 s{S_TMP}, s3, 2")
        e(f"s_lshl_b32 s{S_TMP}, s{S_TMP}, 7")
        e("v_lshlrev_b32 v25, 8, v26")
        e(f"v_lshl_add_u32 v25, v{V_J}, 4, v25")
        e(f"v_add_u32 v25, s{S_TMP}, v25")
        e(f"v_add_u32 v4, s{S_P}, v25")
        e(f"s_lshr_b32 s{S_TMP}, s3, 2")
        e(f"s_lshl_b32 s{S_TMP}, s{S_TMP}, 12")
        e(f"s_and_b32 s{S_TMP+1}, s3, 3")
        e(f"s_lshl_b32 s{S_TMP+1}, s{S_TMP+1}, 9")
        e(f"s_add_u32 s{S_TMP}, s{S_TMP}, s{S_TMP+1}")
        e(f"s_add_u32 s{S_TMP}, s{S_TMP}, {OSUM}")
        e(f"v_lshl_add_u32 v24, v{V_J}, 11, v27")
        e(f"v_add_u32 v24, s{S_TMP}, v24")
        self.lgwait()
        for st in (4, 2, 1):
            for w in range(st):
                for k in range(4):
                    e(f"v_add_f32 v{X+4*w+k}, v{X+4*w+k}, v{X+4*(w+st)+k}")
        e(f"v_cvt_pk_bf16_f32 v8, v{X}, v{X+1}")
        e(f"v_cvt_pk_bf16_f32 v9, v{X+2}, v{X+3}")
        self.ds("ds_write_b64 v30, v[8:9]")
        self.lgwait()
        proj(R[2], 4, 0)
        put8(24, 0)
        e(f"s_and_b32 s{S_TMP}, s3, 1")
        e(f"s_lshl_b32 s{S_TMP}, s{S_TMP}, 16")
        e(f"s_lshr_b32 s{S_TMP+1}, s3, 1")
        e(f"s_lshl_b32 s{S_TMP+1}, s{S_TMP+1}, 6")
        e(f"s_add_u32 s{S_TMP}, s{S_TMP}, s{S_TMP+1}")
        e(f"s_lshl_b32 s{S_TMP+1}, s2, 7")
        e(f"s_add_u32 s{S_TMP}, s{S_TMP}, s{S_TMP+1}")
        self.addr(S_C, S_WS, S_TMP, WS_OUTP)
        e("v_lshrrev_b32 v4, 2, v0")
        e("v_lshlrev_b32 v4, 12, v4")
        e("v_and_b32 v5, 3, v0")
        e("v_lshl_add_u32 v23, v5, 4, v4")
        e(f"s_lshl_b32 s{S_TMP}, s3, 10")
        e(f"v_add_u32 v22, s{S_TMP}, v31")

        def publish():
            self.barrier()
            lab = self.newlabel("L_pub")
            e("s_cmp_ge_u32 s3, 4")
            e(f"s_cbranch_scc1 {lab}")
            self.cond += 1
            self.ds(f"ds_read_b128 v[8:11], v22 offset:{OSUM}")
            self.ds(f"ds_read_b128 v[12:15], v22 offset:{OSUM+4096}")
            self.lgwait()
            for k in range(4):
                e(f"v_add_f32 v{8+k}, v{8+k}, v{12+k}")
            self.tag4(8)
            self.vm(f"global_store_dwordx4 v23, v[8:11], {sr(S_C)} sc1")
            self.cond -= 1
            self.label(lab)

        publish()
        self.adv(S_C, 131072)
        self.stamp(6)
        lab = self.newlabel("L_bcomb")
        e("s_cmp_lg_u32 s3, 0")
        e(f"s_cbranch_scc1 {lab}")
        self.cond += 1
        Y = R[0]
        e(f"s_lshl_b32 s{S_TMP}, s2, 9")
        self.addr(S_A, S_WS, S_TMP, WS_LSEB)
        e("v_lshrrev_b32 v4, 5, v0")
        e("v_lshlrev_b32 v5, 8, v4")

        def issue_l():
            for c in range(NCB):
                self.ld4(Y + 4 * c, 5, S_A, c * 16, "sc1")

        def check_l():
            for c in range(NCB):
                self.chk4(Y + 4 * c, 6, c == 0)

        self.poll(issue_l, check_l)
        e(f"v_max3_f32 v6, v{Y}, v{Y+4}, v{Y+8}")
        for c in range(3, NCB - 1, 2):
            e(f"v_max3_f32 v6, v6, v{Y+4*c}, v{Y+4*c+4}")
        e(f"v_max_f32 v6, v6, v{Y+4*(NCB-1)}")
        WG = 8
        for c in range(NCB):
            e(f"v_sub_f32 v{WG+c}, v{Y+4*c}, v6")
        for c in range(NCB):
            e(f"v_exp_f32 v{WG+c}, v{WG+c}")
        e(f"v_add_f32 v6, v{WG}, v{WG+1}")
        for c in range(2, NCB):
            e(f"v_add_f32 v6, v6, v{WG+c}")
        e("v_rcp_f32 v6, v6")
        for c in range(NCB):
            e(f"v_mul_f32 v{WG+c}, v6, v{WG+c}")
        e(f"s_mul_i32 s{S_TMP}, s2, {2*NCB*512}")
        self.addr(S_A, S_WS, S_TMP, WS_OP)
        self.addr(S_B, S_A, None, 4096)
        e(f"v_mul_u32_u24 v4, {NCB*512}, v4")
        e("v_and_b32 v5, 31, v0")
        e("v_lshl_add_u32 v5, v5, 4, v4")
        self.stamp(7)

        def issue_o():
            for c in range(NCB):
                self.ld4(Y + 4 * c, 5, S_A if c < 8 else S_B, (c & 7) * 512, "sc1")

        self.poll(issue_o, check_l)
        self.stamp(8)
        for k in range(4):
            e(f"v_mul_f32 v{Y+k}, v{WG}, v{Y+k}")
        for c in range(1, NCB):
            for k in range(4):
                e(f"v_fmac_f32 v{Y+k}, v{WG+c}, v{Y+4*c+k}")
        e(f"v_cvt_pk_bf16_f32 v8, v{Y}, v{Y+1}")
        e(f"v_cvt_pk_bf16_f32 v9, v{Y+2}, v{Y+3}")
        e("v_lshlrev_b32 v4, 3, v0")
        self.ds(f"ds_write_b64 v4, v[8:9] offset:{OB}")
        self.cond -= 1
        self.label(lab)
        self.barrier()
        proj(R[4], 25, OB)
        put8(24, 0)
        publish()
        self.stamp(9)
        e("s_cmp_ge_u32 s3, 2")
        e("s_cbranch_scc1 L_fin")
        e(f"s_xor_b32 s{S_TMP+1}, s3, 1")
        e(f"s_lshl_b32 s{S_TMP}, s{S_TMP+1}, 17")
        e(f"s_lshl_b32 s{S_P+1}, s2, 12")
        e(f"s_add_u32 s{S_TMP}, s{S_TMP}, s{S_P+1}")
        self.addr(S_A, S_WS, S_TMP, WS_OUTP)
        e(f"s_lshl_b32 s{S_TMP}, s{S_TMP+1}, 10")
        e(f"s_lshl_b32 s{S_P+1}, s2, 5")
        e(f"s_add_u32 s{S_TMP}, s{S_TMP}, s{S_P+1}")
        self.addr(S_B, S_OUT, S_TMP)
        e("v_bfe_u32 v4, v0, 2, 1")
        e("v_lshlrev_b32 v4, 11, v4")
        e("v_and_b32 v5, 3, v0")
        e("v_lshl_add_u32 v5, v5, 3, v4")
        self.poll(issue, check)
        self.stamp(10)
        for k in range(4):
            e(f"v_add_f32 v{8+k}, v{8+k}, v{12+k}")
            e(f"v_add_f32 v{16+k}, v{16+k}, v{20+k}")
        for k in range(4):
            e(f"v_add_f32 v{8+k}, v{8+k}, v{16+k}")
        for k in range(4):
            e(f"v_add_f32_dpp v{8+k}, v{8+k}, v{8+k} row_ror:8 row_mask:0xf bank_mask:0xf")
        self.xrow_multi("v_add_f32", [8, 9, 10, 11], [12, 13, 14, 15])
        e("v_cvt_pk_bf16_f32 v8, v8, v9")
        e("v_cvt_pk_bf16_f32 v9, v10, v11")
        self.exec_set(0xff, 0)
        self.vm(f"global_store_dwordx2 v5, v[8:9], {sr(S_B)}")
        e(f"s_or_b32 s{S_TMP}, s2, s3")
        e(f"s_cmp_lg_u32 s{S_TMP}, 0")
        e("s_cbranch_scc1 L_fin")
        self.exec_set(1, 0)
        e("v_mov_b32 v4, 0")
        self.vm(f"global_store_dword v4, v{V_T}, {sr(S_WS)}")
        e("s_branch L_fin")

    def finish(self):
        e = self.e
        self.label("L_fin")
        if self.o.get("stamps"):
            self.exec_all()
            self.stamp(15)
            e(f"s_lshl_b32 s{S_TMP}, s2, 3")
            e(f"s_add_u32 s{S_TMP}, s{S_TMP}, s3")
            e(f"s_lshl_b32 s{S_TMP}, s{S_TMP}, 7")
            self.addr(S_A, S_WS, S_TMP, WS_STAMP)
            e("s_waitcnt lgkmcnt(0)")
            e("v_mov_b32 v4, 0")
            self.exec_set(1, 0)
            for k in range(8):
                for q in range(4):
                    e(f"v_mov_b32 v{8+q}, s{S_STAMP+4*k+q}")
                e(f"global_store_dwordx4 v4, v[8:11], {sr(S_A)} offset:{k*16}")
        self.label("L_end")
        e("s_endpgm")


def generate(**opt):
    k = K(opt)
    head = [l.rstrip("\n") for l in open(REF) if l.startswith(";") and "@launch" not in l and "Override" not in l and "grid=ceil" not in l]
    L = k.L
    L += head
    L.append("; @launch grid=(256,1,1) block=(512,1,1) lds=163840")
    L.append('.amdgcn_target "amdgcn-amd-amdhsa--gfx950"')
    L += [".text", f".globl {NAME}_kernel", ".p2align 8", f".type {NAME}_kernel,@function", f"{NAME}_kernel:"]
    if opt.get("stamps"):
        for r in range(S_STAMP, S_STAMP + 32):
            k.e(f"s_mov_b32 s{r}, 0")
    k.prologue()
    k.e(f"s_cmp_ge_u32 s2, {NT+NA}")
    k.e("s_cbranch_scc1 L_roleB")
    k.e(f"s_cmp_ge_u32 s2, {NT}")
    k.e("s_cbranch_scc1 L_roleA")
    base = k.vm_n
    k.role_T()
    k.vm_n = base
    k.role_A()
    k.vm_n = base
    k.role_B()
    k.finish()
    L += ['.section .rodata,"a"', ".p2align 6", f".amdhsa_kernel {NAME}_kernel",
          "  .amdhsa_next_free_vgpr 256", "  .amdhsa_next_free_sgpr 102", "  .amdhsa_accum_offset 256",
          "  .amdhsa_group_segment_fixed_size 0", "  .amdhsa_kernarg_size 112", "  .amdhsa_user_sgpr_count 2",
          "  .amdhsa_user_sgpr_kernarg_segment_ptr 1", "  .amdhsa_system_sgpr_workgroup_id_x 1", ".end_amdhsa_kernel"]
    return k.text()


if __name__ == "__main__":
    opt = {}
    out = sys.argv[1]
    for a in sys.argv[2:]:
        kk, v = a.split("=")
        opt[kk] = int(v)
    open(out, "w").write(generate(**opt))
```

```python
import sys, struct
from asmlib import Gen, vr, sr

NAME = "concat_heads__compressed_kv_cla__gqa_block_cached__decode"
REF = "cdna_kernels/" + NAME + ".s.ref"

NT, NA, NB = 32, 64, 160
NCB = 14
WS_QP = 0x010000
WS_QA = 0x060000
WS_LSEA = 0x090000
WS_LSEB = 0x0A0000
WS_OP = 0x0B0000
WS_OUTP = 0x140000
WS_LATP = 0x200000
WS_STAMP = 128 << 20
SCALE = (128 ** -0.5) * 1.4426950408889634


def f2u(x):
    return struct.unpack("<I", struct.pack("<f", x))[0]


S_AX, S_CKV, S_WQA, S_WUK, S_WUV, S_WOA, S_BX, S_K, S_V, S_WQB, S_WOB, S_OUT, S_DBG, S_WS = range(4, 32, 2)
S_E, S_T = 32, 33
S_SEL = 34
S_LO, S_HI = 38, 39
S_A, S_B, S_C, S_D = 40, 42, 44, 46
S_X0, S_X1, S_X2 = 48, 49, 50
S_SC = 51
S_SPIN = 52
S_P = 53
S_BAD = 60
S_TMP = 62
S_STAMP = 64
S_EVEN = 96
S_SL = 100
V_L, V_N, V_J, V_T = 0, 1, 2, 3
SPIN_MAX = 1 << 18
PUBW = 7


class K(Gen):
    def __init__(self, opt):
        super().__init__()
        self.o = opt

    def stamp(self, k):
        if self.o.get("stamps"):
            self.e(f"s_memrealtime {sr(S_STAMP + 2 * k)}")

    def addr(self, dst, base, off_s=None, off_i=0):
        if off_s is not None:
            self.e(f"s_add_u32 s{dst}, s{base}, s{off_s}")
            self.e(f"s_addc_u32 s{dst+1}, s{base+1}, 0")
            base = dst
        if off_i or off_s is None:
            self.e(f"s_add_u32 s{dst}, s{base}, {off_i}")
            self.e(f"s_addc_u32 s{dst+1}, s{base+1}, 0")

    def adv(self, a, n):
        self.e(f"s_add_u32 s{a}, s{a}, {n}")
        self.e(f"s_addc_u32 s{a+1}, s{a+1}, 0")

    def sexpr(self, dst, terms, const=0):
        first = True
        for reg, shr, mask, shl in terms:
            t = dst if first else S_TMP + 1
            src = reg
            if shr:
                self.e(f"s_lshr_b32 s{t}, s{src}, {shr}"); src = t
            if mask is not None:
                self.e(f"s_and_b32 s{t}, s{src}, {mask}"); src = t
            if shl or src != t:
                self.e(f"s_lshl_b32 s{t}, s{src}, {shl}")
            if not first:
                self.e(f"s_add_u32 s{dst}, s{dst}, s{t}")
            first = False
        if const:
            self.e(f"s_add_u32 s{dst}, s{dst}, {const}")

    def ld4(self, dst, voff, sbase, off=0, fl="nt"):
        return self.vm(f"global_load_dwordx4 {vr(dst,4)}, v{voff}, {sr(sbase)} offset:{off} {fl}")

    def throttle(self, d):
        if d:
            self.e(f"s_waitcnt vmcnt({d-1})")

    def tag4(self, r):
        for k in range(4):
            self.e(f"v_perm_b32 v{r+k}, v{r+k}, v{V_T}, s{S_SEL+k}")

    def chk4(self, r, tmp, first):
        self.e(f"v_perm_b32 v{tmp}, v{r+1}, v{r}, s{S_X0}")
        self.e(f"v_perm_b32 v{tmp}, v{r+2}, v{tmp}, s{S_X1}")
        self.e(f"v_perm_b32 v{tmp}, v{r+3}, v{tmp}, s{S_X2}")
        if first:
            self.e(f"v_cmp_ne_u32 {sr(S_BAD)}, v{tmp}, v{V_T}")
        else:
            self.e(f"v_cmp_ne_u32 vcc, v{tmp}, v{V_T}")
            self.e(f"s_or_b64 {sr(S_BAD)}, {sr(S_BAD)}, vcc")

    def poll(self, issue, check, pre_issued=None, light=None):
        top, done = self.newlabel("L_poll"), self.newlabel("L_got")
        self.e(f"s_mov_b32 s{S_SPIN}, {SPIN_MAX}")
        if pre_issued is not None:
            self.vmwait(pre_issued)
            check()
            self.e(f"s_cmp_eq_u64 {sr(S_BAD)}, 0")
            self.e(f"s_cbranch_scc1 {done}")
        self.label(top)
        self.cond += 1
        self.e(f"s_sub_u32 s{S_SPIN}, s{S_SPIN}, 1")
        self.e(f"s_cbranch_scc1 {done}")
        if light:
            light[0]()
            self.e("s_waitcnt vmcnt(0)")
            light[1]()
            self.e(f"s_cmp_eq_u64 {sr(S_BAD)}, 0")
            self.e(f"s_cbranch_scc0 {top}")
        issue()
        self.e("s_waitcnt vmcnt(0)")
        check()
        self.cond -= 1
        self.e(f"s_cmp_eq_u64 {sr(S_BAD)}, 0")
        self.e(f"s_cbranch_scc0 {top}")
        self.label(done)

    def when(self, cmp, fn):
        lab = self.newlabel("L_skip")
        self.e(cmp)
        self.e(f"s_cbranch_scc0 {lab}")
        self.cond += 1
        fn()
        self.cond -= 1
        self.label(lab)

    def arrive(self, cnt):
        self.e("v_mov_b32 v6, 1")
        self.e(f"v_mov_b32 v7, {cnt}")
        self.exec_set(1, 0)
        self.ds("ds_add_u32 v7, v6")
        self.exec_all()

    def await_cnt(self, cnt, n):
        top, done = self.newlabel("L_cnt"), self.newlabel("L_cntok")
        e = self.e
        e(f"v_mov_b32 v7, {cnt}")
        e(f"s_mov_b32 s{S_SPIN}, {SPIN_MAX*16}")
        self.label(top)
        e("ds_read_b32 v6, v7")
        e(f"s_sub_u32 s{S_SPIN}, s{S_SPIN}, 1")
        e(f"s_cbranch_scc1 {done}")
        e("s_waitcnt lgkmcnt(0)")
        e(f"v_readfirstlane_b32 s{S_TMP}, v6")
        e(f"s_cmp_lt_u32 s{S_TMP}, {n}")
        e(f"s_cbranch_scc1 {top}")
        self.label(done)

    def xrow(self, op, regs, tmps, which=(16, 32)):
        for w in which:
            for r, t in zip(regs, tmps):
                self.e(f"v_mov_b32 v{t}, v{r}")
            for r, t in zip(regs, tmps):
                self.e(f"v_permlane{w}_swap_b32 v{t}, v{r}")
            for r, t in zip(regs, tmps):
                self.e(f"{op} v{r}, v{r}, v{t}")

    def frag(self, dst, raw, i, nld):
        for p in range(nld // 2):
            self.e(f"v_perm_b32 v{dst+p}, v{raw + 4*(2*p+1) + (i >> 1)}, v{raw + 4*(2*p) + (i >> 1)}, s{S_HI if i & 1 else S_LO}")

    def swap_pairs(self, pairs):
        dpp = "quad_perm:[1,0,3,2] row_mask:0xf bank_mask:0xf"
        self.e(f"s_mov_b64 vcc, {sr(S_EVEN)}")
        for d, a, b in pairs:
            for k in range(4):
                self.e(f"v_cndmask_b32_dpp v{d+k}, v{b+k}, v{a+k}, vcc {dpp}")
                self.e(f"v_xor_b32 v{a+k}, v{a+k}, v{d+k}")
            for k in range(4):
                self.e(f"v_xor_b32_dpp v{b+k}, v{a+k}, v{b+k} {dpp}")

    def tree_add4(self, r, n):
        st = n // 2
        while st:
            for w in range(st):
                for k in range(4):
                    self.e(f"v_add_f32 v{r+4*w+k}, v{r+4*w+k}, v{r+4*(w+st)+k}")
            st //= 2

    def chain(self, op3, op2, dst, regs):
        regs = list(regs)
        if len(regs) >= 3 and op3:
            self.e(f"{op3} v{dst}, v{regs[0]}, v{regs[1]}, v{regs[2]}")
            rest = regs[3:]
            while len(rest) >= 2:
                self.e(f"{op3} v{dst}, v{dst}, v{rest[0]}, v{rest[1]}")
                rest = rest[2:]
        else:
            self.e(f"{op2} v{dst}, v{regs[0]}, v{regs[1]}")
            rest = regs[2:]
        for r in rest:
            self.e(f"{op2} v{dst}, v{dst}, v{r}")

    def exec_set(self, lo, hi):
        self.e(f"s_mov_b32 exec_lo, {lo:#x}")
        self.e(f"s_mov_b32 exec_hi, {hi:#x}")

    def exec_all(self):
        self.e("s_mov_b64 exec, -1")

    def prologue(self):
        e = self.e
        e("s_cmp_ge_u32 s2, 256")
        e("s_cbranch_scc1 L_end")
        self.stamp(0)
        if self.o.get("stamps"):
            e(f"s_memtime {sr(S_STAMP + 26)}")
        e("s_load_dwordx16 s[4:19], s[0:1], 0")
        e("s_load_dwordx8 s[20:27], s[0:1], 64")
        e("s_load_dwordx4 s[28:31], s[0:1], 96")
        e("v_lshrrev_b32 v4, 6, v0")
        e("v_and_b32 v0, 63, v0")
        e("v_readfirstlane_b32 s3, v4")
        e(f"v_and_b32 v{V_N}, 15, v0")
        e(f"v_lshrrev_b32 v{V_J}, 4, v0")

    def consts(self):
        e = self.e
        e(f"s_load_dword s{S_E}, {sr(S_WS)}, 0")
        for k in range(4):
            e(f"s_mov_b32 s{S_SEL+k}, {0x07060500 + k:#x}")
        e(f"s_mov_b32 s{S_LO}, 0x05040100")
        e(f"s_mov_b32 s{S_HI}, 0x07060302")
        e(f"s_mov_b32 s{S_X0}, 0x0c0c0400")
        e(f"s_mov_b32 s{S_X1}, 0x0c040100")
        e(f"s_mov_b32 s{S_X2}, 0x04020100")
        e(f"s_mov_b32 s{S_SC}, {f2u(SCALE):#x}")
        e(f"s_mov_b32 s{S_EVEN}, 0x55555555")
        e(f"s_mov_b32 s{S_EVEN+1}, 0x55555555")

    def settag(self):
        self.e(f"s_add_u32 s{S_T}, s{S_E}, 0x01010101")
        self.e(f"v_mov_b32 v{V_T}, s{S_T}")

    def p1_issue(self, sSl, sW, sX, xr, wr, first=True):
        e = self.e
        if first:
            e(f"v_lshlrev_b32 v4, 15, v{V_J}")
            e(f"v_lshl_add_u32 v4, v{V_N}, 4, v4")
            e(f"v_bfe_u32 v5, v{V_N}, 2, 1")
            e("v_lshlrev_b32 v5, 10, v5")
            e(f"v_lshl_add_u32 v5, v{V_J}, 3, v5")
        self.sexpr(S_TMP, [(sSl, 0, 3, 7), (3, 0, None, 4)])
        self.sexpr(S_A, [(S_TMP, 0, None, 13), (sSl, 2, 31, 8)])
        e(f"s_lshl_b32 s{S_TMP}, s{S_TMP}, 1")
        if first:
            e("s_waitcnt lgkmcnt(0)")
        sW(); sX()
        self.vm(f"global_load_dwordx2 {vr(xr, 2)}, v5, {sr(S_B)}")
        for t in range(4):
            tok = self.ld4(wr + 4 * t, 4, S_A)
            if t < 3:
                self.adv(S_A, 8192)
        if first:
            e("s_barrier")
        return tok

    def p1_plain(self, sSl, W, X, xr, wr, first=True):
        def sW():
            self.e(f"s_add_u32 s{S_A}, s{W}, s{S_A}")
            self.e(f"s_addc_u32 s{S_A+1}, s{W+1}, 0")
        return self.p1_issue(sSl, sW, lambda: self.addr(S_B, X, S_TMP), xr, wr, first)

    def p1_compute(self, sSl, tok, xr, wr, d0, X, lds=0, first=True):
        e = self.e
        e(f"v_lshlrev_b32 v4, 5, v{V_N}")
        e(f"v_lshl_add_u32 v4, v{V_J}, 9, v4")
        self.sexpr(S_TMP, [(3, 0, None, 10)], lds)
        e(f"v_add_u32 v4, s{S_TMP}, v4")
        self.vmwait(tok)
        for i in range(8):
            t = X + 2 * (i & 3)
            self.frag(t, wr, i, 4)
            e(f"v_mfma_f32_16x16x16_bf16 {vr(d0+4*i,4)}, {vr(xr,2)}, {vr(t,2)}, 0")
        self.exec_set(0xffffffff, 0)
        for i in range(0, 8, 2):
            self.ds(f"ds_write2_b32 v4, v{d0+4*i}, v{d0+4*i+4} offset0:{i} offset1:{i+1}")
        self.exec_all()
        e("s_waitcnt lgkmcnt(0)")
        if first:
            self.settag()
        e("s_barrier")

        def pub():
            e("v_lshlrev_b32 v4, 4, v0")
            for w in range(8):
                self.ds(f"ds_read_b128 {vr(d0+4*w,4)}, v4 offset:{lds+w*1024}")
            e(f"s_lshl_b32 s{S_TMP}, s{sSl}, 10")
            self.addr(S_B, S_WS, S_TMP, WS_QP)
            e("s_waitcnt lgkmcnt(0)")
            self.tree_add4(d0, 8)
            self.tag4(d0)
            self.vm(f"global_store_dwordx4 v4, {vr(d0,4)}, {sr(S_B)} sc1")

        self.when(f"s_cmp_eq_u32 s3, {PUBW if first else 0}", pub)
        if first:
            self.stamp(1)

    def p1_double(self, off1, off2, pre, d0, lds2):
        e = self.e
        e(f"s_add_u32 s{S_SL}, s2, {off1}")
        e(f"s_add_u32 s{S_SL+1}, s2, {off2}")
        t1 = self.p1_plain(S_SL, S_WQA, S_AX, 8, 16)
        t2 = self.p1_plain(S_SL + 1, S_WQB, S_BX, 10, 32, first=False)
        self.consts()
        pre()
        self.p1_compute(S_SL, t1, 8, 16, d0, 48)
        self.p1_compute(S_SL + 1, t2, 10, 32, d0, 48, lds2, first=False)


class Chunk:
    QS, ST, OS = 8192, 9216, 10240

    def __init__(self, k, nb, extra, KR, VR, QF, SR, ACC, X, VA, CNT, sK, sV, sQ):
        self.k, self.nb, self.extra = k, nb, extra
        self.KR, self.VR, self.QF, self.SR, self.ACC, self.X = KR, VR, QF, SR, ACC, X
        self.vK, self.vV, self.vQ, self.vF = VA, VA + 1, VA + 2, VA + 3
        self.CNT, self.sK, self.sV, self.sQ = CNT, sK, sV, sQ
        self.sPair, self.sChunk, self.sTile, self.sNx = S_P, S_P + 1, S_P + 2, S_P + 3
        self.ktok, self.vtok = {}, {}

    def ifx(self, fn):
        self.k.when(f"s_cmp_lt_u32 s3, s{self.sNx}", fn)

    def setup(self):
        k = self.k; e = k.e
        k.sexpr(S_TMP, [(self.sPair, 0, None, 21), (self.sTile, 0, None, 12)])
        k.addr(self.sK, S_K, S_TMP)
        k.addr(self.sV, S_V, S_TMP)
        a, b = self.vQ, self.vF
        e(f"v_bfe_u32 v{a}, v0, 1, 1")
        e(f"v_lshlrev_b32 v{a}, 11, v{a}")
        e(f"v_bfe_u32 v{b}, v0, 2, 2")
        e(f"v_lshl_add_u32 v{a}, v{b}, 8, v{a}")
        e(f"v_lshl_add_u32 v{a}, v{V_J}, 5, v{a}")
        e(f"v_and_b32 v{b}, 1, v0")
        e(f"v_lshl_add_u32 v{self.vK}, v{b}, 4, v{a}")
        e(f"v_lshlrev_b32 v{self.vV}, 4, v0")
        e(f"v_lshlrev_b32 v{self.vQ}, 10, v{V_J}")
        e(f"v_lshl_add_u32 v{self.vQ}, v{V_N}, 4, v{self.vQ}")

    def qaddr(self):
        k = self.k
        k.sexpr(S_TMP, [(self.sPair, 0, 7, 14), (3, 1, None, 12), (self.sPair, 3, None, 9), (3, 0, 1, 8)])
        k.addr(self.sQ, S_WS, S_TMP, WS_QP + 128 * 1024)

    def kload(self, t, d=0, lo=0, hi=4):
        for ks in range(lo, hi):
            self.k.throttle(d)
            self.ktok[t] = self.k.ld4(self.KR[t] + 4 * ks, self.vK, self.sK, (ks & 1) * 1024 + (ks >> 1) * 128)
        if hi == 4:
            self.k.adv(self.sK, 4096)

    def vload(self, t, d=0, lo=0, hi=4):
        for i in range(lo, hi):
            self.k.throttle(d)
            self.vtok[t] = self.k.ld4(self.VR[t] + 4 * i, self.vV, self.sV, i * 1024)
        if hi == 4:
            self.k.adv(self.sV, 4096)

    def qissue(self):
        return self.k.ld4(8, self.vQ, self.sQ, 0, "sc1")

    def qpiece(self, tok=None):
        k = self.k; e = k.e
        k.poll(self.qissue, lambda: k.chk4(8, 4, True), pre_issued=tok)
        k.xrow("v_add_f32", [8, 9, 10, 11], [12, 13, 14, 15])
        e("v_cvt_pk_bf16_f32 v8, v8, v9")
        e("v_cvt_pk_bf16_f32 v9, v10, v11")
        e(f"s_lshl_b32 s{S_TMP}, s3, 7")
        e(f"v_lshlrev_b32 v4, 3, v{V_N}")
        e(f"v_add_u32 v4, s{S_TMP}, v4")
        k.exec_set(0xffff, 0)
        k.ds(f"ds_write_b64 v4, v[8:9] offset:{self.QS}")
        k.arrive(self.CNT)

    def qread(self):
        k = self.k; e = k.e
        k.await_cnt(self.CNT, 8)
        e(f"v_lshrrev_b32 v4, 2, v{V_N}")
        e("v_lshlrev_b32 v4, 8, v4")
        e(f"v_lshl_add_u32 v4, v{V_J}, 5, v4")
        for ks in range(4):
            k.ds(f"ds_read_b128 {vr(self.QF+4*ks,4)}, v4 offset:{self.QS+(ks>>1)*128+(ks&1)*16}")
        if self.extra:
            for r in range(4):
                e(f"v_mov_b32 v{self.SR+4*self.nb+r}, 0xff800000")

    def qk(self, t):
        k = self.k
        k.vmwait(self.ktok[t])
        k0, x = self.KR[t], self.X + 8 * (t & 1)
        k.swap_pairs([(x, k0, k0 + 4), (x + 4, k0 + 8, k0 + 12)])
        d = vr(self.SR + 4 * t, 4)
        for ks, f in enumerate((x, k0 + 4, x + 4, k0 + 12)):
            k.e(f"v_mfma_f32_16x16x32_bf16 {d}, {vr(f,4)}, {vr(self.QF+4*ks,4)}, {'0' if ks == 0 else d}")

    def softmax(self):
        k = self.k; e = k.e
        SR = self.SR
        n = 4 * (self.nb + self.extra)
        k.chain("v_max3_f32", "v_max_f32", 4, range(SR, SR + n))
        k.xrow("v_max_f32", [4], [5])
        e(f"v_mul_f32 v4, s{S_SC}, v4")
        for i in range(n):
            e(f"v_fma_f32 v{SR+i}, v{SR+i}, s{S_SC}, -v4")
        for i in range(n):
            e(f"v_exp_f32 v{SR+i}, v{SR+i}")
        k.chain(None, "v_add_f32", 5, range(SR, SR + n))
        for i in range(n // 2):
            e(f"v_cvt_pk_bf16_f32 v{SR+i}, v{SR+2*i}, v{SR+2*i+1}")
        k.xrow("v_add_f32", [5], [6])
        e(f"s_lshl_b32 s{S_TMP}, s3, 5")
        e(f"v_lshlrev_b32 v6, 1, v{V_N}")
        e(f"v_add_u32 v6, s{S_TMP}, v6")
        k.exec_set(0x1111, 0)
        k.ds(f"ds_write_b64 v6, v[4:5] offset:{self.ST}")
        k.arrive(self.CNT + 4)

    def pv(self, t, n, first=False):
        k = self.k
        k.vmwait(self.vtok[t + n - 1])
        for i in range(8):
            x = self.X + 4 * (i & 3)
            k.frag(x, self.VR[t], i, 4 * n)
            d = vr(self.ACC + 4 * i, 4)
            op = "v_mfma_f32_16x16x32_bf16" if n == 2 else "v_mfma_f32_16x16x16_bf16"
            k.e(f"{op} {d}, {vr(self.SR+2*t,2*n)}, {vr(x,2*n)}, {'0' if first else d}")

    def factor(self, T0):
        k = self.k; e = k.e
        k.await_cnt(self.CNT + 4, 8)
        e(f"v_lshlrev_b32 v6, 3, v{V_J}")
        for w in range(8):
            k.ds(f"ds_read_b64 {vr(T0+2*w,2)}, v6 offset:{self.ST+w*32}")
        e(f"s_lshl_b32 s{S_TMP}, s3, 5")
        e(f"v_add_u32 v6, s{S_TMP}, v6")
        k.ds(f"ds_read_b64 v[4:5], v6 offset:{self.ST}")
        k.lgwait()
        k.chain("v_max3_f32", "v_max_f32", 7, range(T0, T0 + 16, 2))
        for w in range(8):
            e(f"v_sub_f32 v{T0+2*w}, v{T0+2*w}, v7")
        e("v_sub_f32 v4, v4, v7")
        for w in range(8):
            e(f"v_exp_f32 v{T0+2*w}, v{T0+2*w}")
        e("v_exp_f32 v4, v4")
        e(f"v_mul_f32 v5, v{T0}, v{T0+1}")
        for w in range(1, 8):
            e(f"v_fmac_f32 v5, v{T0+2*w}, v{T0+2*w+1}")
        e("v_rcp_f32 v6, v5")
        e("v_log_f32 v5, v5")
        e(f"v_mul_f32 v{self.vF}, v4, v6")

        def lse():
            for i in range(4):
                e(f"v_add_f32 v{8+i}, v5, v7")
            k.tag4(8)
            k.sexpr(S_TMP, [(self.sPair, 0, 7, 11), (self.sPair, 3, None, 8), (self.sChunk, 0, None, 4)])
            k.addr(self.sQ, S_WS, S_TMP, WS_LSEB)
            e(f"v_lshlrev_b32 v4, 9, v{V_J}")
            k.exec_set(0x00010001, 0x00010001)
            k.vm(f"global_store_dwordx4 v4, v[8:11], {sr(self.sQ)} sc1")
            k.exec_all()

        k.when(f"s_cmp_eq_u32 s3, {PUBW}", lse)
        k.sexpr(S_TMP, [(self.sPair, 0, 7, 3), (3, 0, 1, 2), (self.sPair, 3, None, 0)])
        e(f"s_mul_i32 s{S_TMP}, s{S_TMP}, {NCB}")
        e(f"s_add_u32 s{S_TMP}, s{S_TMP}, s{self.sChunk}")
        e(f"s_lshl_b32 s{S_TMP}, s{S_TMP}, 9")
        k.addr(self.sQ, S_WS, S_TMP, WS_OP)
        e("v_lshrrev_b32 v4, 5, v0")
        e(f"v_mul_u32_u24 v4, {2*NCB*512}, v4")
        e("v_and_b32 v5, 31, v0")
        e(f"v_lshl_add_u32 v{self.vQ}, v5, 4, v4")
        e(f"s_lshl_b32 s{S_TMP}, s3, 11")
        e(f"v_lshlrev_b32 v4, 9, v{V_J}")
        e(f"v_lshl_add_u32 v4, v{V_N}, 5, v4")
        e(f"v_add_u32 v{self.vK}, s{S_TMP}, v4")
        k.sexpr(S_TMP, [(3, 0, 1, 10)])
        e(f"v_add_u32 v{self.vV}, s{S_TMP}, v{self.vV}")

    def finish(self, T0, st):
        k = self.k; e = k.e
        k.stamp(st)
        for i in range(8):
            e(f"v_mul_f32 v{T0+i}, v{self.vF}, v{self.ACC+4*i}")
        k.ds(f"ds_write_b128 v{self.vK}, {vr(T0,4)} offset:{self.OS}")
        k.ds(f"ds_write_b128 v{self.vK}, {vr(T0+4,4)} offset:{self.OS+16}")
        k.barrier()
        e("s_cmp_lt_u32 s3, 6")
        e("s_cbranch_scc1 L_fin")
        for w in range(8):
            k.ds(f"ds_read_b128 {vr(T0+4*w,4)}, v{self.vV} offset:{self.OS+w*2048}")
        k.lgwait()
        k.tree_add4(T0, 8)
        k.tag4(T0)
        k.vm(f"global_store_dwordx4 v{self.vQ}, {vr(T0,4)}, {sr(self.sQ)} sc1")
        k.stamp(st + 1)
        e("s_branch L_fin")


def role_B(k):
    e, o = k.e, k.o
    D1, D, DV, SW = o.get("depth_b1", 2), o.get("depth_b", 4), o.get("depth_v", 6), o.get("b_sw", 2)
    KR = [160 + 16 * t for t in range(6)]
    VR = [16, 32, KR[0], KR[1], KR[2], KR[3]]
    CNT, QS2, UK = 9728, 9856, 144
    c = Chunk(k, 6, 0, KR, VR, QF=128, SR=100, ACC=64, X=48, VA=96, CNT=CNT, sK=S_C, sV=S_D, sQ=S_A)
    sI = S_P + 4
    dep = lambda t: D1 if t < SW else D
    npre, bpre = o.get("p2_at", 2), o.get("b_pre", 1)

    def params():
        e(f"s_mul_i32 s{c.sPair}, s{sI}, 6554")
        e(f"s_lshr_b32 s{c.sPair}, s{c.sPair}, 16")
        e(f"s_mul_i32 s{c.sChunk}, s{c.sPair}, 10")
        e(f"s_sub_u32 s{c.sChunk}, s{sI}, s{c.sChunk}")
        e(f"s_mul_i32 s{c.sTile}, s{c.sChunk}, 48")
        e(f"s_mul_i32 s{S_TMP}, s3, 6")
        e(f"s_add_u32 s{c.sTile}, s{c.sTile}, s{S_TMP}")
        c.setup()
        for r in range(124, 128):
            e(f"v_mov_b32 v{r}, 0")
        e(f"v_mov_b32 v123, {CNT}")
        k.ds("ds_write_b128 v123, v[124:127]")

    k.label("L_roleB")
    e(f"s_sub_u32 s{sI}, s2, {NT+NA}")
    e("s_cmp_ge_u32 s2, 224")
    e("s_cbranch_scc1 L_roleB2")
    base = k.vm_n
    e(f"s_add_u32 s{S_SL}, s{sI}, 64")

    def selW():
        e(f"s_cmp_lt_u32 s{sI}, 64")
        e(f"s_cselect_b32 s{S_C}, s{S_WQA}, s{S_WQB}")
        e(f"s_cselect_b32 s{S_C+1}, s{S_WQA+1}, s{S_WQB+1}")
        e(f"s_cselect_b32 s{S_B}, s{S_AX}, s{S_BX}")
        e(f"s_cselect_b32 s{S_B+1}, s{S_AX+1}, s{S_BX+1}")
        e(f"s_add_u32 s{S_A}, s{S_C}, s{S_A}")
        e(f"s_addc_u32 s{S_A+1}, s{S_C+1}, 0")

    tok = k.p1_issue(S_SL, selW, lambda: k.addr(S_B, S_B, S_TMP), 8, 16)
    k.sexpr(S_TMP, [(sI, 0, 3, 20), (3, 0, None, 17), (sI, 2, None, 8)])
    k.addr(S_C, S_WUK, S_TMP)
    e("v_bfe_u32 v33, v0, 1, 3")
    e("v_lshlrev_b32 v33, 14, v33")
    e(f"v_lshl_add_u32 v33, v{V_J}, 5, v33")
    e("v_and_b32 v32, 1, v0")
    e("v_lshl_add_u32 v33, v32, 4, v33")
    e("v_add_u32 v32, 0x2000, v33")
    for ks in range(4):
        uktok = k.ld4(UK + 4 * ks, 33 - (ks & 1), S_C, (ks >> 1) * 128)
    k.consts()
    params()
    c.kload(0, 0, 0, bpre)
    k.p1_compute(S_SL, tok, 8, 16, c.ACC, 48)
    c.kload(0, 0, bpre, npre)
    k.sexpr(S_TMP, [(sI, 2, None, 12), (3, 0, 3, 8)])
    k.addr(S_B, S_WS, S_TMP, WS_QP)

    def p2_piece():
        k.poll(lambda: k.ld4(8, c.vQ, S_B, 0, "sc1"), lambda: k.chk4(8, 4, True))
        k.xrow("v_add_f32", [8, 9, 10, 11], [12, 13, 14, 15])
        e("v_cvt_pk_bf16_f32 v8, v8, v9")
        e("v_cvt_pk_bf16_f32 v9, v10, v11")
        k.sexpr(S_TMP, [(3, 0, 3, 7)])
        e(f"v_lshlrev_b32 v4, 3, v{V_N}")
        e(f"v_add_u32 v4, s{S_TMP}, v4")
        k.exec_set(0xffff, 0)
        k.ds(f"ds_write_b64 v4, v[8:9] offset:{QS2}")
        k.arrive(CNT + 8)

    k.vmwait(uktok)
    k.swap_pairs([(48, UK, UK + 4), (52, UK + 8, UK + 12)])
    k.when("s_cmp_ge_u32 s3, 4", p2_piece)
    k.stamp(7)
    k.sexpr(S_TMP, [(sI, 2, None, 11), (sI, 0, 3, 9), (3, 0, None, 6)])
    k.addr(S_B, S_WS, S_TMP, WS_QA)
    e(f"v_lshlrev_b32 v5, 16, v{V_N}")
    e(f"v_lshl_add_u32 v5, v{V_J}, 4, v5")
    e(f"v_and_b32 v4, 1, v{V_N}")
    e("v_lshlrev_b32 v4, 8, v4")
    e(f"v_lshl_add_u32 v4, v{V_J}, 5, v4")
    k.await_cnt(CNT + 8, 4)
    for ks in range(4):
        k.ds(f"ds_read_b128 {vr(c.QF+4*ks,4)}, v4 offset:{QS2+(ks>>1)*128+(ks&1)*16}")
    k.lgwait()
    for ks, f in enumerate((48, UK + 4, 52, UK + 12)):
        e(f"v_mfma_f32_16x16x32_bf16 v[8:11], {vr(f,4)}, {vr(c.QF+4*ks,4)}, {'0' if ks == 0 else 'v[8:11]'}")
    k.tag4(8)
    k.exec_set(0x00030003, 0x00030003)
    k.cond += 1
    k.vm(f"global_store_dwordx4 v5, v[8:11], {sr(S_B)} sc1")
    k.cond -= 1
    k.exec_all()
    k.stamp(8)
    if npre < 4:
        c.kload(0, dep(0), npre, 4)
    e("s_branch L_roleB3")
    end1 = k.vm_n - c.ktok[0]
    k.label("L_roleB2")
    k.vm_n = base
    k.p1_double(-192, 0, lambda: (params(), c.kload(0, 0, 0, bpre)), c.ACC, 32768)
    c.kload(0, dep(0), bpre, 4)
    assert end1 == 0 and k.vm_n == c.ktok[0]
    k.label("L_roleB3")
    c.qaddr()
    qat = o.get("b_qat", 2)
    for t in range(1, 6):
        if t == qat:
            qtok = c.qissue()
        c.kload(t, dep(t))
        if t == qat:
            k.stamp(2)
            c.qpiece(qtok)
            k.stamp(3)
    c.qread()
    c.vload(0, DV)
    k.lgwait()
    c.qk(0); c.qk(1)
    c.vload(1, DV)
    c.qk(2); c.qk(3)
    c.vload(2, DV)
    c.qk(4); c.qk(5)
    c.vload(3, DV)
    k.stamp(4)
    c.softmax()
    c.vload(4, DV)
    c.pv(0, 2, first=True)
    c.vload(5, DV)
    c.pv(2, 2)
    c.factor(16)
    c.pv(4, 2)
    c.finish(16, 5)


def role_A(k):
    e, o = k.e, k.o
    C0, G, QH, QT, SR, ACC = 128, 64, 64, 96, 48, 128
    Q = 131072
    HOLE, ST1, ST2, CNT = 768, 0, 256, Q + 512
    VL, VM, VMA = 56, 58, 60
    sB, sCh, sA = S_P + 4, S_P + 5, S_P + 6
    c = Chunk(k, 1, 0, KR=[160], VR=[176], QF=64, SR=48, ACC=96, X=80, VA=28, CNT=CNT, sK=S_C, sV=S_D, sQ=S_A)
    k.label("L_roleA")
    e(f"s_sub_u32 s{sA}, s2, {NT}")
    k.sexpr(S_TMP, [(sA, 0, None, 18), (3, 0, None, 14)])
    e("v_bfe_u32 v32, v0, 1, 3")
    e("v_lshlrev_b32 v32, 11, v32")
    e(f"v_lshl_add_u32 v32, v{V_J}, 5, v32")
    e("v_and_b32 v33, 1, v0")
    e("v_lshl_add_u32 v32, v33, 4, v32")
    e("s_waitcnt lgkmcnt(0)")
    SCK = 96 + 2
    k.addr(SCK, S_CKV, S_TMP)
    k.addr(SCK + 2, SCK, None, 131072)
    DA = o.get("depth_a", 5)
    coff = lambda ks: (ks & 1) * 1024 + (ks >> 1) * 128
    CF = []
    for p in range(16):
        CF += [{0: 124, 8: 120}.get(p, C0 + 8 * p - 8), C0 + 8 * p + 4]
    ctok = {}
    st = {"n": 0}

    sVal, sIss = 92, 93
    dyn = {"lo": 99}

    def cload(n):
        ctok[n] = k.ld4(C0 + 4 * n, 32, SCK if n < 16 else SCK + 2, coff(n & 15))

    def pump(upto, d=0):
        while st["n"] < min(upto, 40):
            n = st["n"]
            if n < 32:
                if n >= dyn["lo"]:
                    lab = k.newlabel("L_have")
                    e(f"s_cmp_gt_u32 s{sIss}, {n}")
                    e(f"s_cbranch_scc1 {lab}")
                    cload(n)
                    k.label(lab)
                else:
                    cload(n)
            elif n < 36:
                c.kload(0, d, n - 32, n - 31)
            else:
                c.vload(0, d, n - 36, n - 35)
            st["n"] += 1

    pump(DA)
    k.consts()
    e(f"s_lshr_b32 s{sB}, s{sA}, 5")
    e(f"s_and_b32 s{sCh}, s{sA}, 31")
    e(f"v_bfe_u32 v4, v{V_N}, 1, 2")
    e(f"v_and_b32 v5, 3, v{V_N}")
    e("v_lshl_add_u32 v4, v5, 2, v4")
    e(f"v_lshlrev_b32 v5, 1, v{V_J}")
    e("v_xor_b32 v4, v4, v5")
    e(f"s_lshl_b32 s{S_TMP}, s3, 14")
    e(f"v_lshlrev_b32 v5, 10, v{V_N}")
    e(f"v_add_u32 v5, s{S_TMP}, v5")
    e("v_lshl_add_u32 v40, v4, 4, v5")
    kx = lambda q: (q >> 1) * 128 + (q & 1) * 16
    for q in range(1, 4):
        e(f"v_xor_b32 v{40+q}, {kx(q)}, v40")
    k.sexpr(S_TMP, [(sB, 0, None, 16), (3, 0, None, 13)])
    k.addr(S_A, S_WS, S_TMP, WS_QA)
    k.addr(S_B, S_A, None, 4096)
    e("v_lshlrev_b32 v33, 4, v0")
    e("v_lshlrev_b32 v34, 7, v0")
    e(f"v_lshlrev_b32 v4, 1, v{V_J}")
    e(f"v_xor_b32 v4, v4, v{V_N}")
    e(f"v_lshlrev_b32 v5, 10, v{V_N}")
    e(f"v_add_u32 v5, {Q}, v5")
    e("v_lshl_add_u32 v44, v4, 4, v5")
    for q in range(1, 4):
        e(f"v_xor_b32 v{44+q}, {kx(q)}, v44")
    e(f"v_and_b32 v4, 7, v0")
    e("v_lshl_add_u32 v35, v4, 5, v5")
    e(f"s_lshl_b32 s{S_TMP}, s3, 2")
    e(f"v_add_u32 v36, s{S_TMP}, v35")
    e("v_and_b32 v6, 31, v0")
    e("v_lshlrev_b32 v6, 10, v6")
    e(f"v_add_u32 v6, {Q}, v6")
    e("v_lshl_add_u32 v37, v4, 5, v6")
    e(f"v_lshrrev_b32 v7, 1, v{V_J}")
    e(f"s_lshl_b32 s{S_TMP}, s3, 1")
    e(f"v_add_u32 v7, s{S_TMP}, v7")
    e(f"v_xor_b32 v7, v7, v{V_N}")
    e("v_lshl_add_u32 v7, v7, 4, v5")
    e(f"v_and_b32 v8, 1, v{V_J}")
    e("v_lshl_add_u32 v38, v8, 3, v7")
    e("v_lshrrev_b32 v4, 5, v0")
    e(f"v_xor_b32 v7, v4, v{V_N}")
    e("v_lshl_add_u32 v20, v7, 4, v6")
    e("v_bfe_u32 v5, v0, 2, 2")
    e("v_lshl_add_u32 v6, v4, 3, v5")
    e("v_lshlrev_b32 v6, 10, v6")
    e("v_and_b32 v7, 1, v0")
    e("v_lshl_add_u32 v6, v7, 3, v6")
    k.sexpr(S_TMP, [(3, 1, None, 8)])
    e(f"v_add_u32 v6, s{S_TMP}, v6")
    e("v_bfe_u32 v7, v0, 4, 1")
    e("v_bfe_u32 v8, v0, 1, 1")
    e("v_lshl_add_u32 v7, v7, 1, v8")
    k.sexpr(S_TMP, [(3, 0, 1, 3)])
    e(f"v_add_u32 v7, s{S_TMP}, v7")
    e("v_lshrrev_b32 v8, 1, v5")
    e("v_lshlrev_b32 v5, 2, v5")
    e("v_xor_b32 v7, v7, v5")
    e("v_xor_b32 v7, v7, v8")
    for mt in range(2):
        for ee in range(2):
            r = 16 + 2 * mt + ee
            e(f"v_xor_b32 v{r}, {4*mt + 2*ee}, v7")
            e(f"v_lshl_add_u32 v{r}, v{r}, 4, v6")
            if ee:
                e(f"v_add_u32 v{r}, 4096, v{r}")
    e(f"s_lshr_b32 s{c.sPair}, s{sA}, 2")
    k.sexpr(c.sChunk, [(sA, 0, 3, 0)], 10)
    k.sexpr(c.sTile, [(sA, 0, 3, 3), (3, 0, None, 0)], 480)
    c.setup()
    e("s_waitcnt lgkmcnt(0)")
    k.settag()

    def cwrite(ks):
        k.ds(f"ds_write_b128 v{40+(ks&3)}, {vr(CF[ks],4)} offset:{((ks&15)>>2)*256}")

    def qload(q):
        return k.ld4(G + 4 * q, 33, S_A if q < 4 else S_B, (q & 3) * 1024, "sc1")

    gat = o.get("a_gat", 7)
    for p in range(8):
        pump(2 * p + 2 + DA)
        if p == gat:
            for q in range(8):
                gtok = qload(q)
        k.vmwait(ctok[2 * p + 1])
        k.swap_pairs([(CF[2 * p], C0 + 8 * p, C0 + 8 * p + 4)])
        cwrite(2 * p); cwrite(2 * p + 1)
    k.stamp(2)
    n0, step = st["n"], o.get("a_step", 3)
    top, chk, done = k.newlabel("L_qa"), k.newlabel("L_qachk"), k.newlabel("L_qaok")
    e(f"s_mov_b32 s{sVal}, 0")
    e(f"s_mov_b32 s{sIss}, {n0}")
    e(f"s_mov_b32 s{S_SPIN}, {SPIN_MAX}")
    k.vmwait(gtok)
    e(f"s_branch {chk}")
    k.label(top)
    k.cond += 1
    e(f"s_sub_u32 s{S_SPIN}, s{S_SPIN}, 1")
    e(f"s_cbranch_scc1 {done}")
    for q in range(8):
        lab = k.newlabel("L_qsk")
        e(f"s_bitcmp1_b32 s{sVal}, {q}")
        e(f"s_cbranch_scc1 {lab}")
        qload(q)
        k.label(lab)
    full, w0 = k.newlabel("L_qfull"), k.newlabel("L_qw0")
    e(f"s_cmp_gt_u32 s{sIss}, {32 - step}")
    e(f"s_cbranch_scc1 {w0}")
    for g in range(n0, 32 - step + 1, step):
        lab = k.newlabel("L_qp")
        e(f"s_cmp_lg_u32 s{sIss}, {g}")
        e(f"s_cbranch_scc1 {lab}")
        for n in range(g, g + step):
            cload(n)
        k.label(lab)
    e(f"s_add_u32 s{sIss}, s{sIss}, {step}")
    e(f"s_waitcnt vmcnt({step})")
    e(f"s_branch {chk}")
    k.label(w0)
    e("s_waitcnt vmcnt(0)")
    k.label(chk)
    for q in range(8):
        k.chk4(G + 4 * q, 4 + (q & 1), True)
        e(f"s_cmp_eq_u64 {sr(S_BAD)}, 0")
        e(f"s_cselect_b32 s{S_TMP}, {1 << q}, 0")
        e(f"s_or_b32 s{sVal}, s{sVal}, s{S_TMP}")
    e(f"s_cmp_lg_u32 s{sVal}, 0xff")
    e(f"s_cbranch_scc1 {top}")
    k.cond -= 1
    k.label(done)
    dyn["lo"] = n0
    k.stamp(3)
    e("v_lshrrev_b32 v4, 1, v0")
    k.sexpr(S_TMP, [(3, 0, 3, 2)])
    e(f"v_xor_b32 v4, s{S_TMP}, v4")
    e("v_and_b32 v5, 1, v0")
    e("v_lshlrev_b32 v5, 3, v5")
    e("v_lshl_add_u32 v4, v4, 4, v5")
    k.sexpr(S_TMP, [(3, 0, None, 12)], Q)
    e(f"v_add_u32 v4, s{S_TMP}, v4")
    for q in range(8):
        hh, half = q >> 1, q & 1
        if half == 0:
            e(f"v_xor_b32 v5, {hh*16}, v4")
        e(f"v_cvt_pk_bf16_f32 v{G+4*q}, v{G+4*q}, v{G+4*q+1}")
        e(f"v_cvt_pk_bf16_f32 v{G+4*q+1}, v{G+4*q+2}, v{G+4*q+3}")
        k.ds(f"ds_write_b64 v5, {vr(G+4*q,2)} offset:{hh*1024+half*512}")
    k.barrier()
    tk = {}
    qreg = lambda ks, hh: (QH + 8 * (ks - 12) if ks >= 12 else QT + 8 * (ks % 3)) + 4 * hh

    def qread(ks):
        for hh in range(2):
            tk[ks] = k.ds(f"ds_read_b128 {vr(qreg(ks,hh),4)}, v{44+(ks&3)} offset:{hh*16384+(ks>>2)*256}")

    def qkmfma(rnd, ks):
        for hh in range(2):
            d = vr(SR + 4 * hh, 4)
            e(f"v_mfma_f32_16x16x32_bf16 {d}, {vr(CF[16*rnd+ks],4)}, {vr(qreg(ks,hh),4)}, {'0' if ks == 0 else d}")

    qread(0); qread(1)
    for ks in range(16):
        if ks + 2 < 16:
            qread(ks + 2)
        k.lgwait(tk[ks])
        qkmfma(0, ks)
        if ks & 3 == 2:
            pump(min(st["n"] + 1, 32))
    k.stamp(4)

    def softmax(rnd):
        so = HOLE if rnd == 0 else ST1
        for hh in range(2):
            k.chain("v_max3_f32", "v_max_f32", 4 + hh, range(SR + 4 * hh, SR + 4 * hh + 4))
        k.xrow("v_max_f32", [4, 5], [6, 7])
        k.barrier()
        k.exec_set(0xffff, 0)
        for hh in range(2):
            k.ds(f"ds_write_b32 v36, v{4+hh} offset:{so+hh*16384}")
        k.exec_all()
        if rnd:
            for r in range(8, 12):
                e(f"v_mov_b32 v{r}, 0")
            e(f"v_mov_b32 v12, {CNT}")
            k.ds("ds_write_b128 v12, v[8:11]")
            pump(o.get("a_kv", 36))
        else:
            pump(min(st["n"] + 2, 32))
        k.barrier()
        T = QT
        for hh in range(2):
            for q in range(2):
                k.ds(f"ds_read_b128 {vr(T+8*hh+4*q,4)}, v35 offset:{so+hh*16384+q*16}")
        for q in range(2):
            k.ds(f"ds_read_b128 {vr(T+16+4*q,4)}, v37 offset:{so+q*16}")
        k.lgwait()
        for i, dst in enumerate((4, 5, 6)):
            k.chain("v_max3_f32", "v_max_f32", dst, range(T + 8 * i, T + 8 * i + 8))
            e(f"v_mul_f32 v{dst}, s{S_SC}, v{dst}")
        if rnd == 0:
            k.barrier()
        else:
            for i, old in enumerate((VM, VM + 1, VMA)):
                e(f"v_max_f32 v{4+i}, v{4+i}, v{old}")
                e(f"v_sub_f32 v{8+i}, v{old}, v{4+i}")
            for i in range(3):
                e(f"v_exp_f32 v{8+i}, v{8+i}")
        for i in range(8):
            e(f"v_fma_f32 v{SR+i}, v{SR+i}, s{S_SC}, -v{4+(i>>2)}")
        for i in range(8):
            e(f"v_exp_f32 v{SR+i}, v{SR+i}")
        for hh in range(2):
            if rnd == 0:
                k.chain(None, "v_add_f32", VL + hh, range(SR + 4 * hh, SR + 4 * hh + 4))
            else:
                e(f"v_fma_f32 v{VL+hh}, v{VL+hh}, v{8+hh}, v{SR+4*hh}")
                for i in range(1, 4):
                    e(f"v_add_f32 v{VL+hh}, v{VL+hh}, v{SR+4*hh+i}")
        for i in range(4):
            e(f"v_cvt_pk_bf16_f32 v{SR+i}, v{SR+2*i}, v{SR+2*i+1}")
        for hh in range(2):
            k.ds(f"ds_write_b64 v38, {vr(SR+2*hh,2)} offset:{HOLE+hh*16384}")
        e(f"v_mov_b32 v{VMA}, v6")
        if rnd == 0:
            e(f"v_mov_b32 v{VM}, v4")
            e(f"v_mov_b32 v{VM+1}, v5")
            pump(min(st["n"] + 1, 32))
        else:
            k.xrow("v_add_f32", [VL, VL + 1], [4, 5])
            k.exec_set(0xffff, 0)
            for hh in range(2):
                k.ds(f"ds_write_b32 v36, v{VL+hh} offset:{ST2+hh*16384}")
            k.exec_all()
            for i in range(32):
                e(f"v_mul_f32 v{ACC+i}, v10, v{ACC+i}")
        k.barrier()

    FR = [QT, QT + 12, 4]

    def pvround(rnd):
        tk = {}

        def rd(u):
            f = FR[u % 3]
            if u == 4:
                for r in range(16, 20):
                    e(f"v_add_u32 v{r}, 0x10000, v{r}")
            e(f"v_xor_b32 v21, {u*32}, v20")
            k.ds(f"ds_read_b128 {vr(f+8,4)}, v21 offset:{HOLE}")
            for mt in range(2):
                for ee in range(2):
                    tk[u] = k.ds(f"ds_read_b64_tr_b16 {vr(f+4*mt+2*ee,2)}, v{16+2*mt+ee} offset:{(u&3)*16384}")

        rd(0); rd(1)
        for u in range(8):
            if u + 2 < 8:
                rd(u + 2)
            k.lgwait(tk[u])
            f = FR[u % 3]
            for mt in range(2):
                d = vr(ACC + 16 * mt, 16)
                e(f"v_mfma_f32_32x32x16_bf16 {d}, {vr(f+4*mt,4)}, {vr(f+8,4)}, {'0' if (rnd == 0 and u == 0) else d}")
            if rnd == 0 and u & 1:
                pump(min(st["n"] + 1, 32))
        if rnd == 0:
            for r in range(16, 20):
                e(f"v_subrev_u32 v{r}, 0x10000, v{r}")

    softmax(0)
    pvround(0)
    k.stamp(5)
    k.barrier()
    qread(0); qread(1)
    for p in range(8, 16):
        ks = 2 * (p - 8)
        pump(min(2 * p + 2 + DA, 32))
        k.vmwait(ctok[2 * p + 1])
        k.swap_pairs([(CF[2 * p], C0 + 8 * p, C0 + 8 * p + 4)])
        for kk in (ks, ks + 1):
            if kk + 2 < 12:
                qread(kk + 2)
            if kk < 12:
                k.lgwait(tk[kk])
            qkmfma(1, kk)
        cwrite(2 * p); cwrite(2 * p + 1)
    k.stamp(6)
    softmax(1)
    pvround(1)
    k.stamp(10)
    for q in range(2):
        k.ds(f"ds_read_b128 {vr(64+4*q,4)}, v37 offset:{ST2+q*16}")
    e("v_and_b32 v4, 31, v0")
    k.sexpr(S_TMP, [(3, 0, 1, 3)])
    e(f"v_xor_b32 v6, s{S_TMP}, v{V_N}")
    e("v_lshlrev_b32 v6, 4, v6")
    e("v_lshl_add_u32 v6, v4, 10, v6")
    e("v_lshrrev_b32 v7, 5, v0")
    e("v_lshl_add_u32 v6, v7, 3, v6")
    k.sexpr(S_TMP, [(3, 1, None, 8)])
    e(f"v_add_u32 v6, s{S_TMP}, v6")
    k.sexpr(S_TMP, [(3, 0, None, 18), (sB, 0, None, 15), (sCh, 0, None, 10)])
    k.addr(S_A, S_WS, S_TMP, WS_LATP)
    k.sexpr(S_TMP, [(3, 0, 3, 2)])
    e(f"v_xor_b32 v4, s{S_TMP}, v0")
    e("v_lshlrev_b32 v4, 4, v4")
    e(f"s_lshl_b32 s{S_TMP}, s3, 12")
    e(f"v_add_u32 v4, s{S_TMP}, v4")
    k.lgwait()
    k.chain(None, "v_add_f32", 27, range(64, 72))
    e("v_rcp_f32 v10, v27")
    e("v_log_f32 v27, v27")
    e(f"v_add_f32 v26, v{VMA}, v27")
    e("s_barrier")
    for g in range(8):
        for i in range(4):
            e(f"v_mul_f32 v{ACC+4*g+i}, v10, v{ACC+4*g+i}")
        e(f"v_cvt_pk_bf16_f32 v{ACC+4*g}, v{ACC+4*g}, v{ACC+4*g+1}")
        e(f"v_cvt_pk_bf16_f32 v{ACC+4*g+1}, v{ACC+4*g+2}, v{ACC+4*g+3}")
        e(f"v_xor_b32 v{16+g}, {g*16}, v6")
        k.ds(f"ds_write_b64 v{16+g}, {vr(ACC+4*g,2)}")
    k.barrier()
    tk = []
    for q in range(4):
        e(f"v_xor_b32 v{16+q}, {q*16}, v4")
        tk.append(k.ds(f"ds_read_b128 {vr(64+4*q,4)}, v{16+q} offset:{q*1024}"))
    for q in range(4):
        k.lgwait(tk[q])
        stok = k.vm(f"global_store_dwordx4 v33, {vr(64+4*q,4)}, {sr(S_A)} {['sc1', 'sc0 sc1', 'sc1 nt', 'sc0 sc1 nt'][o.get('lat_st', 0)]}")
        if q < 3:
            k.adv(S_A, 65536)
    k.sexpr(S_TMP, [(sB, 0, None, 8), (sCh, 0, None, 3)])
    k.addr(S_B, S_WS, S_TMP, WS_LSEA)
    c.qaddr()
    qtok = c.qissue()
    if o.get("a_vpre", 0):
        pump(40)
    e("v_lshlrev_b32 v4, 9, v0")
    e(f"v_mov_b32 v27, v{V_T}")
    k.stamp(11)
    k.vmwait(stok)
    e("s_barrier")

    def flag():
        k.exec_set(0xffffffff, 0)
        k.vm(f"global_store_dwordx2 v4, v[26:27], {sr(S_B)} sc1")
        k.exec_all()

    k.when(f"s_cmp_eq_u32 s3, {PUBW}", flag)
    k.stamp(7)
    pump(40)
    c.qpiece(qtok)
    c.qread()
    k.lgwait()
    c.qk(0)
    c.softmax()
    c.factor(128)
    c.pv(0, 1, first=True)
    c.finish(128, 8)


def role_T(k):
    e, o = k.e, k.o
    D = o.get("depth_t", 4)
    R = [32 + 32 * i for i in range(7)]
    WOL, CNT, WSC, CS, OB, P1B = 32768, 16384, 16640, 21504, 25600, 8192
    sStr, sW = S_P + 2, S_P + 3
    k.label("L_roleT")
    tok = {}

    def oload(n):
        tok["o", n >> 3] = k.ld4(R[5] + 4 * n, 29, S_C, (n & 3) * 1024)
        if n & 3 == 3:
            k.adv(S_C, 4096 if n & 4 == 0 else 4096 * 7)

    def pre():
        k.sexpr(S_TMP, [(2, 0, None, 17), (3, 2, None, 16), (3, 0, 3, 8)])
        k.addr(S_C, S_WOA, S_TMP)
        e(f"v_lshlrev_b32 v{R[4]}, 13, v{V_J}")
        e(f"v_lshl_add_u32 v{R[4]}, v{V_N}, 4, v{R[4]}")
        for r in range(4):
            e(f"v_mov_b32 v{R[4]+4+r}, 0")
        e(f"v_mov_b32 v{R[4]+1}, {CNT}")
        k.ds(f"ds_write_b128 v{R[4]+1}, {vr(R[4]+4,4)}")

    k.p1_double(0, 192, pre, R[1], P1B)
    e(f"v_mov_b32 v29, v{R[4]}")
    for n in range(D):
        oload(n)
    k.sexpr(S_TMP, [(3, 0, 3, 20), (2, 0, None, 8)])
    k.addr(S_A, S_WUV, S_TMP)
    k.sexpr(S_TMP, [(2, 0, None, 17), (3, 0, 3, 8)])
    k.addr(S_B, S_WOB, S_TMP)
    e("s_cmp_lt_u32 s3, 4")
    e(f"s_cselect_b32 s{sW}, s{S_A}, s{S_B}")
    e(f"s_cselect_b32 s{sW+1}, s{S_A+1}, s{S_B+1}")
    e(f"s_cselect_b32 s{sStr}, 13, 10")
    e(f"s_lshl_b32 s{sStr}, 1, s{sStr}")
    e(f"s_lshl_b32 s{S_TMP}, s{sStr}, 3")
    e(f"v_mul_lo_u32 v28, s{S_TMP}, v{V_J}")
    e(f"v_lshl_add_u32 v28, v{V_N}, 4, v28")
    e(f"s_mul_i32 s{S_P+1}, s{sStr}, 25")
    k.sexpr(S_TMP, [(3, 0, 3, 15), (3, 2, None, 14)], WOL)
    e("v_lshlrev_b32 v31, 4, v0")
    e(f"v_add_u32 v30, s{S_TMP}, v31")
    k.sexpr(S_P, [(3, 0, None, 10)], WSC)

    def wload(n):
        k.throttle(D)
        tok["w", n >> 3] = k.ld4(R[1] + 4 * n, 28, sW)
        st = S_P + 1 if n & 7 == 7 else sStr
        e(f"s_add_u32 s{sW}, s{sW}, s{st}")
        e(f"s_addc_u32 s{sW+1}, s{sW+1}, 0")

    def operm(g):
        k.vmwait(tok["o", g])
        for i in range(8):
            x = 8 + 4 * (i & 3)
            k.frag(x, R[5 + g], i, 8)
            k.ds(f"ds_write_b128 v30, {vr(x,4)} offset:{g*8192+i*1024}")

    def wperm(g):
        k.vmwait(tok["w", g])
        for i in range(8):
            k.frag(R[g] + 4 * i, R[g + 1], i, 8)

    for n in range(D, 16):
        k.throttle(D)
        oload(n)
        if n == 11:
            operm(0)
    for n in range(32):
        wload(n)
        if n == 3:
            operm(1)
            k.arrive(CNT)
        if n & 7 == 3 and n > 8:
            wperm((n >> 3) - 1)
    e(f"v_bfe_u32 v26, v{V_N}, 2, 1")
    e("v_lshlrev_b32 v25, 8, v26")
    e(f"v_lshl_add_u32 v25, v{V_J}, 4, v25")
    e("v_lshlrev_b32 v24, 3, v0")
    e(f"s_lshr_b32 s{S_P+1}, s3, 2")
    k.sexpr(S_TMP, [(S_P + 1, 0, None, 17), (3, 0, 3, 15), (2, 0, None, 7)])
    k.addr(S_C, S_WS, S_TMP, WS_OUTP)
    e(f"v_lshrrev_b32 v4, 1, v{V_N}")
    e("v_lshlrev_b32 v4, 12, v4")
    e(f"v_and_b32 v5, 1, v{V_N}")
    e("v_lshl_add_u32 v4, v5, 5, v4")
    e(f"v_and_b32 v5, 1, v{V_J}")
    e("v_lshl_add_u32 v4, v5, 6, v4")
    e(f"v_lshrrev_b32 v5, 1, v{V_J}")
    e("v_lshl_add_u32 v23, v5, 4, v4")
    e(f"s_mov_b32 s{S_D}, 0")
    e(f"s_mov_b32 s{S_D+1}, -1")
    wperm(3)
    k.stamp(4)
    X = R[4]

    def publish():
        for i in range(4):
            e(f"v_cndmask_b32 v{8+i}, v{X+4*i}, v{X+16+4*i}, {sr(S_D)}")
        k.tag4(8)
        k.vm(f"global_store_dwordx4 v23, v[8:11], {sr(S_C)} sc1")

    e("s_cmp_ge_u32 s3, 4")
    e("s_cbranch_scc1 L_tailB")
    base = k.vm_n
    e(f"s_lshl_b32 s{S_TMP}, s2, 9")
    k.addr(S_A, S_WS, S_TMP, WS_LSEA)
    k.sexpr(S_TMP, [(2, 0, None, 16), (3, 0, None, 8)])
    LB = [98, 100, sW, S_B]
    k.addr(LB[0], S_WS, S_TMP, WS_LATP)
    for i in range(1, 4):
        k.addr(LB[i], LB[0], None, (i >> 1) * 32768 + (i & 1) * 4096)
    sIss, sBlk = 92, 94
    top, done = k.newlabel("L_lat"), k.newlabel("L_latok")
    e(f"s_mov_b64 {sr(sIss)}, 0")
    e(f"s_mov_b32 s{S_SPIN}, {SPIN_MAX}")
    k.label(top)
    k.cond += 1
    e(f"s_sub_u32 s{S_SPIN}, s{S_SPIN}, 1")
    e(f"s_cbranch_scc1 {done}")
    k.vm(f"global_load_dwordx2 v[8:9], v24, {sr(S_A)} sc1")
    e("s_waitcnt vmcnt(0)")
    e(f"v_cmp_ne_u32 {sr(S_BAD)}, v9, v{V_T}")
    e(f"s_or_b64 {sr(sBlk)}, {sr(S_BAD)}, {sr(sIss)}")
    for bt in range(16):
        b_, t = bt >> 3, bt & 7
        sk = k.newlabel("L_lsk")
        e(f"s_and_b32 s{S_TMP}, s{sBlk+b_}, {0x01010101 << t:#x}")
        e(f"s_cbranch_scc1 {sk}")
        k.ld4(R[5] + 4 * bt, 29, LB[bt >> 2], (t & 3) * 1024, "sc1")
        e(f"s_or_b32 s{sIss+b_}, s{sIss+b_}, {0x01010101 << t:#x}")
        k.label(sk)
    e(f"s_cmp_lg_u64 {sr(sIss)}, -1")
    e(f"s_cbranch_scc1 {top}")
    k.cond -= 1
    k.label(done)
    k.stamp(5)

    def red32(op, r, tmp):
        for sh in (8, 4, 2, 1):
            e(f"{op}_dpp v{r}, v{r}, v{r} row_ror:{sh} row_mask:0xf bank_mask:0xf")
        k.xrow(op, [r], [tmp], (16,))

    e("v_mov_b32 v10, v8")
    red32("v_max_f32", 10, 11)
    e("v_sub_f32 v8, v8, v10")
    e("v_exp_f32 v8, v8")
    e("v_lshrrev_b32 v4, 5, v0")
    e("v_mov_b32 v10, v8")
    red32("v_add_f32", 10, 11)
    e("v_rcp_f32 v10, v10")
    e("v_lshlrev_b32 v4, 7, v4")
    e("v_mul_f32 v8, v8, v10")
    e("v_cvt_pk_bf16_f32 v9, v8, v8")
    e("v_and_b32 v10, 0xffff0000, v9")
    e("v_sub_f32 v8, v8, v10")
    e("v_cvt_pk_bf16_f32 v10, v8, v8")
    e("v_and_b32 v5, 31, v0")
    e("v_lshl_add_u32 v4, v5, 1, v4")
    e(f"v_add_u32 v4, s{S_P}, v4")
    k.ds("ds_write_b16 v4, v9")
    k.ds("ds_write_b16 v4, v10 offset:64")
    e(f"v_and_b32 v4, 1, v{V_N}")
    e("v_lshlrev_b32 v4, 6, v4")
    e(f"v_lshl_add_u32 v4, v{V_J}, 4, v4")
    e(f"v_add_u32 v4, s{S_P}, v4")
    k.lgwait()
    k.ds("ds_read_b128 v[8:11], v4")
    k.ds("ds_read_b128 v[12:15], v4 offset:128")
    e(f"v_lshlrev_b32 v4, 4, v{V_N}")
    e(f"v_add_u32 v4, s{S_P}, v4")
    e(f"v_add_u32 v5, s{S_P}, v25")
    k.await_cnt(CNT, 8)
    e("s_waitcnt vmcnt(0)")
    for b_ in range(2):
        for i in range(8):
            x = 16
            k.frag(x, R[5 + b_], i, 8)
            e(f"v_mfma_f32_16x16x32_bf16 {vr(X+4*i,4)}, {vr(8+4*b_,4)}, {vr(x,4)}, 0")
        for i in range(8):
            e(f"v_add_f32 v{X+4*i}, v{X+4*i}, v{X+4*i+1}")
        for i in range(4):
            e(f"v_cvt_pk_bf16_f32 v{R[5+b_]+i}, v{X+8*i}, v{X+8*i+4}")
        k.exec_set(0xffff, 0)
        k.ds(f"ds_write_b128 v4, {vr(R[5+b_],4)} offset:{256+b_*256}")
        k.exec_all()
    k.lgwait()
    AF = R[5]
    for kg in range(4):
        k.ds(f"ds_read_b128 {vr(AF+4*kg,4)}, v5 offset:{256+kg*64}")
    k.sexpr(S_TMP, [(3, 0, None, 10)], CS)
    e(f"v_lshlrev_b32 v4, 5, v{V_N}")
    e(f"v_lshl_add_u32 v4, v{V_J}, 9, v4")
    e(f"v_add_u32 v4, s{S_TMP}, v4")
    k.lgwait()
    for kg in range(4):
        for i in range(8):
            d = vr(X + 4 * i, 4)
            e(f"v_mfma_f32_16x16x32_bf16 {d}, {vr(AF+4*kg,4)}, {vr(R[kg]+4*i,4)}, {'0' if kg == 0 else d}")
    k.sexpr(S_TMP, [(3, 0, None, 15)], WOL)
    e(f"v_add_u32 v30, s{S_TMP}, v31")
    k.exec_set(0xffffffff, 0)
    for i in range(0, 8, 2):
        k.ds(f"ds_write2_b32 v4, v{X+4*i}, v{X+4*i+4} offset0:{i} offset1:{i+1}")
    k.arrive(CNT + 4)
    for f in range(32):
        k.ds(f"ds_read_b128 {vr(R[0]+4*f,4)}, v30 offset:{f*1024}")
    e(f"v_add_u32 v4, {CS}, v31")
    k.await_cnt(CNT + 4, 4)
    for w in range(4):
        k.ds(f"ds_read_b128 {vr(X+4*w,4)}, v4 offset:{w*1024}")
    e(f"v_add_u32 v4, s{S_P}, v24")
    k.lgwait()
    k.tree_add4(X, 4)
    e(f"v_cvt_pk_bf16_f32 v8, v{X}, v{X+1}")
    e(f"v_cvt_pk_bf16_f32 v9, v{X+2}, v{X+3}")
    k.ds("ds_write_b64 v4, v[8:9]")
    k.lgwait()
    e("s_branch L_proj")
    k.label("L_tailB")
    k.vm_n = base
    Y, WG = R[5], 8

    def bcomb():
        e(f"s_lshl_b32 s{S_TMP}, s2, 9")
        k.addr(S_A, S_WS, S_TMP, WS_LSEB)
        e("v_lshrrev_b32 v4, 5, v0")
        e("v_lshlrev_b32 v5, 8, v4")

        def issue_l():
            for c in range(NCB):
                k.ld4(Y + 4 * c, 5, S_A, c * 16, "sc1")

        def check_l():
            for c in range(NCB):
                k.chk4(Y + 4 * c, 6 + (c & 1), c == 0)

        k.poll(issue_l, check_l)
        k.chain("v_max3_f32", "v_max_f32", 6, range(Y, Y + 4 * NCB, 4))
        for c in range(NCB):
            e(f"v_sub_f32 v{WG+c}, v{Y+4*c}, v6")
        for c in range(NCB):
            e(f"v_exp_f32 v{WG+c}, v{WG+c}")
        k.chain(None, "v_add_f32", 6, range(WG, WG + NCB))
        e("v_rcp_f32 v6, v6")
        for c in range(NCB):
            e(f"v_mul_f32 v{WG+c}, v6, v{WG+c}")
        e(f"s_mul_i32 s{S_TMP}, s2, {2*NCB*512}")
        k.addr(S_A, S_WS, S_TMP, WS_OP)
        k.addr(S_B, S_A, None, 4096)
        e(f"v_mul_u32_u24 v4, {NCB*512}, v4")
        e("v_and_b32 v5, 31, v0")
        e("v_lshl_add_u32 v5, v5, 4, v4")
        e(f"v_add_u32 v4, {OB}, v24")
        k.stamp(7)

        def issue_o():
            for c in range(NCB):
                k.ld4(Y + 4 * c, 5, S_A if c < 8 else S_B, (c & 7) * 512, "sc1")

        k.poll(issue_o, check_l)
        k.stamp(8)
        for i in range(4):
            e(f"v_mul_f32 v{Y+i}, v{WG}, v{Y+i}")
        for c in range(1, NCB):
            for i in range(4):
                e(f"v_fmac_f32 v{Y+i}, v{WG+c}, v{Y+4*c+i}")
        e(f"v_cvt_pk_bf16_f32 v8, v{Y}, v{Y+1}")
        e(f"v_cvt_pk_bf16_f32 v9, v{Y+2}, v{Y+3}")
        k.ds("ds_write_b64 v4, v[8:9]")
        k.arrive(CNT + 8)

    k.when("s_cmp_eq_u32 s3, 4", bcomb)
    e(f"v_add_u32 v5, {OB}, v25")
    k.await_cnt(CNT + 8, 1)
    k.label("L_proj")
    for kg in range(4):
        k.ds(f"ds_read_b128 {vr(AF+4*kg,4)}, v5 offset:{kg*64}")
    k.lgwait()
    for kg in range(4):
        for i in range(8):
            d = vr(X + 4 * i, 4)
            e(f"v_mfma_f32_16x16x32_bf16 {d}, {vr(AF+4*kg,4)}, {vr(R[kg]+4*i,4)}, {'0' if kg == 0 else d}")
    publish()
    k.stamp(9)
    e("s_and_b32 s62, s3, 3")
    e("s_cbranch_scc1 L_fin")
    k.sexpr(S_TMP, [(S_P + 1, 0, None, 17), (2, 0, None, 12)])
    k.addr(S_A, S_WS, S_TMP, WS_OUTP)
    k.sexpr(S_TMP, [(S_P + 1, 0, None, 10), (2, 0, None, 5)])
    k.addr(S_B, S_OUT, S_TMP)
    e("v_bfe_u32 v4, v0, 2, 1")
    e("v_lshlrev_b32 v4, 11, v4")
    e("v_and_b32 v5, 3, v0")
    e("v_lshl_add_u32 v5, v5, 3, v4")

    def issue():
        for q in range(4):
            k.ld4(12 + 4 * q, 31, S_A, q * 1024, "sc1")

    def check():
        for q in range(4):
            k.chk4(12 + 4 * q, 6 + (q & 1), q == 0)

    k.poll(issue, check)
    k.stamp(10)
    k.tree_add4(12, 4)
    for i in range(4):
        e(f"v_add_f32_dpp v{12+i}, v{12+i}, v{12+i} row_ror:8 row_mask:0xf bank_mask:0xf")
    k.xrow("v_add_f32", [12, 13, 14, 15], [16, 17, 18, 19])
    e("v_cvt_pk_bf16_f32 v12, v12, v13")
    e("v_cvt_pk_bf16_f32 v13, v14, v15")
    k.exec_set(0xff, 0)
    k.vm(f"global_store_dwordx2 v5, v[12:13], {sr(S_B)}")
    e(f"s_or_b32 s{S_TMP}, s2, s3")
    e(f"s_cmp_lg_u32 s{S_TMP}, 0")
    e("s_cbranch_scc1 L_fin")
    k.exec_set(1, 0)
    e("v_mov_b32 v4, 0")
    k.vm(f"global_store_dword v4, v{V_T}, {sr(S_WS)}")
    e("s_branch L_fin")


def finish(k):
    e = k.e
    k.label("L_fin")
    if k.o.get("stamps"):
        k.exec_all()
        k.stamp(15)
        e(f"s_memtime {sr(S_STAMP + 28)}")
        k.sexpr(S_TMP, [(2, 0, None, 10), (3, 0, None, 7)])
        k.addr(S_A, S_WS, S_TMP, WS_STAMP)
        e("s_waitcnt lgkmcnt(0)")
        e("v_mov_b32 v4, 0")
        k.exec_set(1, 0)
        for i in range(8):
            for q in range(4):
                e(f"v_mov_b32 v{8+q}, s{S_STAMP+4*i+q}")
            e(f"global_store_dwordx4 v4, v[8:11], {sr(S_A)} offset:{i*16}")
    k.label("L_end")
    e("s_endpgm")


def generate(**opt):
    k = K(opt)
    head = [l.rstrip("\n") for l in open(REF) if l.startswith(";") and "@launch" not in l and "Override" not in l and "grid=ceil" not in l]
    L = k.L
    L += head
    L.append("; @launch grid=(256,1,1) block=(512,1,1) lds=163840")
    L.append('.amdgcn_target "amdgcn-amd-amdhsa--gfx950"')
    L += [".text", f".globl {NAME}_kernel", ".p2align 8", f".type {NAME}_kernel,@function", f"{NAME}_kernel:"]
    if opt.get("stamps"):
        for r in range(S_STAMP, S_STAMP + 32):
            k.e(f"s_mov_b32 s{r}, 0")
    k.prologue()
    k.e(f"s_cmp_ge_u32 s2, {NT+NA}")
    k.e("s_cbranch_scc1 L_roleB")
    k.e(f"s_cmp_ge_u32 s2, {NT}")
    k.e("s_cbranch_scc1 L_roleA")
    base = k.vm_n
    role_T(k)
    k.vm_n = base
    role_A(k)
    k.vm_n = base
    role_B(k)
    finish(k)
    L += ['.section .rodata,"a"', ".p2align 6", f".amdhsa_kernel {NAME}_kernel",
          "  .amdhsa_next_free_vgpr 256", "  .amdhsa_next_free_sgpr 102", "  .amdhsa_accum_offset 256",
          "  .amdhsa_group_segment_fixed_size 0", "  .amdhsa_kernarg_size 112", "  .amdhsa_user_sgpr_count 2",
          "  .amdhsa_user_sgpr_kernarg_segment_ptr 1", "  .amdhsa_system_sgpr_workgroup_id_x 1", ".end_amdhsa_kernel"]
    return k.text()


if __name__ == "__main__":
    opt = {}
    for a in sys.argv[2:]:
        kk, v = a.split("=")
        opt[kk] = int(v)
    open(sys.argv[1], "w").write(generate(**opt))
```

```python
import sys, struct
from asmlib import Gen, vr, sr

NAME = "concat_heads__compressed_kv_cla__gqa_block_cached__decode"
REF = "cdna_kernels/" + NAME + ".s.ref"

NT, NA, NB = 32, 64, 160
NCB = 14
WS_QP = 0x010000
WS_QA = 0x060000
WS_LSEA = 0x090000
WS_LSEB = 0x0A0000
WS_OP = 0x0B0000
WS_OUTP = 0x140000
WS_LATP = 0x200000
WS_STAMP = 128 << 20
SCALE = (128 ** -0.5) * 1.4426950408889634


def f2u(x):
    return struct.unpack("<I", struct.pack("<f", x))[0]


S_AX, S_CKV, S_WQA, S_WUK, S_WUV, S_WOA, S_BX, S_K, S_V, S_WQB, S_WOB, S_OUT, S_DBG, S_WS = range(4, 32, 2)
S_E, S_T = 32, 33
S_SEL = 34
S_LO, S_HI = 38, 39
S_A, S_B, S_C, S_D = 40, 42, 44, 46
S_X0, S_X1, S_X2 = 48, 49, 50
S_SC = 51
S_SPIN = 52
S_P = 53
S_BAD = 60
S_TMP = 62
S_STAMP = 64
S_EVEN = 96
S_SL = 100
V_L, V_N, V_J, V_T = 0, 1, 2, 3
SPIN_MAX = 1 << 18
PUBW = 7


class K(Gen):
    def __init__(self, opt):
        super().__init__()
        self.o = opt
        self.remap = {}

    def stamp(self, k):
        if self.o.get("stamps"):
            self.e(f"s_memrealtime {sr(S_STAMP + 2 * self.remap.get(k, k))}")

    def addr(self, dst, base, off_s=None, off_i=0):
        if off_s is not None:
            self.e(f"s_add_u32 s{dst}, s{base}, s{off_s}")
            self.e(f"s_addc_u32 s{dst+1}, s{base+1}, 0")
            base = dst
        if off_i or off_s is None:
            self.e(f"s_add_u32 s{dst}, s{base}, {off_i}")
            self.e(f"s_addc_u32 s{dst+1}, s{base+1}, 0")

    def adv(self, a, n):
        self.e(f"s_add_u32 s{a}, s{a}, {n}")
        self.e(f"s_addc_u32 s{a+1}, s{a+1}, 0")

    def sexpr(self, dst, terms, const=0):
        first = True
        for reg, shr, mask, shl in terms:
            t = dst if first else S_TMP + 1
            src = reg
            if shr:
                self.e(f"s_lshr_b32 s{t}, s{src}, {shr}"); src = t
            if mask is not None:
                self.e(f"s_and_b32 s{t}, s{src}, {mask}"); src = t
            if shl or src != t:
                self.e(f"s_lshl_b32 s{t}, s{src}, {shl}")
            if not first:
                self.e(f"s_add_u32 s{dst}, s{dst}, s{t}")
            first = False
        if const:
            self.e(f"s_add_u32 s{dst}, s{dst}, {const}")

    def ld4(self, dst, voff, sbase, off=0, fl="nt"):
        return self.vm(f"global_load_dwordx4 {vr(dst,4)}, v{voff}, {sr(sbase)} offset:{off} {fl}")

    def throttle(self, d):
        if d:
            self.e(f"s_waitcnt vmcnt({d-1})")

    def tag4(self, r):
        for k in range(4):
            self.e(f"v_perm_b32 v{r+k}, v{r+k}, v{V_T}, s{S_SEL+k}")

    def chkn(self, regs, acc, tmp):
        if self.o.get("nodep"):
            self.e(f"s_mov_b64 {sr(S_BAD)}, 0")
            return
        for i, r in enumerate(regs):
            self.e(f"v_perm_b32 v{tmp}, v{r+3}, v{r}, s{S_X0}")
            if len(regs) == 1:
                self.e(f"v_cmp_ne_u32 {sr(S_BAD)}, s{S_X1}, v{tmp}")
                return
            if i == 0:
                self.e(f"v_xor_b32 v{acc}, s{S_X1}, v{tmp}")
            else:
                self.e(f"v_xad_u32 v{acc}, v{tmp}, s{S_X1}, v{acc}")
        self.e(f"v_cmp_ne_u32 {sr(S_BAD)}, 0, v{acc}")

    def chk4(self, r, tmp, first):
        self.chkn([r], tmp, tmp)

    def chk_full(self, r, a, b):
        if self.o.get("nodep"):
            self.e(f"s_mov_b64 {sr(S_BAD)}, 0")
            return
        self.e(f"v_perm_b32 v{a}, v{r+1}, v{r}, s{S_X0}")
        self.e(f"v_perm_b32 v{b}, v{r+3}, v{r+2}, s{S_X0}")
        self.e(f"v_lshl_or_b32 v{a}, v{b}, 16, v{a}")
        self.e(f"v_cmp_ne_u32 {sr(S_BAD)}, v{a}, v{V_T}")

    def poll(self, issue, check, pre_issued=None, light=None):
        top, done = self.newlabel("L_poll"), self.newlabel("L_got")
        self.e(f"s_mov_b32 s{S_SPIN}, {SPIN_MAX}")
        if pre_issued is not None:
            self.vmwait(pre_issued)
            check()
            self.e(f"s_cmp_eq_u64 {sr(S_BAD)}, 0")
            self.e(f"s_cbranch_scc1 {done}")
        self.label(top)
        self.cond += 1
        self.e(f"s_sub_u32 s{S_SPIN}, s{S_SPIN}, 1")
        self.e(f"s_cbranch_scc1 {done}")
        if light:
            light[0]()
            self.e("s_waitcnt vmcnt(0)")
            light[1]()
            self.e(f"s_cmp_eq_u64 {sr(S_BAD)}, 0")
            self.e(f"s_cbranch_scc0 {top}")
        issue()
        self.e("s_waitcnt vmcnt(0)")
        check()
        self.cond -= 1
        self.e(f"s_cmp_eq_u64 {sr(S_BAD)}, 0")
        self.e(f"s_cbranch_scc0 {top}")
        self.label(done)

    def poll_pipe(self, nset, nld, issue, check, finish):
        top, done = self.newlabel("L_pp"), self.newlabel("L_ppok")
        oks = [self.newlabel("L_ppv") for _ in range(nset)]
        self.cond += 1
        self.e(f"s_mov_b32 s{S_SPIN}, {SPIN_MAX}")
        for i in range(nset - 1):
            issue(i)
        self.label(top)
        if self.o.get("dbg_sleep2"):
            self.e(f"s_sleep {self.o['dbg_sleep2']}")
        for i in range(nset):
            issue((i + nset - 1) % nset)
            self.e(f"s_waitcnt vmcnt({nld * (nset - 1)})")
            check(i)
            self.e(f"s_cmp_eq_u64 {sr(S_BAD)}, 0")
            self.e(f"s_cbranch_scc1 {oks[i]}")
        self.e(f"s_sub_u32 s{S_SPIN}, s{S_SPIN}, 1")
        self.e(f"s_cbranch_scc0 {top}")
        for i in reversed(range(nset)):
            self.label(oks[i])
            finish(i)
            if i:
                self.e(f"s_branch {done}")
        self.label(done)
        self.cond -= 1

    def when(self, cmp, fn):
        lab = self.newlabel("L_skip")
        self.e(cmp)
        self.e(f"s_cbranch_scc0 {lab}")
        self.cond += 1
        fn()
        self.cond -= 1
        self.label(lab)

    def arrive(self, cnt):
        self.e("v_mov_b32 v6, 1")
        self.e(f"v_mov_b32 v7, {cnt}")
        self.exec_set(1, 0)
        self.ds("ds_add_u32 v7, v6")
        self.exec_all()

    def await_cnt(self, cnt, n):
        top, done = self.newlabel("L_cnt"), self.newlabel("L_cntok")
        e = self.e
        e(f"v_mov_b32 v7, {cnt}")
        e(f"s_mov_b32 s{S_SPIN}, {SPIN_MAX*16}")
        self.label(top)
        if self.o.get("dbg_sleep3"):
            e(f"s_sleep {self.o['dbg_sleep3']}")
        e("ds_read_b32 v6, v7")
        e(f"s_sub_u32 s{S_SPIN}, s{S_SPIN}, 1")
        e(f"s_cbranch_scc1 {done}")
        e("s_waitcnt lgkmcnt(0)")
        e(f"v_readfirstlane_b32 s{S_TMP}, v6")
        e(f"s_cmp_lt_u32 s{S_TMP}, {n}")
        e(f"s_cbranch_scc1 {top}")
        self.label(done)

    def xrow(self, op, regs, tmps, which=(16, 32)):
        for w in which:
            for r, t in zip(regs, tmps):
                self.e(f"v_mov_b32 v{t}, v{r}")
            for r, t in zip(regs, tmps):
                self.e(f"v_permlane{w}_swap_b32 v{t}, v{r}")
            for r, t in zip(regs, tmps):
                self.e(f"{op} v{r}, v{r}, v{t}")

    def frag(self, dst, raw, i, nld):
        for p in range(nld // 2):
            self.e(f"v_perm_b32 v{dst+p}, v{raw + 4*(2*p+1) + (i >> 1)}, v{raw + 4*(2*p) + (i >> 1)}, s{S_HI if i & 1 else S_LO}")

    def swap_pairs(self, pairs):
        dpp = "quad_perm:[1,0,3,2] row_mask:0xf bank_mask:0xf"
        self.e(f"s_mov_b64 vcc, {sr(S_EVEN)}")
        for d, a, b in pairs:
            for k in range(4):
                self.e(f"v_cndmask_b32_dpp v{d+k}, v{b+k}, v{a+k}, vcc {dpp}")
                self.e(f"v_xor_b32 v{a+k}, v{a+k}, v{d+k}")
            for k in range(4):
                self.e(f"v_xor_b32_dpp v{b+k}, v{a+k}, v{b+k} {dpp}")

    def tree_add4(self, r, n):
        st = n // 2
        while st:
            for w in range(st):
                for k in range(4):
                    self.e(f"v_add_f32 v{r+4*w+k}, v{r+4*w+k}, v{r+4*(w+st)+k}")
            st //= 2

    def chain(self, op3, op2, dst, regs):
        regs = list(regs)
        if len(regs) >= 3 and op3:
            self.e(f"{op3} v{dst}, v{regs[0]}, v{regs[1]}, v{regs[2]}")
            rest = regs[3:]
            while len(rest) >= 2:
                self.e(f"{op3} v{dst}, v{dst}, v{rest[0]}, v{rest[1]}")
                rest = rest[2:]
        else:
            self.e(f"{op2} v{dst}, v{regs[0]}, v{regs[1]}")
            rest = regs[2:]
        for r in rest:
            self.e(f"{op2} v{dst}, v{dst}, v{r}")

    def exec_set(self, lo, hi):
        self.e(f"s_mov_b32 exec_lo, {lo:#x}")
        self.e(f"s_mov_b32 exec_hi, {hi:#x}")

    def exec_all(self):
        self.e("s_mov_b64 exec, -1")

    def prologue(self):
        e = self.e
        e("s_cmp_ge_u32 s2, 256")
        e("s_cbranch_scc1 L_end")
        self.stamp(0)
        if self.o.get("stamps"):
            e(f"s_memtime {sr(S_STAMP + 26)}")
        e("s_load_dwordx16 s[4:19], s[0:1], 0")
        e("s_load_dwordx8 s[20:27], s[0:1], 64")
        e("s_load_dwordx4 s[28:31], s[0:1], 96")
        e("v_lshrrev_b32 v4, 6, v0")
        e("v_and_b32 v0, 63, v0")
        e("v_readfirstlane_b32 s3, v4")
        e(f"v_and_b32 v{V_N}, 15, v0")
        e(f"v_lshrrev_b32 v{V_J}, 4, v0")

    def consts(self):
        e = self.e
        if self.o.get("wsoff"):
            self.adv(S_WS, self.o["wsoff"] << 20)
        e(f"s_load_dword s{S_E}, {sr(S_WS)}, 0")
        for k in range(4):
            e(f"s_mov_b32 s{S_SEL+k}, {0x07060500 + k:#x}")
        e(f"s_mov_b32 s{S_LO}, 0x05040100")
        e(f"s_mov_b32 s{S_HI}, 0x07060302")
        e(f"s_mov_b32 s{S_X0}, 0x0c0c0400")
        e(f"s_mov_b32 s{S_SC}, {f2u(SCALE):#x}")
        e(f"s_mov_b32 s{S_EVEN}, 0x55555555")
        e(f"s_mov_b32 s{S_EVEN+1}, 0x55555555")

    def settag(self):
        self.e(f"s_add_u32 s{S_T}, s{S_E}, 0x01010101")
        self.e(f"v_mov_b32 v{V_T}, s{S_T}")
        self.e(f"s_lshr_b32 s{S_X1}, s{S_T}, 16")
        self.e(f"s_and_b32 s{S_X1}, s{S_X1}, 0xff00")
        self.e(f"s_and_b32 s{S_X2}, s{S_T}, 0xff")
        self.e(f"s_or_b32 s{S_X1}, s{S_X1}, s{S_X2}")

    def p1_issue(self, sSl, sW, sX, xr, wr, first=True):
        e = self.e
        if first:
            e(f"v_lshlrev_b32 v4, 15, v{V_J}")
            e(f"v_lshl_add_u32 v4, v{V_N}, 4, v4")
            e(f"v_bfe_u32 v5, v{V_N}, 2, 1")
            e("v_lshlrev_b32 v5, 10, v5")
            e(f"v_lshl_add_u32 v5, v{V_J}, 3, v5")
        self.sexpr(S_TMP, [(sSl, 0, 3, 7), (3, 0, None, 4)])
        self.sexpr(S_A, [(S_TMP, 0, None, 13), (sSl, 2, 31, 8)])
        e(f"s_lshl_b32 s{S_TMP}, s{S_TMP}, 1")
        if first:
            e("s_waitcnt lgkmcnt(0)")
        sW(); sX()
        self.vm(f"global_load_dwordx2 {vr(xr, 2)}, v5, {sr(S_B)}")
        for t in range(4):
            tok = self.ld4(wr + 4 * t, 4, S_A)
            if t < 3:
                self.adv(S_A, 8192)
        if first:
            e("s_barrier")
        return tok

    def p1_plain(self, sSl, W, X, xr, wr, first=True):
        def sW():
            self.e(f"s_add_u32 s{S_A}, s{W}, s{S_A}")
            self.e(f"s_addc_u32 s{S_A+1}, s{W+1}, 0")
        return self.p1_issue(sSl, sW, lambda: self.addr(S_B, X, S_TMP), xr, wr, first)

    def p1_compute(self, sSl, tok, xr, wr, d0, X, lds=0, first=True):
        e = self.e
        e(f"v_lshlrev_b32 v4, 5, v{V_N}")
        e(f"v_lshl_add_u32 v4, v{V_J}, 9, v4")
        self.sexpr(S_TMP, [(3, 0, None, 10)], lds)
        e(f"v_add_u32 v4, s{S_TMP}, v4")
        self.vmwait(tok)
        for i in range(8):
            t = X + 2 * (i & 3)
            self.frag(t, wr, i, 4)
            e(f"v_mfma_f32_16x16x16_bf16 {vr(d0+4*i,4)}, {vr(xr,2)}, {vr(t,2)}, 0")
        self.exec_set(0xffffffff, 0)
        for i in range(0, 8, 2):
            self.ds(f"ds_write2_b32 v4, v{d0+4*i}, v{d0+4*i+4} offset0:{i} offset1:{i+1}")
        self.exec_all()
        e("s_waitcnt lgkmcnt(0)")
        if first:
            self.settag()
        e("s_barrier")

        def pub():
            e("v_lshlrev_b32 v4, 4, v0")
            for w in range(8):
                self.ds(f"ds_read_b128 {vr(d0+4*w,4)}, v4 offset:{lds+w*1024}")
            e(f"s_lshl_b32 s{S_TMP}, s{sSl}, 10")
            self.addr(S_B, S_WS, S_TMP, WS_QP)
            e("s_waitcnt lgkmcnt(0)")
            self.tree_add4(d0, 8)
            self.tag4(d0)
            self.vm(f"global_store_dwordx4 v4, {vr(d0,4)}, {sr(S_B)} sc1")

        self.when(f"s_cmp_eq_u32 s3, {PUBW if first else 0}", pub)
        if first:
            self.stamp(1)

    def p1_double(self, off1, off2, pre, d0, lds2):
        e = self.e
        e(f"s_add_u32 s{S_SL}, s2, {off1}")
        e(f"s_add_u32 s{S_SL+1}, s2, {off2}")
        t1 = self.p1_plain(S_SL, S_WQA, S_AX, 8, 16)
        t2 = self.p1_plain(S_SL + 1, S_WQB, S_BX, 10, 32, first=False)
        self.consts()
        pre()
        self.p1_compute(S_SL, t1, 8, 16, d0, 48)
        self.p1_compute(S_SL + 1, t2, 10, 32, d0, 48, lds2, first=False)


class Chunk:
    QS, ST, OS = 8192, 9216, 10240

    def __init__(self, k, nb, extra, KR, VR, QF, SR, ACC, X, VA, CNT, sK, sV, sQ, QG=8):
        self.k, self.nb, self.extra, self.QG = k, nb, extra, QG
        self.KR, self.VR, self.QF, self.SR, self.ACC, self.X = KR, VR, QF, SR, ACC, X
        self.vK, self.vV, self.vQ, self.vF = VA, VA + 1, VA + 2, VA + 3
        self.CNT, self.sK, self.sV, self.sQ = CNT, sK, sV, sQ
        self.sPair, self.sChunk, self.sTile, self.sNx = S_P, S_P + 1, S_P + 2, [S_P + 3, S_P + 5]
        self.ktok, self.vtok = {}, {}

    def ifx(self, i, fn):
        self.k.when(f"s_cmp_lt_u32 s3, s{self.sNx[i]}", fn)

    def setup(self):
        k = self.k; e = k.e
        k.sexpr(S_TMP, [(self.sPair, 0, None, 21), (self.sTile, 0, None, 12)])
        k.addr(self.sK, S_K, S_TMP)
        k.addr(self.sV, S_V, S_TMP)
        a, b = self.vQ, self.vF
        e(f"v_bfe_u32 v{a}, v0, 1, 1")
        e(f"v_lshlrev_b32 v{a}, 11, v{a}")
        e(f"v_bfe_u32 v{b}, v0, 2, 2")
        e(f"v_lshl_add_u32 v{a}, v{b}, 8, v{a}")
        e(f"v_lshl_add_u32 v{a}, v{V_J}, 5, v{a}")
        e(f"v_and_b32 v{b}, 1, v0")
        e(f"v_lshl_add_u32 v{self.vK}, v{b}, 4, v{a}")
        e(f"v_lshlrev_b32 v{self.vV}, 4, v0")
        e(f"v_lshlrev_b32 v{self.vQ}, 10, v{V_J}")
        e(f"v_lshl_add_u32 v{self.vQ}, v{V_N}, 4, v{self.vQ}")

    def qaddr(self):
        k = self.k
        k.sexpr(S_TMP, [(self.sPair, 0, 7, 14), (3, 1, None, 12), (self.sPair, 3, None, 9), (3, 0, 1, 8)])
        k.addr(self.sQ, S_WS, S_TMP, WS_QP + 128 * 1024)

    def kload(self, t, d=0, lo=0, hi=4):
        for ks in range(lo, hi):
            self.k.throttle(d)
            self.ktok[t] = self.k.ld4(self.KR[t] + 4 * ks, self.vK, self.sK, (ks & 1) * 1024 + (ks >> 1) * 128)
        if hi == 4:
            self.k.adv(self.sK, 4096)

    def vload(self, t, d=0, lo=0, hi=4):
        for i in range(lo, hi):
            self.k.throttle(d)
            self.vtok[t] = self.k.ld4(self.VR[t] + 4 * i, self.vV, self.sV, i * 1024)
        if hi == 4:
            self.k.adv(self.sV, 4096)

    def qissue(self):
        return self.k.ld4(self.QG, self.vQ, self.sQ, 0, "sc1")

    def qpiece(self, tok=None):
        k = self.k; e = k.e
        g = self.QG
        k.poll(self.qissue, lambda: k.chk4(g, 4, True), pre_issued=tok)
        k.xrow("v_add_f32", [g, g + 1, g + 2, g + 3], [12, 13, 14, 15])
        e(f"v_cvt_pk_bf16_f32 v{g}, v{g}, v{g+1}")
        e(f"v_cvt_pk_bf16_f32 v{g+1}, v{g+2}, v{g+3}")
        e(f"s_lshl_b32 s{S_TMP}, s3, 7")
        e(f"v_lshlrev_b32 v4, 3, v{V_N}")
        e(f"v_add_u32 v4, s{S_TMP}, v4")
        k.exec_set(0xffff, 0)
        k.ds(f"ds_write_b64 v4, {vr(g,2)} offset:{self.QS}")
        k.arrive(self.CNT)

    def qread(self):
        k = self.k; e = k.e
        k.await_cnt(self.CNT, 8)
        e(f"v_lshrrev_b32 v4, 2, v{V_N}")
        e("v_lshlrev_b32 v4, 8, v4")
        e(f"v_lshl_add_u32 v4, v{V_J}, 5, v4")
        for ks in range(4):
            k.ds(f"ds_read_b128 {vr(self.QF+4*ks,4)}, v4 offset:{self.QS+(ks>>1)*128+(ks&1)*16}")
        for r in range(4 * self.extra):
            e(f"v_mov_b32 v{self.SR+4*self.nb+r}, 0xff800000")

    def qk(self, t):
        k = self.k
        k.vmwait(self.ktok[t])
        k0, x = self.KR[t], self.X + 8 * (t & 1)
        k.swap_pairs([(x, k0, k0 + 4), (x + 4, k0 + 8, k0 + 12)])
        d = vr(self.SR + 4 * t, 4)
        for ks, f in enumerate((x, k0 + 4, x + 4, k0 + 12)):
            k.e(f"v_mfma_f32_16x16x32_bf16 {d}, {vr(f,4)}, {vr(self.QF+4*ks,4)}, {'0' if ks == 0 else d}")

    def softmax(self):
        k = self.k; e = k.e
        SR = self.SR
        n = 4 * (self.nb + self.extra)
        k.chain("v_max3_f32", "v_max_f32", 4, range(SR, SR + n))
        k.xrow("v_max_f32", [4], [5])
        e(f"v_mul_f32 v4, s{S_SC}, v4")
        for i in range(n):
            e(f"v_fma_f32 v{SR+i}, v{SR+i}, s{S_SC}, -v4")
        for i in range(n):
            e(f"v_exp_f32 v{SR+i}, v{SR+i}")
        k.chain(None, "v_add_f32", 5, range(SR, SR + n))
        for i in range(n // 2):
            e(f"v_cvt_pk_bf16_f32 v{SR+i}, v{SR+2*i}, v{SR+2*i+1}")
        k.xrow("v_add_f32", [5], [6])
        e(f"s_lshl_b32 s{S_TMP}, s3, 5")
        e(f"v_lshlrev_b32 v6, 1, v{V_N}")
        e(f"v_add_u32 v6, s{S_TMP}, v6")
        k.exec_set(0x1111, 0)
        k.ds(f"ds_write_b64 v6, v[4:5] offset:{self.ST}")
        k.arrive(self.CNT + 4)

    def pv(self, t, n, first=False):
        k = self.k
        k.vmwait(self.vtok[t + n - 1])
        for i in range(8):
            x = self.X + 4 * (i & 3)
            k.frag(x, self.VR[t], i, 4 * n)
            d = vr(self.ACC + 4 * i, 4)
            op = "v_mfma_f32_16x16x32_bf16" if n == 2 else "v_mfma_f32_16x16x16_bf16"
            k.e(f"{op} {d}, {vr(self.SR+2*t,2*n)}, {vr(x,2*n)}, {'0' if first else d}")

    def factor(self, T0):
        k = self.k; e = k.e
        k.await_cnt(self.CNT + 4, 8)
        e(f"v_lshlrev_b32 v6, 3, v{V_J}")
        for w in range(8):
            k.ds(f"ds_read_b64 {vr(T0+2*w,2)}, v6 offset:{self.ST+w*32}")
        e(f"s_lshl_b32 s{S_TMP}, s3, 5")
        e(f"v_add_u32 v6, s{S_TMP}, v6")
        k.ds(f"ds_read_b64 v[4:5], v6 offset:{self.ST}")
        k.lgwait()
        k.chain("v_max3_f32", "v_max_f32", 7, range(T0, T0 + 16, 2))
        for w in range(8):
            e(f"v_sub_f32 v{T0+2*w}, v{T0+2*w}, v7")
        e("v_sub_f32 v4, v4, v7")
        for w in range(8):
            e(f"v_exp_f32 v{T0+2*w}, v{T0+2*w}")
        e("v_exp_f32 v4, v4")
        e(f"v_mul_f32 v5, v{T0}, v{T0+1}")
        for w in range(1, 8):
            e(f"v_fmac_f32 v5, v{T0+2*w}, v{T0+2*w+1}")
        e("v_rcp_f32 v6, v5")
        e("v_log_f32 v5, v5")
        e(f"v_mul_f32 v{self.vF}, v4, v6")

        def lse():
            for i in range(4):
                e(f"v_add_f32 v{8+i}, v5, v7")
            k.tag4(8)
            k.sexpr(S_TMP, [(self.sPair, 0, 7, 11), (self.sPair, 3, None, 8), (self.sChunk, 0, None, 4)])
            k.addr(self.sQ, S_WS, S_TMP, WS_LSEB)
            e(f"v_lshlrev_b32 v4, 9, v{V_J}")
            k.exec_set(0x00010001, 0x00010001)
            k.vm(f"global_store_dwordx4 v4, v[8:11], {sr(self.sQ)} sc1")
            k.exec_all()

        k.when(f"s_cmp_eq_u32 s3, {PUBW}", lse)
        k.sexpr(S_TMP, [(self.sPair, 0, 7, 3), (3, 0, 1, 2), (self.sPair, 3, None, 0)])
        e(f"s_mul_i32 s{S_TMP}, s{S_TMP}, {NCB}")
        e(f"s_add_u32 s{S_TMP}, s{S_TMP}, s{self.sChunk}")
        e(f"s_lshl_b32 s{S_TMP}, s{S_TMP}, 9")
        k.addr(self.sQ, S_WS, S_TMP, WS_OP)
        e("v_lshrrev_b32 v4, 5, v0")
        e(f"v_mul_u32_u24 v4, {2*NCB*512}, v4")
        e("v_and_b32 v5, 31, v0")
        e(f"v_lshl_add_u32 v{self.vQ}, v5, 4, v4")
        e(f"s_lshl_b32 s{S_TMP}, s3, 11")
        e(f"v_lshlrev_b32 v4, 9, v{V_J}")
        e(f"v_lshl_add_u32 v4, v{V_N}, 5, v4")
        e(f"v_add_u32 v{self.vK}, s{S_TMP}, v4")
        k.sexpr(S_TMP, [(3, 0, 1, 10)])
        e(f"v_add_u32 v{T0}, s{S_TMP}, v{self.vV}")
        self.vR = T0

    def finish(self, T0, st):
        k = self.k; e = k.e
        k.stamp(st)
        T0 += 4
        for i in range(8):
            e(f"v_mul_f32 v{T0+i}, v{self.vF}, v{self.ACC+4*i}")
        k.ds(f"ds_write_b128 v{self.vK}, {vr(T0,4)} offset:{self.OS}")
        k.ds(f"ds_write_b128 v{self.vK}, {vr(T0+4,4)} offset:{self.OS+16}")
        k.barrier()
        e("s_cmp_lt_u32 s3, 6")
        e("s_cbranch_scc1 L_fin")
        for w in range(8):
            k.ds(f"ds_read_b128 {vr(T0+4*w,4)}, v{self.vR} offset:{self.OS+w*2048}")
        k.lgwait()
        k.tree_add4(T0, 8)
        k.tag4(T0)
        k.vm(f"global_store_dwordx4 v{self.vQ}, {vr(T0,4)}, {sr(self.sQ)} sc1")
        k.stamp(st + 1)
        e("s_branch L_fin")


def role_B(k):
    e, o = k.e, k.o
    D1, D, DV, SW = o.get("depth_b1", 2), o.get("depth_b", 6), o.get("depth_v", 8), o.get("b_sw", 2)
    KR = [160 + 16 * t for t in range(6)] + [144]
    VR = [16, 32, KR[0], KR[1], KR[2], KR[3], KR[4]]
    CNT, QS2, UK = 9728, 9856, 144
    c = Chunk(k, 5, 2, KR, VR, QF=128, SR=100, ACC=64, X=48, VA=96, CNT=CNT, sK=S_C, sV=S_D, sQ=S_A)
    sI = S_P + 4
    dep = lambda t: D1 if t < SW else D
    npre, bpre = o.get("p2_at", 2), o.get("b_pre", 1)

    def params():
        e("s_waitcnt lgkmcnt(0)")
        e(f"s_bfe_u32 s{c.sNx[0]}, s{c.sTile}, 0x40010")
        e(f"s_bfe_u32 s{c.sNx[1]}, s{c.sTile}, 0x40014")
        e(f"s_bfe_u32 s{c.sPair}, s{c.sTile}, 0x40018")
        e(f"s_lshr_b32 s{c.sChunk}, s{c.sTile}, 28")
        e(f"s_and_b32 s{c.sTile}, s{c.sTile}, 0xffff")
        e(f"s_mul_i32 s{S_TMP}, s3, 5")
        e(f"s_add_u32 s{c.sTile}, s{c.sTile}, s{S_TMP}")
        for i in range(2):
            e(f"s_min_u32 s{S_TMP}, s3, s{c.sNx[i]}")
            e(f"s_add_u32 s{c.sTile}, s{c.sTile}, s{S_TMP}")
        c.setup()
        for r in range(124, 128):
            e(f"v_mov_b32 v{r}, 0")
        e(f"v_mov_b32 v123, {CNT}")
        k.ds("ds_write_b128 v123, v[124:127]")

    k.label("L_roleB")
    e(f"s_sub_u32 s{sI}, s2, {NT+NA}")
    e(f"s_getpc_b64 {sr(S_C)}")
    k.label("L_pc")
    e(f"s_lshl_b32 s{S_TMP}, s{sI}, 2")
    e(f"s_add_u32 s{S_C}, s{S_C}, L_tiles-L_pc")
    e(f"s_addc_u32 s{S_C+1}, s{S_C+1}, 0")
    e(f"s_load_dword s{c.sTile}, {sr(S_C)}, s{S_TMP}")
    e("s_cmp_ge_u32 s2, 224")
    e("s_cbranch_scc1 L_roleB2")
    base = k.vm_n
    e(f"s_add_u32 s{S_SL}, s{sI}, 64")

    def selW():
        e(f"s_cmp_lt_u32 s{sI}, 64")
        e(f"s_cselect_b32 s{S_C}, s{S_WQA}, s{S_WQB}")
        e(f"s_cselect_b32 s{S_C+1}, s{S_WQA+1}, s{S_WQB+1}")
        e(f"s_cselect_b32 s{S_B}, s{S_AX}, s{S_BX}")
        e(f"s_cselect_b32 s{S_B+1}, s{S_AX+1}, s{S_BX+1}")
        e(f"s_add_u32 s{S_A}, s{S_C}, s{S_A}")
        e(f"s_addc_u32 s{S_A+1}, s{S_C+1}, 0")

    tok = k.p1_issue(S_SL, selW, lambda: k.addr(S_B, S_B, S_TMP), 8, 16)
    k.sexpr(S_TMP, [(sI, 0, 3, 20), (3, 0, None, 17), (sI, 2, None, 8)])
    k.addr(S_C, S_WUK, S_TMP)
    e("v_bfe_u32 v33, v0, 1, 3")
    e("v_lshlrev_b32 v33, 14, v33")
    e(f"v_lshl_add_u32 v33, v{V_J}, 5, v33")
    e("v_and_b32 v32, 1, v0")
    e("v_lshl_add_u32 v33, v32, 4, v33")
    e("v_add_u32 v32, 0x2000, v33")
    for ks in range(4):
        uktok = k.ld4(UK + 4 * ks, 33 - (ks & 1), S_C, (ks >> 1) * 128)
    k.consts()
    params()
    c.kload(0, 0, 0, bpre)
    k.p1_compute(S_SL, tok, 8, 16, c.ACC, 48)
    c.kload(0, 0, bpre, npre)
    k.sexpr(S_TMP, [(sI, 2, None, 12), (3, 0, 3, 8)])
    k.addr(S_B, S_WS, S_TMP, WS_QP)

    def p2_piece():
        k.poll(lambda: k.ld4(8, c.vQ, S_B, 0, "sc1"), lambda: k.chk4(8, 4, True))
        k.xrow("v_add_f32", [8, 9, 10, 11], [12, 13, 14, 15])
        e("v_cvt_pk_bf16_f32 v8, v8, v9")
        e("v_cvt_pk_bf16_f32 v9, v10, v11")
        k.sexpr(S_TMP, [(3, 0, 3, 7)])
        e(f"v_lshlrev_b32 v4, 3, v{V_N}")
        e(f"v_add_u32 v4, s{S_TMP}, v4")
        k.exec_set(0xffff, 0)
        k.ds(f"ds_write_b64 v4, v[8:9] offset:{QS2}")
        k.arrive(CNT + 8)

    k.vmwait(uktok)
    k.swap_pairs([(48, UK, UK + 4), (52, UK + 8, UK + 12)])
    k.when("s_cmp_ge_u32 s3, 4", p2_piece)
    k.stamp(7)
    k.sexpr(S_TMP, [(sI, 2, None, 11), (sI, 0, 3, 9), (3, 0, None, 6)])
    k.addr(S_B, S_WS, S_TMP, WS_QA)
    e(f"v_lshlrev_b32 v5, 16, v{V_N}")
    e(f"v_lshl_add_u32 v5, v{V_J}, 4, v5")
    e(f"v_and_b32 v4, 1, v{V_N}")
    e("v_lshlrev_b32 v4, 8, v4")
    e(f"v_lshl_add_u32 v4, v{V_J}, 5, v4")
    k.await_cnt(CNT + 8, 4)
    for ks in range(4):
        k.ds(f"ds_read_b128 {vr(c.QF+4*ks,4)}, v4 offset:{QS2+(ks>>1)*128+(ks&1)*16}")
    k.lgwait()
    for ks, f in enumerate((48, UK + 4, 52, UK + 12)):
        e(f"v_mfma_f32_16x16x32_bf16 v[8:11], {vr(f,4)}, {vr(c.QF+4*ks,4)}, {'0' if ks == 0 else 'v[8:11]'}")
    k.tag4(8)
    k.exec_set(0x00030003, 0x00030003)
    k.cond += 1
    k.vm(f"global_store_dwordx4 v5, v[8:11], {sr(S_B)} sc1")
    k.cond -= 1
    k.exec_all()
    k.stamp(8)
    if npre < 4:
        c.kload(0, dep(0), npre, 4)
    e("s_branch L_roleB3")
    end1 = k.vm_n - c.ktok[0]
    k.label("L_roleB2")
    k.vm_n = base
    k.p1_double(-192, 0, lambda: (params(), c.kload(0, 0, 0, bpre)), c.ACC, 32768)
    c.kload(0, dep(0), bpre, 4)
    assert end1 == 0 and k.vm_n == c.ktok[0]
    k.label("L_roleB3")
    c.qaddr()
    qat = o.get("b_qat", 2)
    for t in range(1, 5):
        if t == qat:
            qtok = c.qissue()
        c.kload(t, dep(t))
        if t == qat:
            k.stamp(2)
            c.qpiece(qtok)
            k.stamp(3)
    c.ifx(0, lambda: c.kload(5, D))
    c.ifx(1, lambda: c.kload(6, D))
    c.qread()
    c.vload(0, DV)
    k.lgwait()
    c.qk(0); c.qk(1)
    c.vload(1, DV)
    c.qk(2); c.qk(3)
    c.vload(2, DV)
    c.qk(4)
    c.ifx(0, lambda: c.qk(5))
    c.ifx(1, lambda: c.qk(6))
    c.vload(3, DV)
    k.stamp(4)
    c.softmax()
    c.vload(4, DV)
    c.pv(0, 2, first=True)
    c.ifx(0, lambda: c.vload(5, DV))
    c.factor(16)
    c.ifx(1, lambda: c.vload(6, DV))
    c.pv(2, 2)
    c.pv(4, 1)
    c.ifx(0, lambda: c.pv(5, 1))
    c.ifx(1, lambda: c.pv(6, 1))
    c.finish(16, 5)


def role_A(k):
    e, o = k.e, k.o
    C0, G, QH, QT, SR, ACC = 128, 64, 64, 96, 48, 128
    Q = 131072
    HOLE, ST1, ST2, CNT = 768, 0, 256, 9728
    VL, VM, VMA = 56, 58, 60
    sB, sCh, sA = S_P + 4, S_P + 5, S_P + 6
    c = Chunk(k, 1, 0, KR=[160], VR=[176], QF=64, SR=48, ACC=96, X=80, VA=28, CNT=CNT, sK=S_C, sV=S_D, sQ=S_B, QG=22)
    k.label("L_roleA")
    e(f"s_sub_u32 s{sA}, s2, {NT}")
    k.sexpr(S_TMP, [(sA, 0, None, 18), (3, 0, None, 14)])
    e("v_bfe_u32 v32, v0, 1, 3")
    e("v_lshlrev_b32 v32, 11, v32")
    e(f"v_lshl_add_u32 v32, v{V_J}, 5, v32")
    e("v_and_b32 v33, 1, v0")
    e("v_lshl_add_u32 v32, v33, 4, v32")
    e("s_waitcnt lgkmcnt(0)")
    SCK = 96 + 2
    k.addr(SCK, S_CKV, S_TMP)
    k.addr(SCK + 2, SCK, None, 131072)
    DA = o.get("depth_a", 5)
    coff = lambda ks: (ks & 1) * 1024 + (ks >> 1) * 128
    CF = []
    for p in range(16):
        CF += [{0: 124, 8: 120}.get(p, C0 + 8 * p - 8), C0 + 8 * p + 4]
    ctok = {}
    st = {"n": 0}

    sVal, sIss = 92, 93
    dyn = {"lo": 99}

    def cload(n):
        ctok[n] = k.ld4(C0 + 4 * n, 32, SCK if n < 16 else SCK + 2, coff(n & 15))

    def pump(upto, d=0):
        while st["n"] < min(upto, 40):
            n = st["n"]
            if n < 32:
                if n >= dyn["lo"]:
                    lab = k.newlabel("L_have")
                    e(f"s_cmp_gt_u32 s{sIss}, {n}")
                    e(f"s_cbranch_scc1 {lab}")
                    cload(n)
                    k.label(lab)
                else:
                    cload(n)
            elif n < 36:
                c.kload(0, d, n - 32, n - 31)
            else:
                c.vload(0, d, n - 36, n - 35)
            st["n"] += 1

    pump(DA)
    k.consts()
    e(f"s_lshr_b32 s{sB}, s{sA}, 5")
    e(f"s_and_b32 s{sCh}, s{sA}, 31")
    e(f"v_bfe_u32 v4, v{V_N}, 1, 2")
    e(f"v_and_b32 v5, 3, v{V_N}")
    e("v_lshl_add_u32 v4, v5, 2, v4")
    e(f"v_lshlrev_b32 v5, 1, v{V_J}")
    e("v_xor_b32 v4, v4, v5")
    e(f"s_lshl_b32 s{S_TMP}, s3, 14")
    e(f"v_lshlrev_b32 v5, 10, v{V_N}")
    e(f"v_add_u32 v5, s{S_TMP}, v5")
    e("v_lshl_add_u32 v40, v4, 4, v5")
    kx = lambda q: (q >> 1) * 128 + (q & 1) * 16
    for q in range(1, 4):
        e(f"v_xor_b32 v{40+q}, {kx(q)}, v40")
    k.sexpr(S_TMP, [(sB, 0, None, 16), (3, 0, None, 13)])
    k.addr(S_A, S_WS, S_TMP, WS_QA)
    k.addr(S_B, S_A, None, 4096)
    e("v_lshlrev_b32 v33, 4, v0")
    e("v_lshlrev_b32 v34, 7, v0")
    e(f"v_lshlrev_b32 v4, 1, v{V_J}")
    e(f"v_xor_b32 v4, v4, v{V_N}")
    e(f"v_lshlrev_b32 v5, 10, v{V_N}")
    e(f"v_add_u32 v5, {Q}, v5")
    e("v_lshl_add_u32 v44, v4, 4, v5")
    for q in range(1, 4):
        e(f"v_xor_b32 v{44+q}, {kx(q)}, v44")
    e(f"v_and_b32 v4, 7, v0")
    e("v_lshl_add_u32 v35, v4, 5, v5")
    e(f"s_lshl_b32 s{S_TMP}, s3, 2")
    e(f"v_add_u32 v36, s{S_TMP}, v35")
    e("v_and_b32 v6, 31, v0")
    e("v_lshlrev_b32 v6, 10, v6")
    e(f"v_add_u32 v6, {Q}, v6")
    e("v_lshl_add_u32 v37, v4, 5, v6")
    e(f"v_lshrrev_b32 v7, 1, v{V_J}")
    e(f"s_lshl_b32 s{S_TMP}, s3, 1")
    e(f"v_add_u32 v7, s{S_TMP}, v7")
    e(f"v_xor_b32 v7, v7, v{V_N}")
    e("v_lshl_add_u32 v7, v7, 4, v5")
    e(f"v_and_b32 v8, 1, v{V_J}")
    e("v_lshl_add_u32 v38, v8, 3, v7")
    e("v_lshrrev_b32 v4, 5, v0")
    e(f"v_xor_b32 v7, v4, v{V_N}")
    e("v_lshl_add_u32 v20, v7, 4, v6")
    e("v_bfe_u32 v5, v0, 2, 2")
    e("v_lshl_add_u32 v6, v4, 3, v5")
    e("v_lshlrev_b32 v6, 10, v6")
    e("v_and_b32 v7, 1, v0")
    e("v_lshl_add_u32 v6, v7, 3, v6")
    k.sexpr(S_TMP, [(3, 1, None, 8)])
    e(f"v_add_u32 v6, s{S_TMP}, v6")
    e("v_bfe_u32 v7, v0, 4, 1")
    e("v_bfe_u32 v8, v0, 1, 1")
    e("v_lshl_add_u32 v7, v7, 1, v8")
    k.sexpr(S_TMP, [(3, 0, 1, 3)])
    e(f"v_add_u32 v7, s{S_TMP}, v7")
    e("v_lshrrev_b32 v8, 1, v5")
    e("v_lshlrev_b32 v5, 2, v5")
    e("v_xor_b32 v7, v7, v5")
    e("v_xor_b32 v7, v7, v8")
    for mt in range(2):
        for ee in range(2):
            r = 16 + 2 * mt + ee
            e(f"v_xor_b32 v{r}, {4*mt + 2*ee}, v7")
            e(f"v_lshl_add_u32 v{r}, v{r}, 4, v6")
            if ee:
                e(f"v_add_u32 v{r}, 4096, v{r}")
    e(f"s_lshr_b32 s{c.sPair}, s{sA}, 2")
    k.sexpr(c.sChunk, [(sA, 0, 3, 0)], 10)
    k.sexpr(c.sTile, [(sA, 0, 3, 3), (3, 0, None, 0)], 480)
    c.setup()
    e("s_waitcnt lgkmcnt(0)")
    k.settag()

    def cwrite(ks):
        k.ds(f"ds_write_b128 v{40+(ks&3)}, {vr(CF[ks],4)} offset:{((ks&15)>>2)*256}")

    def qload(q):
        return k.ld4(G + 4 * q, 33, S_A if q < 4 else S_B, (q & 3) * 1024, "sc1")

    gat = o.get("a_gat", 7)
    for p in range(8):
        pump(2 * p + 2 + DA)
        if p == gat:
            for q in range(8 if o.get("nodep", 0) < 2 else 1):
                gtok = qload(q)
        k.vmwait(ctok[2 * p + 1])
        k.swap_pairs([(CF[2 * p], C0 + 8 * p, C0 + 8 * p + 4)])
        cwrite(2 * p); cwrite(2 * p + 1)
    k.stamp(2)
    n0, step = st["n"], o.get("a_step", 3)
    top, chk, done = k.newlabel("L_qa"), k.newlabel("L_qachk"), k.newlabel("L_qaok")
    e(f"s_mov_b32 s{sVal}, 0")
    e(f"s_mov_b32 s{sIss}, {n0}")
    e(f"s_mov_b32 s{S_SPIN}, {SPIN_MAX}")
    k.vmwait(gtok)
    e(f"s_branch {chk}")
    k.label(top)
    k.cond += 1
    e(f"s_sub_u32 s{S_SPIN}, s{S_SPIN}, 1")
    e(f"s_cbranch_scc1 {done}")
    for q in range(8):
        lab = k.newlabel("L_qsk")
        e(f"s_bitcmp1_b32 s{sVal}, {q}")
        e(f"s_cbranch_scc1 {lab}")
        qload(q)
        k.label(lab)
    full, w0 = k.newlabel("L_qfull"), k.newlabel("L_qw0")
    e(f"s_cmp_gt_u32 s{sIss}, {32 - step}")
    e(f"s_cbranch_scc1 {w0}")
    for g in range(n0, 32 - step + 1, step):
        lab = k.newlabel("L_qp")
        e(f"s_cmp_lg_u32 s{sIss}, {g}")
        e(f"s_cbranch_scc1 {lab}")
        for n in range(g, g + step):
            cload(n)
        k.label(lab)
    e(f"s_add_u32 s{sIss}, s{sIss}, {step}")
    e(f"s_waitcnt vmcnt({step})")
    e(f"s_branch {chk}")
    k.label(w0)
    e("s_waitcnt vmcnt(0)")
    k.label(chk)
    for q in range(8):
        k.chk4(G + 4 * q, 4 + (q & 1), True)
        e(f"s_cmp_eq_u64 {sr(S_BAD)}, 0")
        e(f"s_cselect_b32 s{S_TMP}, {1 << q}, 0")
        e(f"s_or_b32 s{sVal}, s{sVal}, s{S_TMP}")
    e(f"s_cmp_lg_u32 s{sVal}, 0xff")
    e(f"s_cbranch_scc1 {top}")
    k.cond -= 1
    k.label(done)
    dyn["lo"] = n0
    k.stamp(3)
    e("v_lshrrev_b32 v4, 1, v0")
    k.sexpr(S_TMP, [(3, 0, 3, 2)])
    e(f"v_xor_b32 v4, s{S_TMP}, v4")
    e("v_and_b32 v5, 1, v0")
    e("v_lshlrev_b32 v5, 3, v5")
    e("v_lshl_add_u32 v4, v4, 4, v5")
    k.sexpr(S_TMP, [(3, 0, None, 12)], Q)
    e(f"v_add_u32 v4, s{S_TMP}, v4")
    for q in range(8):
        hh, half = q >> 1, q & 1
        if half == 0:
            e(f"v_xor_b32 v5, {hh*16}, v4")
        e(f"v_cvt_pk_bf16_f32 v{G+4*q}, v{G+4*q}, v{G+4*q+1}")
        e(f"v_cvt_pk_bf16_f32 v{G+4*q+1}, v{G+4*q+2}, v{G+4*q+3}")
        k.ds(f"ds_write_b64 v5, {vr(G+4*q,2)} offset:{hh*1024+half*512}")
    k.barrier()
    tk = {}
    qreg = lambda ks, hh: (QH + 8 * (ks - 12) if ks >= 12 else QT + 8 * (ks % 3)) + 4 * hh

    def qread(ks):
        for hh in range(2):
            tk[ks] = k.ds(f"ds_read_b128 {vr(qreg(ks,hh),4)}, v{44+(ks&3)} offset:{hh*16384+(ks>>2)*256}")

    def qkmfma(rnd, ks):
        for hh in range(2):
            d = vr(SR + 4 * hh, 4)
            e(f"v_mfma_f32_16x16x32_bf16 {d}, {vr(CF[16*rnd+ks],4)}, {vr(qreg(ks,hh),4)}, {'0' if ks == 0 else d}")

    qread(0); qread(1)
    for ks in range(16):
        if ks + 2 < 16:
            qread(ks + 2)
        k.lgwait(tk[ks])
        qkmfma(0, ks)
        if ks & 3 == 2:
            pump(min(st["n"] + 1, 32))
    k.stamp(4)

    def softmax(rnd):
        so = HOLE if rnd == 0 else ST1
        for hh in range(2):
            k.chain("v_max3_f32", "v_max_f32", 4 + hh, range(SR + 4 * hh, SR + 4 * hh + 4))
        k.xrow("v_max_f32", [4, 5], [6, 7])
        k.barrier()
        k.exec_set(0xffff, 0)
        for hh in range(2):
            k.ds(f"ds_write_b32 v36, v{4+hh} offset:{so+hh*16384}")
        k.exec_all()
        if rnd:
            pump(36)
            c.qaddr()
            st["q"] = c.qissue()
        else:
            pump(min(st["n"] + 2, 32))
        k.barrier()
        T = QT
        for hh in range(2):
            for q in range(2):
                k.ds(f"ds_read_b128 {vr(T+8*hh+4*q,4)}, v35 offset:{so+hh*16384+q*16}")
        for q in range(2):
            k.ds(f"ds_read_b128 {vr(T+16+4*q,4)}, v37 offset:{so+q*16}")
        k.lgwait()
        for i, dst in enumerate((4, 5, 6)):
            k.chain("v_max3_f32", "v_max_f32", dst, range(T + 8 * i, T + 8 * i + 8))
            e(f"v_mul_f32 v{dst}, s{S_SC}, v{dst}")
        if rnd == 0:
            k.barrier()
        else:
            for i, old in enumerate((VM, VM + 1, VMA)):
                e(f"v_max_f32 v{4+i}, v{4+i}, v{old}")
                e(f"v_sub_f32 v{8+i}, v{old}, v{4+i}")
            for i in range(3):
                e(f"v_exp_f32 v{8+i}, v{8+i}")
        for i in range(8):
            e(f"v_fma_f32 v{SR+i}, v{SR+i}, s{S_SC}, -v{4+(i>>2)}")
        for i in range(8):
            e(f"v_exp_f32 v{SR+i}, v{SR+i}")
        for hh in range(2):
            if rnd == 0:
                k.chain(None, "v_add_f32", VL + hh, range(SR + 4 * hh, SR + 4 * hh + 4))
            else:
                e(f"v_fma_f32 v{VL+hh}, v{VL+hh}, v{8+hh}, v{SR+4*hh}")
                for i in range(1, 4):
                    e(f"v_add_f32 v{VL+hh}, v{VL+hh}, v{SR+4*hh+i}")
        for i in range(4):
            e(f"v_cvt_pk_bf16_f32 v{SR+i}, v{SR+2*i}, v{SR+2*i+1}")
        for hh in range(2):
            k.ds(f"ds_write_b64 v38, {vr(SR+2*hh,2)} offset:{HOLE+hh*16384}")
        e(f"v_mov_b32 v{VMA}, v6")
        if rnd == 0:
            e(f"v_mov_b32 v{VM}, v4")
            e(f"v_mov_b32 v{VM+1}, v5")
            pump(min(st["n"] + 1, 32))
        else:
            k.xrow("v_add_f32", [VL, VL + 1], [4, 5])
            k.exec_set(0xffff, 0)
            for hh in range(2):
                k.ds(f"ds_write_b32 v36, v{VL+hh} offset:{ST2+hh*16384}")
            k.exec_all()
            for i in range(32):
                e(f"v_mul_f32 v{ACC+i}, v10, v{ACC+i}")
        k.barrier()

    FR = [QT, QT + 12, 4]

    def pvround(rnd):
        tk = {}

        def rd(u):
            f = FR[u % 3]
            if u == 4:
                for r in range(16, 20):
                    e(f"v_add_u32 v{r}, 0x10000, v{r}")
            e(f"v_xor_b32 v21, {u*32}, v20")
            k.ds(f"ds_read_b128 {vr(f+8,4)}, v21 offset:{HOLE}")
            for mt in range(2):
                for ee in range(2):
                    tk[u] = k.ds(f"ds_read_b64_tr_b16 {vr(f+4*mt+2*ee,2)}, v{16+2*mt+ee} offset:{(u&3)*16384}")

        rd(0); rd(1)
        for u in range(8):
            if u + 2 < 8:
                rd(u + 2)
            k.lgwait(tk[u])
            f = FR[u % 3]
            for mt in range(2):
                d = vr(ACC + 16 * mt, 16)
                e(f"v_mfma_f32_32x32x16_bf16 {d}, {vr(f+4*mt,4)}, {vr(f+8,4)}, {'0' if (rnd == 0 and u == 0) else d}")
            if rnd == 0 and u & 1:
                pump(min(st["n"] + 1, 32))
        if rnd == 0:
            for r in range(16, 20):
                e(f"v_subrev_u32 v{r}, 0x10000, v{r}")

    softmax(0)
    pvround(0)
    k.stamp(5)
    k.barrier()
    qread(0); qread(1)
    for p in range(8, 16):
        ks = 2 * (p - 8)
        pump(min(2 * p + 2 + DA, 32))
        k.vmwait(ctok[2 * p + 1])
        k.swap_pairs([(CF[2 * p], C0 + 8 * p, C0 + 8 * p + 4)])
        for kk in (ks, ks + 1):
            if kk + 2 < 12:
                qread(kk + 2)
            if kk < 12:
                k.lgwait(tk[kk])
            qkmfma(1, kk)
        cwrite(2 * p); cwrite(2 * p + 1)
    k.stamp(6)
    softmax(1)
    pvround(1)
    k.stamp(10)
    for q in range(2):
        k.ds(f"ds_read_b128 {vr(64+4*q,4)}, v37 offset:{ST2+q*16}")
    e("v_and_b32 v4, 31, v0")
    k.sexpr(S_TMP, [(3, 0, 1, 3)])
    e(f"v_xor_b32 v6, s{S_TMP}, v{V_N}")
    e("v_lshlrev_b32 v6, 4, v6")
    e("v_lshl_add_u32 v6, v4, 10, v6")
    e("v_lshrrev_b32 v7, 5, v0")
    e("v_lshl_add_u32 v6, v7, 3, v6")
    k.sexpr(S_TMP, [(3, 1, None, 8)], Q)
    e(f"v_add_u32 v6, s{S_TMP}, v6")
    k.sexpr(S_TMP, [(3, 0, None, 18), (sB, 0, None, 15), (sCh, 0, None, 10)])
    k.addr(S_A, S_WS, S_TMP, WS_LATP)
    k.sexpr(S_TMP, [(3, 0, 3, 2)])
    e(f"v_xor_b32 v4, s{S_TMP}, v0")
    e("v_lshlrev_b32 v4, 4, v4")
    k.sexpr(S_TMP, [(3, 0, None, 12)], Q)
    e(f"v_add_u32 v4, s{S_TMP}, v4")
    for r in range(12, 16):
        e(f"v_mov_b32 v{r}, 0")
    e(f"v_mov_b32 v11, {CNT}")
    k.lgwait()
    k.chain(None, "v_add_f32", 27, range(64, 72))
    e("v_rcp_f32 v10, v27")
    e("v_log_f32 v27, v27")
    e(f"v_add_f32 v26, v{VMA}, v27")
    e("s_barrier")
    k.ds("ds_write_b128 v11, v[12:15]")
    for g in range(8):
        for i in range(4):
            e(f"v_mul_f32 v{ACC+4*g+i}, v10, v{ACC+4*g+i}")
        e(f"v_cvt_pk_bf16_f32 v{ACC+4*g}, v{ACC+4*g}, v{ACC+4*g+1}")
        e(f"v_cvt_pk_bf16_f32 v{ACC+4*g+1}, v{ACC+4*g+2}, v{ACC+4*g+3}")
        e(f"v_xor_b32 v{40+g}, {g*16}, v6")
        k.ds(f"ds_write_b64 v{40+g}, {vr(ACC+4*g,2)}")
    k.barrier()
    tk = []
    for q in range(4):
        e(f"v_xor_b32 v{16+q}, {q*16}, v4")
        tk.append(k.ds(f"ds_read_b128 {vr(192+4*q,4)}, v{16+q} offset:{q*1024}"))
    for q in range(4):
        k.lgwait(tk[q])
        stok = k.vm(f"global_store_dwordx4 v33, {vr(192+4*q,4)}, {sr(S_A)} sc1")
        if o.get("dupst"):
            k.addr(S_BAD, S_A, None, 2 << 20)
            stok = k.vm(f"global_store_dwordx4 v33, {vr(192+4*q,4)}, {sr(S_BAD)} sc1")
        if q < 3:
            k.adv(S_A, 65536)
    k.stamp(11)
    if o.get("a_vpre", 0):
        pump(40)
    c.qpiece(st["q"])
    c.qread()
    k.sexpr(S_TMP, [(sB, 0, None, 8), (sCh, 0, None, 3)])
    k.addr(S_A, S_WS, S_TMP, WS_LSEA)
    e("v_lshlrev_b32 v40, 9, v0")
    e(f"v_mov_b32 v27, v{V_T}")
    k.lgwait()
    c.qk(0)
    c.softmax()
    k.vmwait(stok)
    e("s_barrier")

    def flag():
        k.exec_set(0xffffffff, 0)
        k.vm(f"global_store_dwordx2 v40, v[26:27], {sr(S_A)} sc1")
        k.exec_all()

    k.when(f"s_cmp_eq_u32 s3, {PUBW}", flag)
    k.stamp(7)
    pump(40)
    c.factor(128)
    c.pv(0, 1, first=True)
    c.finish(128, 8)


def role_T(k):
    e, o = k.e, k.o
    D = o.get("depth_t", 4)
    R = [32 + 32 * i for i in range(7)]
    WOL, CNT, WSC, CS, OB, P1B = 32768, 16384, 16640, 21504, 25600, 8192
    sStr, sW = S_P + 2, S_P + 3
    SF, SO = 86, 88
    k.label("L_roleT")
    k.remap = {11: 2, 12: 3}
    tok = {}

    def oload(n):
        tok["o", n >> 3] = k.ld4(R[5] + 4 * n, 29, S_C, (n & 3) * 1024)
        if n & 3 == 3:
            k.adv(S_C, 4096 if n & 4 == 0 else 4096 * 7)

    def pre():
        k.sexpr(S_TMP, [(2, 0, None, 17), (3, 2, None, 16), (3, 0, 3, 8)])
        k.addr(S_C, S_WOA, S_TMP)
        e(f"v_lshlrev_b32 v{R[4]}, 13, v{V_J}")
        e(f"v_lshl_add_u32 v{R[4]}, v{V_N}, 4, v{R[4]}")
        for r in range(4):
            e(f"v_mov_b32 v{R[4]+4+r}, 0")
        e(f"v_mov_b32 v{R[4]+1}, {CNT}")
        k.ds(f"ds_write_b128 v{R[4]+1}, {vr(R[4]+4,4)}")

    k.p1_double(0, 192, pre, R[1], P1B)
    e(f"v_mov_b32 v29, v{R[4]}")
    for n in range(D):
        oload(n)
    k.sexpr(S_TMP, [(3, 0, 3, 20), (2, 0, None, 8)])
    k.addr(S_A, S_WUV, S_TMP)
    k.sexpr(S_TMP, [(2, 0, None, 17), (3, 0, 3, 8)])
    k.addr(S_B, S_WOB, S_TMP)
    e("s_cmp_lt_u32 s3, 4")
    e(f"s_cselect_b32 s{sW}, s{S_A}, s{S_B}")
    e(f"s_cselect_b32 s{sW+1}, s{S_A+1}, s{S_B+1}")
    e(f"s_cselect_b32 s{sStr}, 13, 10")
    e(f"s_lshl_b32 s{sStr}, 1, s{sStr}")
    e(f"s_lshl_b32 s{S_TMP}, s{sStr}, 3")
    e(f"v_mul_lo_u32 v28, s{S_TMP}, v{V_J}")
    e(f"v_lshl_add_u32 v28, v{V_N}, 4, v28")
    e(f"s_mul_i32 s{S_P+1}, s{sStr}, 25")
    k.sexpr(S_TMP, [(3, 0, 3, 15), (3, 2, None, 14)], WOL)
    e("v_lshlrev_b32 v31, 4, v0")
    e(f"v_add_u32 v30, s{S_TMP}, v31")
    k.sexpr(S_P, [(3, 0, None, 10)], WSC)

    def wload(n, d):
        k.throttle(d)
        tok["w", n >> 3] = k.ld4(R[1] + 4 * n, 28, sW)
        st = S_P + 1 if n & 7 == 7 else sStr
        e(f"s_add_u32 s{sW}, s{sW}, s{st}")
        e(f"s_addc_u32 s{sW+1}, s{sW+1}, 0")

    def operm(g):
        k.vmwait(tok["o", g])
        for i in range(8):
            x = 8 + 4 * (i & 3)
            k.frag(x, R[5 + g], i, 8)
            k.ds(f"ds_write_b128 v30, {vr(x,4)} offset:{g*8192+i*1024}")

    def wperm(g):
        k.vmwait(tok["w", g])
        for i in range(8):
            k.frag(R[g] + 4 * i, R[g + 1], i, 8)

    for n in range(D, 16):
        k.throttle(D)
        oload(n)
        if n == 11:
            operm(0)
    DA_, DB_ = o.get("depth_ta", 4), o.get("depth_tb", 4)
    for n in range(32):
        if DB_ < DA_:
            lab = k.newlabel("L_td")
            e("s_cmp_lt_u32 s3, 4")
            e(f"s_cbranch_scc1 {lab}")
            k.throttle(DB_)
            k.label(lab)
        wload(n, DA_)
        if n == 3:
            operm(1)
            k.arrive(CNT)
        if n & 7 == 3 and n > 8:
            wperm((n >> 3) - 1)
    e(f"v_bfe_u32 v26, v{V_N}, 2, 1")
    e("v_lshlrev_b32 v25, 8, v26")
    e(f"v_lshl_add_u32 v25, v{V_J}, 4, v25")
    e("v_lshlrev_b32 v24, 3, v0")
    e(f"s_lshr_b32 s{S_P+1}, s3, 2")
    k.sexpr(S_TMP, [(S_P + 1, 0, None, 17), (3, 0, 3, 15), (2, 0, None, 7)])
    k.addr(S_C, S_WS, S_TMP, WS_OUTP)
    e(f"v_lshrrev_b32 v4, 1, v{V_N}")
    e("v_lshlrev_b32 v4, 12, v4")
    e(f"v_and_b32 v5, 1, v{V_N}")
    e("v_lshl_add_u32 v4, v5, 5, v4")
    e(f"v_and_b32 v5, 1, v{V_J}")
    e("v_lshl_add_u32 v4, v5, 6, v4")
    e(f"v_lshrrev_b32 v5, 1, v{V_J}")
    e("v_lshl_add_u32 v23, v5, 4, v4")
    e(f"s_mov_b32 s{S_D}, 0")
    e(f"s_mov_b32 s{S_D+1}, -1")
    k.sexpr(S_TMP, [(S_P + 1, 0, None, 17), (2, 0, None, 12)])
    k.addr(SF, S_WS, S_TMP, WS_OUTP)
    k.sexpr(S_TMP, [(S_P + 1, 0, None, 10), (2, 0, None, 5)])
    k.addr(SO, S_OUT, S_TMP)
    e("v_bfe_u32 v4, v0, 2, 1")
    e("v_lshlrev_b32 v4, 11, v4")
    e("v_and_b32 v5, 3, v0")
    e("v_lshl_add_u32 v27, v5, 3, v4")
    if o.get("touch", 1):
        k.sexpr(S_TMP, [(3, 0, 3, 10)])
        e(f"v_add_u32 v4, s{S_TMP}, v31")
        k.ld4(12, 4, SF, 0, "sc1")
    wperm(3)
    k.stamp(4)
    X = R[4]
    PA = [R[6] + 8 * kg for kg in range(4)]
    PD = [R[5] + 16 + 4 * i for i in range(4)] + [R[6] + 4 + 8 * i for i in range(4)]

    def proj():
        for kg in range(4):
            for i in range(8):
                d = vr(PD[i], 4)
                e(f"v_mfma_f32_16x16x32_bf16 {d}, {vr(PA[kg],4)}, {vr(R[kg]+4*i,4)}, {'0' if kg == 0 else d}")

    def publish():
        for i in range(4):
            e(f"v_cndmask_b32 v{8+i}, v{PD[i]}, v{PD[4+i]}, {sr(S_D)}")
        k.tag4(8)
        k.vm(f"global_store_dwordx4 v23, v[8:11], {sr(S_C)} sc1")

    e("s_cmp_ge_u32 s3, 4")
    e("s_cbranch_scc1 L_tailB")
    base = k.vm_n
    e(f"s_lshl_b32 s{S_TMP}, s2, 9")
    k.addr(S_A, S_WS, S_TMP, WS_LSEA)
    k.sexpr(S_TMP, [(2, 0, None, 16), (3, 0, None, 8)])
    LB = [98, 100, sW, S_B]
    k.addr(LB[0], S_WS, S_TMP, WS_LATP)
    for i in range(1, 4):
        k.addr(LB[i], LB[0], None, (i >> 1) * 32768 + (i & 1) * 4096)
    sIss, sBlk = 92, 94
    top, done = k.newlabel("L_lat"), k.newlabel("L_latok")
    e(f"s_mov_b64 {sr(sIss)}, 0")
    e(f"v_lshlrev_b32 v21, 3, v{V_J}")
    e(f"s_mov_b32 s{S_SPIN}, {SPIN_MAX}")
    k.label(top)
    k.cond += 1
    e(f"s_sub_u32 s{S_SPIN}, s{S_SPIN}, 1")
    e(f"s_cbranch_scc1 {done}")
    if o.get("dbg_sleep"):
        e(f"s_sleep {o['dbg_sleep']}")
    k.vm(f"global_load_dwordx2 v[8:9], v24, {sr(S_A)} sc1")
    e("s_waitcnt vmcnt(0)")
    e(f"v_cmp_ne_u32 {sr(S_BAD)}, v9, v{V_T}" if not o.get("nodep") else f"s_mov_b64 {sr(S_BAD)}, 0")
    e(f"s_nor_b64 {sr(sBlk)}, {sr(S_BAD)}, {sr(sIss)}")
    e(f"s_cbranch_scc0 {top}")
    e(f"s_or_b64 {sr(sIss)}, {sr(sIss)}, {sr(sBlk)}")
    for b_ in range(2):
        skb = k.newlabel("L_lskb")
        e(f"s_cmp_eq_u32 s{sBlk+b_}, 0")
        e(f"s_cbranch_scc1 {skb}")
        e(f"v_lshrrev_b32 v10, v21, s{sBlk+b_}")
        for t in range(8):
            sk = k.newlabel("L_lsk")
            e(f"v_and_b32 v11, {1 << t}, v10")
            e(f"v_cmp_ne_u32 vcc, 0, v11")
            e(f"s_and_saveexec_b64 {sr(S_TMP)}, vcc")
            e(f"s_cbranch_execz {sk}")
            k.ld4(R[5] + 32 * b_ + 4 * t, 29, LB[2 * b_ + (t >> 2)], (t & 3) * 1024, "sc1")
            k.label(sk)
            k.exec_all()
        k.label(skb)
    e(f"s_cmp_lg_u64 {sr(sIss)}, -1")
    e(f"s_cbranch_scc1 {top}")
    k.cond -= 1
    k.label(done)
    k.stamp(5)
    if o.get("prio", 0):
        e("s_setprio 2")

    def red32(op, r, tmp):
        for sh in (8, 4, 2, 1):
            e(f"{op}_dpp v{r}, v{r}, v{r} row_ror:{sh} row_mask:0xf bank_mask:0xf")
        k.xrow(op, [r], [tmp], (16,))

    e("v_mov_b32 v10, v8")
    red32("v_max_f32", 10, 11)
    e("v_sub_f32 v8, v8, v10")
    e("v_exp_f32 v8, v8")
    e("v_lshrrev_b32 v4, 5, v0")
    e("v_mov_b32 v10, v8")
    red32("v_add_f32", 10, 11)
    e("v_rcp_f32 v10, v10")
    e("v_lshlrev_b32 v4, 7, v4")
    e("v_mul_f32 v8, v8, v10")
    e("v_cvt_pk_bf16_f32 v9, v8, v8")
    e("v_and_b32 v10, 0xffff0000, v9")
    e("v_sub_f32 v8, v8, v10")
    e("v_cvt_pk_bf16_f32 v10, v8, v8")
    e("v_and_b32 v5, 31, v0")
    e("v_lshl_add_u32 v4, v5, 1, v4")
    e(f"v_add_u32 v4, s{S_P}, v4")
    k.ds("ds_write_b16 v4, v9")
    k.ds("ds_write_b16 v4, v10 offset:64")
    e(f"v_and_b32 v4, 1, v{V_N}")
    e("v_lshlrev_b32 v4, 6, v4")
    e(f"v_lshl_add_u32 v4, v{V_J}, 4, v4")
    e(f"v_add_u32 v4, s{S_P}, v4")
    k.lgwait()
    k.ds("ds_read_b128 v[8:11], v4")
    k.ds("ds_read_b128 v[12:15], v4 offset:128")
    e(f"v_lshlrev_b32 v4, 4, v{V_N}")
    e(f"v_add_u32 v4, s{S_P}, v4")
    e(f"v_add_u32 v5, s{S_P}, v25")
    k.await_cnt(CNT, 8)
    e("s_waitcnt vmcnt(0)")
    k.stamp(6)
    for b_ in range(2):
        for i in range(8):
            x = 16
            k.frag(x, R[5 + b_], i, 8)
            e(f"v_mfma_f32_16x16x32_bf16 {vr(X+4*i,4)}, {vr(8+4*b_,4)}, {vr(x,4)}, 0")
        for i in range(8):
            e(f"v_add_f32 v{X+4*i}, v{X+4*i}, v{X+4*i+1}")
        for i in range(4):
            e(f"v_cvt_pk_bf16_f32 v{R[5+b_]+i}, v{X+8*i}, v{X+8*i+4}")
        k.exec_set(0xffff, 0)
        k.ds(f"ds_write_b128 v4, {vr(R[5+b_],4)} offset:{256+b_*256}")
        k.exec_all()
    k.lgwait()
    AF = R[5]
    for kg in range(4):
        k.ds(f"ds_read_b128 {vr(AF+4*kg,4)}, v5 offset:{256+kg*64}")
    k.sexpr(S_TMP, [(3, 0, None, 10)], CS)
    e(f"v_lshlrev_b32 v4, 5, v{V_N}")
    e(f"v_lshl_add_u32 v4, v{V_J}, 9, v4")
    e(f"v_add_u32 v4, s{S_TMP}, v4")
    k.lgwait()
    for kg in range(4):
        for i in range(8):
            d = vr(X + 4 * i, 4)
            e(f"v_mfma_f32_16x16x32_bf16 {d}, {vr(AF+4*kg,4)}, {vr(R[kg]+4*i,4)}, {'0' if kg == 0 else d}")
    k.sexpr(S_TMP, [(3, 0, None, 15)], WOL)
    e(f"v_add_u32 v30, s{S_TMP}, v31")
    k.exec_set(0xffffffff, 0)
    for i in range(0, 8, 2):
        k.ds(f"ds_write2_b32 v4, v{X+4*i}, v{X+4*i+4} offset0:{i} offset1:{i+1}")
    k.arrive(CNT + 4)
    for f in range(32):
        k.ds(f"ds_read_b128 {vr(R[0]+4*f,4)}, v30 offset:{f*1024}")
    e(f"v_add_u32 v4, {CS}, v31")
    k.stamp(12)
    k.await_cnt(CNT + 4, 4)
    k.stamp(11)
    for w in range(4):
        k.ds(f"ds_read_b128 {vr(X+4*w,4)}, v4 offset:{w*1024}")
    e(f"v_add_u32 v4, s{S_P}, v24")
    k.lgwait()
    k.tree_add4(X, 4)
    e(f"v_cvt_pk_bf16_f32 v8, v{X}, v{X+1}")
    e(f"v_cvt_pk_bf16_f32 v9, v{X+2}, v{X+3}")
    k.ds("ds_write_b64 v4, v[8:9]")
    k.lgwait()
    for kg in range(4):
        k.ds(f"ds_read_b128 {vr(PA[kg],4)}, v5 offset:{kg*64}")
    k.lgwait()
    proj()
    e("s_branch L_proj")
    k.label("L_tailB")
    k.vm_n = base
    Y = R[4]

    def issue_o(i):
        for c in range(4):
            k.ld4(Y + 16 * i + 4 * c, 21 - (c >> 1), S_B, (c & 1) * 512, "sc1")

    def check_o(i):
        k.chkn([Y + 16 * i + 4 * c for c in range(4)], 6, 7)

    def comb(i):
        k.lgwait()
        for r in range(4):
            e(f"v_mul_f32 v{8+r}, v12, v{Y+16*i+r}")
        for c in range(1, 4):
            for r in range(4):
                e(f"v_fmac_f32 v{8+r}, v{12+c}, v{Y+16*i+4*c+r}")

    e(f"s_lshl_b32 s{S_TMP}, s2, 9")
    k.addr(S_A, S_WS, S_TMP, WS_LSEB)
    e("v_lshrrev_b32 v4, 5, v0")
    e("v_lshlrev_b32 v5, 8, v4")
    e(f"v_min_u32 v6, {NCB-1}, v{V_N}")
    e("v_lshl_add_u32 v22, v6, 4, v5")
    e(f"v_cmp_gt_u32 {sr(98)}, {NCB}, v{V_N}")
    e(f"s_mul_i32 s{S_TMP}, s2, {2*NCB*512}")
    k.sexpr(S_P + 2, [(3, 0, 3, 11)])
    e(f"s_add_u32 s{S_TMP}, s{S_TMP}, s{S_P+2}")
    k.addr(S_B, S_WS, S_TMP, WS_OP)
    e(f"v_mul_u32_u24 v4, {NCB*512}, v4")
    e("v_and_b32 v5, 31, v0")
    e("v_lshl_add_u32 v21, v5, 4, v4")
    e("s_cmp_eq_u32 s3, 7")
    e(f"s_cselect_b32 s{S_TMP}, 0, 0x400")
    e(f"v_add_u32 v20, s{S_TMP}, v21")
    k.sexpr(S_TMP, [(3, 0, 3, 10)], WSC + 768)
    e(f"v_lshlrev_b32 v4, 2, v0")
    e(f"v_add_u32 v19, s{S_TMP}, v4")
    e("v_lshrrev_b32 v4, 5, v0")
    e("v_lshlrev_b32 v4, 7, v4")
    k.sexpr(S_P + 2, [(3, 0, 3, 4), (S_TMP, 0, None, 0)])
    e(f"v_add_u32 v18, s{S_P+2}, v4")
    k.sexpr(S_TMP, [(3, 0, 3, 9)], OB)
    e(f"v_add_u32 v17, s{S_TMP}, v24")
    e(f"v_and_b32 v4, 3, v{V_N}")
    e("v_lshl_add_u32 v4, v4, 9, v25")
    e(f"v_add_u32 v16, {OB}, v4")
    if o.get("touch", 1):
        issue_o(0)
    k.poll_pipe(o.get("np_l", 2), 1, lambda i: k.ld4(Y + 48 + 4 * i, 22, S_A, 0, "sc1"), lambda i: k.chk_full(Y + 48 + 4 * i, 6, 7),
                lambda i: e(f"v_mov_b32 v8, v{Y+48+4*i}"))
    e("v_mov_b32 v9, 0xff800000")
    e(f"v_cndmask_b32 v8, v9, v8, {sr(98)}")
    e("v_mov_b32 v10, v8")
    for sh in (8, 4, 2, 1):
        e(f"v_max_f32_dpp v10, v10, v10 row_ror:{sh} row_mask:0xf bank_mask:0xf")
    e("v_sub_f32 v8, v8, v10")
    e("v_exp_f32 v8, v8")
    e("v_mov_b32 v10, v8")
    for sh in (8, 4, 2, 1):
        e(f"v_add_f32_dpp v10, v10, v10 row_ror:{sh} row_mask:0xf bank_mask:0xf")
    e("v_rcp_f32 v10, v10")
    e("v_mul_f32 v8, v8, v10")
    k.ds("ds_write_b32 v19, v8")
    k.lgwait()
    k.ds("ds_read_b128 v[12:15], v18")
    k.stamp(7)

    k.poll_pipe(o.get("np_o", 2), 4, issue_o, check_o, comb)
    k.stamp(8)
    e("v_cvt_pk_bf16_f32 v8, v8, v9")
    e("v_cvt_pk_bf16_f32 v9, v10, v11")
    k.ds("ds_write_b64 v17, v[8:9]")
    k.arrive(CNT + 8)
    k.await_cnt(CNT + 8, 4)
    k.stamp(11)
    for kg in range(4):
        k.ds(f"ds_read_b128 {vr(PA[kg],4)}, v16 offset:{kg*64}")
    k.lgwait()
    proj()
    for i in range(8):
        e(f"v_add_f32 v{PD[i]}, v{PD[i]}, v{PD[i]+1}")
        e(f"v_add_f32 v{PD[i]+2}, v{PD[i]+2}, v{PD[i]+3}")
    for i in range(8):
        e(f"v_add_f32 v{PD[i]}, v{PD[i]}, v{PD[i]+2}")
    k.label("L_proj")
    publish()
    k.stamp(9)
    e("s_and_b32 s62, s3, 3")
    e("s_cbranch_scc1 L_fin")
    F = R[0]

    def issue(i):
        for q in range(4):
            k.ld4(F + 16 * i + 4 * q, 31, SF, q * 1024, "sc1")

    def check(i):
        k.chkn([F + 16 * i + 4 * q for q in range(4)], 6, 7)

    def fin(i):
        for r in range(8):
            e(f"v_add_f32 v{12+r}, v{F+16*i+r}, v{F+16*i+8+r}")

    lab, lab2 = k.newlabel("L_fa"), k.newlabel("L_fb")
    e("s_cmp_eq_u32 s3, 0")
    e(f"s_cbranch_scc1 {lab}")
    k.poll_pipe(o.get("np_f", 2), 4, issue, check, fin)
    e(f"s_branch {lab2}")
    k.label(lab)
    k.poll_pipe(1, 4, issue, check, fin)
    k.label(lab2)
    k.stamp(10)
    k.tree_add4(12, 2)
    for i in range(4):
        e(f"v_add_f32_dpp v{12+i}, v{12+i}, v{12+i} row_ror:8 row_mask:0xf bank_mask:0xf")
    k.xrow("v_add_f32", [12, 13, 14, 15], [16, 17, 18, 19])
    e("v_cvt_pk_bf16_f32 v12, v12, v13")
    e("v_cvt_pk_bf16_f32 v13, v14, v15")
    k.exec_set(0xff, 0)
    k.vm(f"global_store_dwordx2 v27, v[12:13], {sr(SO)}")
    e(f"s_or_b32 s{S_TMP}, s2, s3")
    e(f"s_cmp_lg_u32 s{S_TMP}, 0")
    e("s_cbranch_scc1 L_fin")
    k.exec_set(1, 0)
    e("v_mov_b32 v4, 0")
    k.vm(f"global_store_dword v4, v{V_T}, {sr(S_WS)}")
    e("s_branch L_fin")


def finish(k):
    e = k.e
    k.label("L_fin")
    if k.o.get("stamps"):
        k.exec_all()
        k.stamp(15)
        e(f"s_memtime {sr(S_STAMP + 28)}")
        k.sexpr(S_TMP, [(2, 0, None, 10), (3, 0, None, 7)])
        e(f"s_load_dwordx2 {sr(S_WS)}, s[0:1], 104")
        e("s_waitcnt lgkmcnt(0)")
        k.addr(S_A, S_WS, S_TMP, WS_STAMP)
        e("s_waitcnt lgkmcnt(0)")
        e("v_mov_b32 v4, 0")
        k.exec_set(1, 0)
        for i in range(8):
            for q in range(4):
                e(f"v_mov_b32 v{8+q}, s{S_STAMP+4*i+q}")
            e(f"global_store_dwordx4 v4, v[8:11], {sr(S_A)} offset:{i*16}")
    k.label("L_end")
    e("s_endpgm")


def tile_table(o):
    late, par, b2 = o.get("adj_late", 0), o.get("adj_par", 0), o.get("adj_b2", 0)
    kind = lambda i: (i >= 128, (i & 7) >= 4, (i >> 3) & 1 if i < 128 else 0)
    members = [[] for _ in range(16)]
    seen = {}
    for i in range(NB):
        n = seen.get(kind(i), 0)
        seen[kind(i)] = n + 1
        members[n % 16].append(i)
    out = [0] * NB
    for p, m in enumerate(members):
        assert len(m) == 10
        w = []
        for i in m:
            isb2, isl, odd = kind(i)
            a = -late if isl else late
            if isl and not isb2:
                a += par if odd else -par
            w.append(48 + a + (b2 if isb2 else -b2 / 4))
        n = [int(v // 1) for v in w]
        for j in sorted(range(10), key=lambda j: n[j] - w[j])[:480 - sum(n)]:
            n[j] += 1
        assert sum(n) == 480
        st = 0
        for ch, (i, v) in enumerate(zip(m, n)):
            assert 40 <= v <= 56
            out[i] = st | min(v - 40, 8) << 16 | max(v - 48, 0) << 20 | p << 24 | ch << 28
            st += v
    return out


def generate(**opt):
    k = K(opt)
    head = [l.rstrip("\n") for l in open(REF) if l.startswith(";") and "@launch" not in l and "Override" not in l and "grid=ceil" not in l]
    L = k.L
    L += head
    L.append("; @launch grid=(256,1,1) block=(512,1,1) lds=163840")
    L.append('.amdgcn_target "amdgcn-amd-amdhsa--gfx950"')
    L += [".text", f".globl {NAME}_kernel", ".p2align 8", f".type {NAME}_kernel,@function", f"{NAME}_kernel:"]
    if opt.get("stamps"):
        for r in range(S_STAMP, S_STAMP + 32):
            k.e(f"s_mov_b32 s{r}, 0")
    k.prologue()
    k.e(f"s_cmp_ge_u32 s2, {NT+NA}")
    k.e("s_cbranch_scc1 L_roleB")
    k.e(f"s_cmp_ge_u32 s2, {NT}")
    k.e("s_cbranch_scc1 L_roleA")
    base = k.vm_n
    role_T(k)
    k.vm_n = base
    k.remap = {}
    role_A(k)
    k.vm_n = base
    role_B(k)
    finish(k)
    L.append(".p2align 2")
    L.append(".type L_tiles,@object")
    L.append("L_tiles:")
    L += [f".long {w:#x}" for w in tile_table(opt)]
    L += ['.section .rodata,"a"', ".p2align 6", f".amdhsa_kernel {NAME}_kernel",
          "  .amdhsa_next_free_vgpr 256", "  .amdhsa_next_free_sgpr 102", "  .amdhsa_accum_offset 256",
          "  .amdhsa_group_segment_fixed_size 0", "  .amdhsa_kernarg_size 112", "  .amdhsa_user_sgpr_count 2",
          "  .amdhsa_user_sgpr_kernarg_segment_ptr 1", "  .amdhsa_system_sgpr_workgroup_id_x 1", ".end_amdhsa_kernel"]
    return k.text()


if __name__ == "__main__":
    opt = {}
    for a in sys.argv[2:]:
        kk, v = a.split("=")
        opt[kk] = int(v)
    open(sys.argv[1], "w").write(generate(**opt))
```

```python
import sys, struct
from asmlib import Gen, vr, sr

NAME = "concat_heads__compressed_kv_cla__gqa_block_cached__decode"
REF = "cdna_kernels/" + NAME + ".s.ref"

NT, NA, NB = 32, 64, 160
NCB = 14
WS_QP = 0x010000
WS_QA = 0x060000
WS_LSEA = 0x090000
WS_LSEB = 0x0A0000
WS_OP = 0x0B0000
WS_OUTP = 0x140000
WS_LATP = 0x200000
WS_STAMP = 128 << 20
SCALE = (128 ** -0.5) * 1.4426950408889634


def f2u(x):
    return struct.unpack("<I", struct.pack("<f", x))[0]


S_AX, S_CKV, S_WQA, S_WUK, S_WUV, S_WOA, S_BX, S_K, S_V, S_WQB, S_WOB, S_OUT, S_DBG, S_WS = range(4, 32, 2)
S_E, S_T = 32, 33
S_SEL = 34
S_LO, S_HI = 38, 39
S_A, S_B, S_C, S_D = 40, 42, 44, 46
S_X0, S_X1, S_X2 = 48, 49, 50
S_SC = 51
S_SPIN = 52
S_P = 53
S_BAD = 60
S_TMP = 62
S_STAMP = 64
S_EVEN = 96
S_SL = 100
V_L, V_N, V_J, V_T = 0, 1, 2, 3
SPIN_MAX = 1 << 18
PUBW = 7


class K(Gen):
    def __init__(self, opt):
        super().__init__()
        self.o = opt
        self.remap = {}

    def stamp(self, k):
        if self.o.get("stamps"):
            self.e(f"s_memrealtime {sr(S_STAMP + 2 * self.remap.get(k, k))}")

    def addr(self, dst, base, off_s=None, off_i=0):
        if off_s is not None:
            self.e(f"s_add_u32 s{dst}, s{base}, s{off_s}")
            self.e(f"s_addc_u32 s{dst+1}, s{base+1}, 0")
            base = dst
        if off_i or off_s is None:
            self.e(f"s_add_u32 s{dst}, s{base}, {off_i}")
            self.e(f"s_addc_u32 s{dst+1}, s{base+1}, 0")

    def adv(self, a, n):
        self.e(f"s_add_u32 s{a}, s{a}, {n}")
        self.e(f"s_addc_u32 s{a+1}, s{a+1}, 0")

    def sexpr(self, dst, terms, const=0):
        first = True
        for reg, shr, mask, shl in terms:
            t = dst if first else S_TMP + 1
            src = reg
            if shr:
                self.e(f"s_lshr_b32 s{t}, s{src}, {shr}"); src = t
            if mask is not None:
                self.e(f"s_and_b32 s{t}, s{src}, {mask}"); src = t
            if shl or src != t:
                self.e(f"s_lshl_b32 s{t}, s{src}, {shl}")
            if not first:
                self.e(f"s_add_u32 s{dst}, s{dst}, s{t}")
            first = False
        if const:
            self.e(f"s_add_u32 s{dst}, s{dst}, {const}")

    def ld4(self, dst, voff, sbase, off=0, fl="nt"):
        return self.vm(f"global_load_dwordx4 {vr(dst,4)}, v{voff}, {sr(sbase)} offset:{off} {fl}")

    def throttle(self, d):
        if d:
            self.e(f"s_waitcnt vmcnt({d-1})")

    def tag4(self, r):
        for k in range(4):
            self.e(f"v_perm_b32 v{r+k}, v{r+k}, v{V_T}, s{S_SEL+k}")

    def chkn(self, regs, acc, tmp):
        if self.o.get("nodep"):
            self.e(f"s_mov_b64 {sr(S_BAD)}, 0")
            return
        for i, r in enumerate(regs):
            self.e(f"v_perm_b32 v{tmp}, v{r+3}, v{r}, s{S_X0}")
            if len(regs) == 1:
                self.e(f"v_cmp_ne_u32 {sr(S_BAD)}, s{S_X1}, v{tmp}")
                return
            if i == 0:
                self.e(f"v_xor_b32 v{acc}, s{S_X1}, v{tmp}")
            else:
                self.e(f"v_xad_u32 v{acc}, v{tmp}, s{S_X1}, v{acc}")
        self.e(f"v_cmp_ne_u32 {sr(S_BAD)}, 0, v{acc}")

    def chk4(self, r, tmp, first):
        self.chkn([r], tmp, tmp)

    def chk_full(self, r, a, b):
        if self.o.get("nodep"):
            self.e(f"s_mov_b64 {sr(S_BAD)}, 0")
            return
        self.e(f"v_perm_b32 v{a}, v{r+1}, v{r}, s{S_X0}")
        self.e(f"v_perm_b32 v{b}, v{r+3}, v{r+2}, s{S_X0}")
        self.e(f"v_lshl_or_b32 v{a}, v{b}, 16, v{a}")
        self.e(f"v_cmp_ne_u32 {sr(S_BAD)}, v{a}, v{V_T}")

    def poll(self, issue, check, pre_issued=None, light=None):
        top, done = self.newlabel("L_poll"), self.newlabel("L_got")
        self.e(f"s_mov_b32 s{S_SPIN}, {SPIN_MAX}")
        if pre_issued is not None:
            self.vmwait(pre_issued)
            check()
            self.e(f"s_cmp_eq_u64 {sr(S_BAD)}, 0")
            self.e(f"s_cbranch_scc1 {done}")
        self.label(top)
        self.cond += 1
        self.e(f"s_sub_u32 s{S_SPIN}, s{S_SPIN}, 1")
        self.e(f"s_cbranch_scc1 {done}")
        if light:
            light[0]()
            self.e("s_waitcnt vmcnt(0)")
            light[1]()
            self.e(f"s_cmp_eq_u64 {sr(S_BAD)}, 0")
            self.e(f"s_cbranch_scc0 {top}")
        issue()
        self.e("s_waitcnt vmcnt(0)")
        check()
        self.cond -= 1
        self.e(f"s_cmp_eq_u64 {sr(S_BAD)}, 0")
        self.e(f"s_cbranch_scc0 {top}")
        self.label(done)

    def poll_pipe(self, nset, nld, issue, check, finish):
        top, done = self.newlabel("L_pp"), self.newlabel("L_ppok")
        oks = [self.newlabel("L_ppv") for _ in range(nset)]
        self.cond += 1
        self.e(f"s_mov_b32 s{S_SPIN}, {SPIN_MAX}")
        for i in range(nset - 1):
            issue(i)
        self.label(top)
        if self.o.get("dbg_sleep2"):
            self.e(f"s_sleep {self.o['dbg_sleep2']}")
        for i in range(nset):
            issue((i + nset - 1) % nset)
            self.e(f"s_waitcnt vmcnt({nld * (nset - 1)})")
            check(i)
            self.e(f"s_cmp_eq_u64 {sr(S_BAD)}, 0")
            self.e(f"s_cbranch_scc1 {oks[i]}")
        self.e(f"s_sub_u32 s{S_SPIN}, s{S_SPIN}, 1")
        self.e(f"s_cbranch_scc0 {top}")
        for i in reversed(range(nset)):
            self.label(oks[i])
            finish(i)
            if i:
                self.e(f"s_branch {done}")
        self.label(done)
        self.cond -= 1

    def when(self, cmp, fn):
        lab = self.newlabel("L_skip")
        self.e(cmp)
        self.e(f"s_cbranch_scc0 {lab}")
        self.cond += 1
        fn()
        self.cond -= 1
        self.label(lab)

    def arrive(self, cnt):
        self.e("v_mov_b32 v6, 1")
        self.e(f"v_mov_b32 v7, {cnt}")
        self.exec_set(1, 0)
        self.ds("ds_add_u32 v7, v6")
        self.exec_all()

    def await_cnt(self, cnt, n):
        top, done = self.newlabel("L_cnt"), self.newlabel("L_cntok")
        e = self.e
        e(f"v_mov_b32 v7, {cnt}")
        e(f"s_mov_b32 s{S_SPIN}, {SPIN_MAX*16}")
        self.label(top)
        if self.o.get("dbg_sleep3"):
            e(f"s_sleep {self.o['dbg_sleep3']}")
        e("ds_read_b32 v6, v7")
        e(f"s_sub_u32 s{S_SPIN}, s{S_SPIN}, 1")
        e(f"s_cbranch_scc1 {done}")
        e("s_waitcnt lgkmcnt(0)")
        e(f"v_readfirstlane_b32 s{S_TMP}, v6")
        e(f"s_cmp_lt_u32 s{S_TMP}, {n}")
        e(f"s_cbranch_scc1 {top}")
        self.label(done)

    def xrow(self, op, regs, tmps, which=(16, 32)):
        for w in which:
            for r, t in zip(regs, tmps):
                self.e(f"v_mov_b32 v{t}, v{r}")
            for r, t in zip(regs, tmps):
                self.e(f"v_permlane{w}_swap_b32 v{t}, v{r}")
            for r, t in zip(regs, tmps):
                self.e(f"{op} v{r}, v{r}, v{t}")

    def frag(self, dst, raw, i, nld):
        for p in range(nld // 2):
            self.e(f"v_perm_b32 v{dst+p}, v{raw + 4*(2*p+1) + (i >> 1)}, v{raw + 4*(2*p) + (i >> 1)}, s{S_HI if i & 1 else S_LO}")

    def swap_pairs(self, pairs):
        dpp = "quad_perm:[1,0,3,2] row_mask:0xf bank_mask:0xf"
        self.e(f"s_mov_b64 vcc, {sr(S_EVEN)}")
        for d, a, b in pairs:
            for k in range(4):
                self.e(f"v_cndmask_b32_dpp v{d+k}, v{b+k}, v{a+k}, vcc {dpp}")
                self.e(f"v_xor_b32 v{a+k}, v{a+k}, v{d+k}")
            for k in range(4):
                self.e(f"v_xor_b32_dpp v{b+k}, v{a+k}, v{b+k} {dpp}")

    def tree_add4(self, r, n):
        st = n // 2
        while st:
            for w in range(st):
                for k in range(4):
                    self.e(f"v_add_f32 v{r+4*w+k}, v{r+4*w+k}, v{r+4*(w+st)+k}")
            st //= 2

    def chain(self, op3, op2, dst, regs):
        regs = list(regs)
        if len(regs) >= 3 and op3:
            self.e(f"{op3} v{dst}, v{regs[0]}, v{regs[1]}, v{regs[2]}")
            rest = regs[3:]
            while len(rest) >= 2:
                self.e(f"{op3} v{dst}, v{dst}, v{rest[0]}, v{rest[1]}")
                rest = rest[2:]
        else:
            self.e(f"{op2} v{dst}, v{regs[0]}, v{regs[1]}")
            rest = regs[2:]
        for r in rest:
            self.e(f"{op2} v{dst}, v{dst}, v{r}")

    def exec_set(self, lo, hi):
        self.e(f"s_mov_b32 exec_lo, {lo:#x}")
        self.e(f"s_mov_b32 exec_hi, {hi:#x}")

    def exec_all(self):
        self.e("s_mov_b64 exec, -1")

    def prologue(self):
        e = self.e
        e("s_cmp_ge_u32 s2, 256")
        e("s_cbranch_scc1 L_end")
        self.stamp(0)
        if self.o.get("stamps"):
            pass
        e("s_load_dwordx16 s[4:19], s[0:1], 0")
        e("s_load_dwordx8 s[20:27], s[0:1], 64")
        e("s_load_dwordx4 s[28:31], s[0:1], 96")
        e("v_lshrrev_b32 v4, 6, v0")
        e("v_and_b32 v0, 63, v0")
        e("v_readfirstlane_b32 s3, v4")
        e(f"v_and_b32 v{V_N}, 15, v0")
        e(f"v_lshrrev_b32 v{V_J}, 4, v0")

    def consts(self):
        e = self.e
        if self.o.get("wsoff"):
            self.adv(S_WS, self.o["wsoff"] << 20)
        e(f"s_load_dword s{S_E}, {sr(S_WS)}, 0")
        if self.o.get("cpf"):
            def pf():
                lab = self.newlabel("L_cp")
                e(f"s_getpc_b64 {sr(S_BAD)}")
                self.label(lab)
                e(f"s_sub_u32 s{S_BAD}, s{S_BAD}, {lab}-{NAME}_kernel")
                e(f"s_subb_u32 s{S_BAD+1}, s{S_BAD+1}, 0")
                self.sexpr(S_TMP, [(2, 3, None, 11)])
                e(f"s_min_u32 s{S_TMP}, s{S_TMP}, L_tiles-{NAME}_kernel-2048")
                self.addr(S_BAD, S_BAD, S_TMP)
                e("v_lshlrev_b32 v247, 5, v0")
                self.vm(f"global_load_dword v246, v247, {sr(S_BAD)}")
            self.when("s_cmp_eq_u32 s3, 1", pf)
        for k in range(4):
            e(f"s_mov_b32 s{S_SEL+k}, {0x07060500 + k:#x}")
        e(f"s_mov_b32 s{S_LO}, 0x05040100")
        e(f"s_mov_b32 s{S_HI}, 0x07060302")
        e(f"s_mov_b32 s{S_X0}, 0x0c0c0400")
        e(f"s_mov_b32 s{S_SC}, {f2u(SCALE):#x}")
        e(f"s_mov_b32 s{S_EVEN}, 0x55555555")
        e(f"s_mov_b32 s{S_EVEN+1}, 0x55555555")

    def settag(self):
        self.e(f"s_add_u32 s{S_T}, s{S_E}, 0x01010101")
        self.e(f"v_mov_b32 v{V_T}, s{S_T}")
        self.e(f"s_lshr_b32 s{S_X1}, s{S_T}, 16")
        self.e(f"s_and_b32 s{S_X1}, s{S_X1}, 0xff00")
        self.e(f"s_and_b32 s{S_X2}, s{S_T}, 0xff")
        self.e(f"s_or_b32 s{S_X1}, s{S_X1}, s{S_X2}")

    def p1_issue(self, sSl, sW, sX, xr, wr, first=True):
        e = self.e
        if first:
            e(f"v_lshlrev_b32 v4, 15, v{V_J}")
            e(f"v_lshl_add_u32 v4, v{V_N}, 4, v4")
            e(f"v_bfe_u32 v5, v{V_N}, 2, 1")
            e("v_lshlrev_b32 v5, 10, v5")
            e(f"v_lshl_add_u32 v5, v{V_J}, 3, v5")
        self.sexpr(S_TMP, [(sSl, 0, 3, 7), (3, 0, None, 4)])
        self.sexpr(S_A, [(S_TMP, 0, None, 13), (sSl, 2, 31, 8)])
        e(f"s_lshl_b32 s{S_TMP}, s{S_TMP}, 1")
        if first:
            e("s_waitcnt lgkmcnt(0)")
        sW(); sX()
        self.vm(f"global_load_dwordx2 {vr(xr, 2)}, v5, {sr(S_B)}")
        for t in range(4):
            tok = self.ld4(wr + 4 * t, 4, S_A)
            if t < 3:
                self.adv(S_A, 8192)
        if first:
            e("s_barrier")
        return tok

    def p1_plain(self, sSl, W, X, xr, wr, first=True):
        def sW():
            self.e(f"s_add_u32 s{S_A}, s{W}, s{S_A}")
            self.e(f"s_addc_u32 s{S_A+1}, s{W+1}, 0")
        return self.p1_issue(sSl, sW, lambda: self.addr(S_B, X, S_TMP), xr, wr, first)

    def p1_compute(self, sSl, tok, xr, wr, d0, X, lds=0, first=True):
        e = self.e
        e(f"v_lshlrev_b32 v4, 5, v{V_N}")
        e(f"v_lshl_add_u32 v4, v{V_J}, 9, v4")
        self.sexpr(S_TMP, [(3, 0, None, 10)], lds)
        e(f"v_add_u32 v4, s{S_TMP}, v4")
        self.vmwait(tok)
        for i in range(8):
            t = X + 2 * (i & 3)
            self.frag(t, wr, i, 4)
            e(f"v_mfma_f32_16x16x16_bf16 {vr(d0+4*i,4)}, {vr(xr,2)}, {vr(t,2)}, 0")
        self.exec_set(0xffffffff, 0)
        for i in range(0, 8, 2):
            self.ds(f"ds_write2_b32 v4, v{d0+4*i}, v{d0+4*i+4} offset0:{i} offset1:{i+1}")
        self.exec_all()
        e("s_waitcnt lgkmcnt(0)")
        if first:
            self.settag()
        e("s_barrier")

        def pub():
            e("v_lshlrev_b32 v4, 4, v0")
            for w in range(8):
                self.ds(f"ds_read_b128 {vr(d0+4*w,4)}, v4 offset:{lds+w*1024}")
            e(f"s_lshl_b32 s{S_TMP}, s{sSl}, 10")
            self.addr(S_B, S_WS, S_TMP, WS_QP)
            e("s_waitcnt lgkmcnt(0)")
            self.tree_add4(d0, 8)
            self.tag4(d0)
            self.vm(f"global_store_dwordx4 v4, {vr(d0,4)}, {sr(S_B)} sc1")

        self.when(f"s_cmp_eq_u32 s3, {PUBW if first else 0}", pub)
        if first:
            self.stamp(1)

    def p1_double(self, off1, off2, pre, d0, lds2):
        e = self.e
        e(f"s_add_u32 s{S_SL}, s2, {off1}")
        e(f"s_add_u32 s{S_SL+1}, s2, {off2}")
        t1 = self.p1_plain(S_SL, S_WQA, S_AX, 8, 16)
        t2 = self.p1_plain(S_SL + 1, S_WQB, S_BX, 10, 32, first=False)
        self.consts()
        pre()
        self.p1_compute(S_SL, t1, 8, 16, d0, 48)
        self.p1_compute(S_SL + 1, t2, 10, 32, d0, 48, lds2, first=False)


class Chunk:
    QS, ST, OS = 8192, 9216, 10240

    def __init__(self, k, nb, extra, KR, VR, QF, SR, ACC, X, VA, CNT, sK, sV, sQ, QG=8):
        self.k, self.nb, self.extra, self.QG = k, nb, extra, QG
        self.KR, self.VR, self.QF, self.SR, self.ACC, self.X = KR, VR, QF, SR, ACC, X
        self.vK, self.vV, self.vQ, self.vF = VA, VA + 1, VA + 2, VA + 3
        self.CNT, self.sK, self.sV, self.sQ = CNT, sK, sV, sQ
        self.sPair, self.sChunk, self.sTile, self.sNx = S_P, S_P + 1, S_P + 2, [S_P + 3, S_P + 5]
        self.ktok, self.vtok = {}, {}

    def ifx(self, i, fn):
        self.k.when(f"s_cmp_lt_u32 s3, s{self.sNx[i]}", fn)

    def setup(self):
        k = self.k; e = k.e
        k.sexpr(S_TMP, [(self.sPair, 0, None, 21), (self.sTile, 0, None, 12)])
        k.addr(self.sK, S_K, S_TMP)
        k.addr(self.sV, S_V, S_TMP)
        a, b = self.vQ, self.vF
        e(f"v_bfe_u32 v{a}, v0, 1, 1")
        e(f"v_lshlrev_b32 v{a}, 11, v{a}")
        e(f"v_bfe_u32 v{b}, v0, 2, 2")
        e(f"v_lshl_add_u32 v{a}, v{b}, 8, v{a}")
        e(f"v_lshl_add_u32 v{a}, v{V_J}, 5, v{a}")
        e(f"v_and_b32 v{b}, 1, v0")
        e(f"v_lshl_add_u32 v{self.vK}, v{b}, 4, v{a}")
        e(f"v_lshlrev_b32 v{self.vV}, 4, v0")
        e(f"v_lshlrev_b32 v{self.vQ}, 10, v{V_J}")
        e(f"v_lshl_add_u32 v{self.vQ}, v{V_N}, 4, v{self.vQ}")

    def qaddr(self):
        k = self.k
        k.sexpr(S_TMP, [(self.sPair, 0, 7, 14), (3, 1, None, 12), (self.sPair, 3, None, 9), (3, 0, 1, 8)])
        k.addr(self.sQ, S_WS, S_TMP, WS_QP + 128 * 1024)

    def kload(self, t, d=0, lo=0, hi=4):
        for ks in range(lo, hi):
            self.k.throttle(d)
            r = (ks >> 1) + 2 * (ks & 1)
            self.ktok[t] = self.k.ld4(self.KR[t] + 4 * r, self.vK, self.sK, (ks >> 1) * 1024 + (ks & 1) * 128)
        if hi == 4:
            self.k.adv(self.sK, 4096)

    def vload(self, t, d=0, lo=0, hi=4):
        for i in range(lo, hi):
            self.k.throttle(d)
            self.vtok[t] = self.k.ld4(self.VR[t] + 4 * i, self.vV, self.sV, i * 1024)
        if hi == 4:
            self.k.adv(self.sV, 4096)

    def qissue(self):
        return self.k.ld4(self.QG, self.vQ, self.sQ, 0, "sc1")

    def qpiece(self, tok=None):
        k = self.k; e = k.e
        g = self.QG
        k.poll(self.qissue, lambda: k.chk4(g, 4, True), pre_issued=tok)
        k.xrow("v_add_f32", [g, g + 1, g + 2, g + 3], [12, 13, 14, 15])
        e(f"v_cvt_pk_bf16_f32 v{g}, v{g}, v{g+1}")
        e(f"v_cvt_pk_bf16_f32 v{g+1}, v{g+2}, v{g+3}")
        e(f"s_lshl_b32 s{S_TMP}, s3, 7")
        e(f"v_lshlrev_b32 v4, 3, v{V_N}")
        e(f"v_add_u32 v4, s{S_TMP}, v4")
        k.exec_set(0xffff, 0)
        k.ds(f"ds_write_b64 v4, {vr(g,2)} offset:{self.QS}")
        k.arrive(self.CNT)

    def qread(self):
        k = self.k; e = k.e
        k.await_cnt(self.CNT, 8)
        e(f"v_lshrrev_b32 v4, 2, v{V_N}")
        e("v_lshlrev_b32 v4, 8, v4")
        e(f"v_lshl_add_u32 v4, v{V_J}, 5, v4")
        for ks in range(4):
            k.ds(f"ds_read_b128 {vr(self.QF+4*ks,4)}, v4 offset:{self.QS+(ks>>1)*128+(ks&1)*16}")
        for r in range(4 * self.extra):
            e(f"v_mov_b32 v{self.SR+4*self.nb+r}, 0xff800000")

    def qk(self, t):
        k = self.k
        k.vmwait(self.ktok[t])
        k0, x = self.KR[t], self.X + 8 * (t & 1)
        k.swap_pairs([(x, k0, k0 + 4), (x + 4, k0 + 8, k0 + 12)])
        d = vr(self.SR + 4 * t, 4)
        for ks, f in enumerate((x, k0 + 4, x + 4, k0 + 12)):
            k.e(f"v_mfma_f32_16x16x32_bf16 {d}, {vr(f,4)}, {vr(self.QF+4*ks,4)}, {'0' if ks == 0 else d}")

    def softmax(self):
        k = self.k; e = k.e
        SR = self.SR
        n = 4 * (self.nb + self.extra)
        k.chain("v_max3_f32", "v_max_f32", 4, range(SR, SR + n))
        k.xrow("v_max_f32", [4], [5])
        e(f"v_mul_f32 v4, s{S_SC}, v4")
        for i in range(n):
            e(f"v_fma_f32 v{SR+i}, v{SR+i}, s{S_SC}, -v4")
        for i in range(n):
            e(f"v_exp_f32 v{SR+i}, v{SR+i}")
        k.chain(None, "v_add_f32", 5, range(SR, SR + n))
        for i in range(n // 2):
            e(f"v_cvt_pk_bf16_f32 v{SR+i}, v{SR+2*i}, v{SR+2*i+1}")
        k.xrow("v_add_f32", [5], [6])
        e(f"s_lshl_b32 s{S_TMP}, s3, 5")
        e(f"v_lshlrev_b32 v6, 1, v{V_N}")
        e(f"v_add_u32 v6, s{S_TMP}, v6")
        k.exec_set(0x1111, 0)
        k.ds(f"ds_write_b64 v6, v[4:5] offset:{self.ST}")
        k.arrive(self.CNT + 4)

    def pv(self, t, n, first=False):
        k = self.k
        k.vmwait(self.vtok[t + n - 1])
        for i in range(8):
            x = self.X + 4 * (i & 3)
            k.frag(x, self.VR[t], i, 4 * n)
            d = vr(self.ACC + 4 * i, 4)
            op = "v_mfma_f32_16x16x32_bf16" if n == 2 else "v_mfma_f32_16x16x16_bf16"
            k.e(f"{op} {d}, {vr(self.SR+2*t,2*n)}, {vr(x,2*n)}, {'0' if first else d}")

    def factor(self, T0):
        k = self.k; e = k.e
        k.await_cnt(self.CNT + 4, 8)
        e(f"v_lshlrev_b32 v6, 3, v{V_J}")
        for w in range(8):
            k.ds(f"ds_read_b64 {vr(T0+2*w,2)}, v6 offset:{self.ST+w*32}")
        e(f"s_lshl_b32 s{S_TMP}, s3, 5")
        e(f"v_add_u32 v6, s{S_TMP}, v6")
        k.ds(f"ds_read_b64 v[4:5], v6 offset:{self.ST}")
        k.lgwait()
        k.chain("v_max3_f32", "v_max_f32", 7, range(T0, T0 + 16, 2))
        for w in range(8):
            e(f"v_sub_f32 v{T0+2*w}, v{T0+2*w}, v7")
        e("v_sub_f32 v4, v4, v7")
        for w in range(8):
            e(f"v_exp_f32 v{T0+2*w}, v{T0+2*w}")
        e("v_exp_f32 v4, v4")
        e(f"v_mul_f32 v5, v{T0}, v{T0+1}")
        for w in range(1, 8):
            e(f"v_fmac_f32 v5, v{T0+2*w}, v{T0+2*w+1}")
        e("v_rcp_f32 v6, v5")
        e("v_log_f32 v5, v5")
        e(f"v_mul_f32 v{self.vF}, v4, v6")

        def lse():
            for i in range(4):
                e(f"v_add_f32 v{8+i}, v5, v7")
            k.tag4(8)
            k.sexpr(S_TMP, [(self.sPair, 0, 7, 11), (self.sPair, 3, None, 8), (self.sChunk, 0, None, 4)])
            k.addr(self.sQ, S_WS, S_TMP, WS_LSEB)
            e(f"v_lshlrev_b32 v4, 9, v{V_J}")
            k.exec_set(0x00010001, 0x00010001)
            k.vm(f"global_store_dwordx4 v4, v[8:11], {sr(self.sQ)} sc1")
            k.exec_all()

        k.when(f"s_cmp_eq_u32 s3, {PUBW}", lse)
        k.sexpr(S_TMP, [(self.sPair, 0, 7, 3), (3, 0, 1, 2), (self.sPair, 3, None, 0)])
        e(f"s_mul_i32 s{S_TMP}, s{S_TMP}, {NCB}")
        e(f"s_add_u32 s{S_TMP}, s{S_TMP}, s{self.sChunk}")
        e(f"s_lshl_b32 s{S_TMP}, s{S_TMP}, 9")
        k.addr(self.sQ, S_WS, S_TMP, WS_OP)
        e("v_lshrrev_b32 v4, 5, v0")
        e(f"v_mul_u32_u24 v4, {2*NCB*512}, v4")
        e("v_and_b32 v5, 31, v0")
        e(f"v_lshl_add_u32 v{self.vQ}, v5, 4, v4")
        e(f"s_lshl_b32 s{S_TMP}, s3, 11")
        e(f"v_lshlrev_b32 v4, 9, v{V_J}")
        e(f"v_lshl_add_u32 v4, v{V_N}, 5, v4")
        e(f"v_add_u32 v{self.vK}, s{S_TMP}, v4")
        k.sexpr(S_TMP, [(3, 0, 1, 10)])
        e(f"v_add_u32 v{T0}, s{S_TMP}, v{self.vV}")
        self.vR = T0

    def finish(self, T0, st):
        k = self.k; e = k.e
        k.stamp(st)
        T0 += 4
        for i in range(8):
            e(f"v_mul_f32 v{T0+i}, v{self.vF}, v{self.ACC+4*i}")
        k.ds(f"ds_write_b128 v{self.vK}, {vr(T0,4)} offset:{self.OS}")
        k.ds(f"ds_write_b128 v{self.vK}, {vr(T0+4,4)} offset:{self.OS+16}")
        k.barrier()
        e("s_cmp_lt_u32 s3, 6")
        e("s_cbranch_scc1 L_fin")
        for w in range(8):
            k.ds(f"ds_read_b128 {vr(T0+4*w,4)}, v{self.vR} offset:{self.OS+w*2048}")
        k.lgwait()
        k.tree_add4(T0, 8)
        k.tag4(T0)
        k.vm(f"global_store_dwordx4 v{self.vQ}, {vr(T0,4)}, {sr(self.sQ)} sc1")
        k.stamp(st + 1)
        e("s_branch L_fin")


def role_B(k):
    e, o = k.e, k.o
    D1, D, DV, SW = o.get("depth_b1", 4), o.get("depth_b", 6), o.get("depth_v", 8), o.get("b_sw", 2)
    KR = [160 + 16 * t for t in range(6)] + [144]
    VR = [16, 32, KR[0], KR[1], KR[2], KR[3], KR[4]]
    CNT, QS2, UK = 9728, 9856, 144
    c = Chunk(k, 5, 2, KR, VR, QF=128, SR=100, ACC=64, X=48, VA=96, CNT=CNT, sK=S_C, sV=S_D, sQ=S_A)
    sI = S_P + 4
    dep = lambda t: D1 if t < SW else D
    npre, bpre = o.get("p2_at", 2), o.get("b_pre", 1)

    def params():
        e("s_waitcnt lgkmcnt(0)")
        e(f"s_bfe_u32 s{c.sNx[0]}, s{c.sTile}, 0x40010")
        e(f"s_bfe_u32 s{c.sNx[1]}, s{c.sTile}, 0x40014")
        e(f"s_bfe_u32 s{c.sPair}, s{c.sTile}, 0x40018")
        e(f"s_lshr_b32 s{c.sChunk}, s{c.sTile}, 28")
        e(f"s_and_b32 s{c.sTile}, s{c.sTile}, 0xffff")
        e(f"s_mul_i32 s{S_TMP}, s3, 5")
        e(f"s_add_u32 s{c.sTile}, s{c.sTile}, s{S_TMP}")
        for i in range(2):
            e(f"s_min_u32 s{S_TMP}, s3, s{c.sNx[i]}")
            e(f"s_add_u32 s{c.sTile}, s{c.sTile}, s{S_TMP}")
        c.setup()
        for r in range(124, 128):
            e(f"v_mov_b32 v{r}, 0")
        e(f"v_mov_b32 v123, {CNT}")
        k.ds("ds_write_b128 v123, v[124:127]")

    k.label("L_roleB")
    e(f"s_sub_u32 s{sI}, s2, {NT+NA}")
    e(f"s_getpc_b64 {sr(S_C)}")
    k.label("L_pc")
    e(f"s_lshl_b32 s{S_TMP}, s{sI}, 2")
    e(f"s_add_u32 s{S_C}, s{S_C}, L_tiles-L_pc")
    e(f"s_addc_u32 s{S_C+1}, s{S_C+1}, 0")
    e(f"s_load_dword s{c.sTile}, {sr(S_C)}, s{S_TMP}")
    e("s_cmp_ge_u32 s2, 224")
    e("s_cbranch_scc1 L_roleB2")
    base = k.vm_n
    e(f"s_add_u32 s{S_SL}, s{sI}, 64")

    def selW():
        e(f"s_cmp_lt_u32 s{sI}, 64")
        e(f"s_cselect_b32 s{S_C}, s{S_WQA}, s{S_WQB}")
        e(f"s_cselect_b32 s{S_C+1}, s{S_WQA+1}, s{S_WQB+1}")
        e(f"s_cselect_b32 s{S_B}, s{S_AX}, s{S_BX}")
        e(f"s_cselect_b32 s{S_B+1}, s{S_AX+1}, s{S_BX+1}")
        e(f"s_add_u32 s{S_A}, s{S_C}, s{S_A}")
        e(f"s_addc_u32 s{S_A+1}, s{S_C+1}, 0")

    tok = k.p1_issue(S_SL, selW, lambda: k.addr(S_B, S_B, S_TMP), 8, 16)
    k.sexpr(S_TMP, [(sI, 0, 3, 20), (3, 0, None, 17), (sI, 2, None, 8)])
    k.addr(S_C, S_WUK, S_TMP)
    e("v_bfe_u32 v33, v0, 1, 3")
    e("v_lshlrev_b32 v33, 14, v33")
    e(f"v_lshl_add_u32 v33, v{V_J}, 5, v33")
    e("v_and_b32 v32, 1, v0")
    e("v_lshl_add_u32 v33, v32, 4, v33")
    e("v_add_u32 v32, 0x2000, v33")
    for ks in range(4):
        uktok = k.ld4(UK + 4 * ((ks >> 1) + 2 * (ks & 1)), 33 - (ks >> 1), S_C, (ks & 1) * 128)
    k.consts()
    params()
    c.kload(0, 0, 0, bpre)
    k.p1_compute(S_SL, tok, 8, 16, c.ACC, 48)
    c.kload(0, 0, bpre, npre)
    k.sexpr(S_TMP, [(sI, 2, None, 12), (3, 0, 3, 8)])
    k.addr(S_B, S_WS, S_TMP, WS_QP)

    def p2_piece():
        k.poll(lambda: k.ld4(8, c.vQ, S_B, 0, "sc1"), lambda: k.chk4(8, 4, True))
        k.xrow("v_add_f32", [8, 9, 10, 11], [12, 13, 14, 15])
        e("v_cvt_pk_bf16_f32 v8, v8, v9")
        e("v_cvt_pk_bf16_f32 v9, v10, v11")
        k.sexpr(S_TMP, [(3, 0, 3, 7)])
        e(f"v_lshlrev_b32 v4, 3, v{V_N}")
        e(f"v_add_u32 v4, s{S_TMP}, v4")
        k.exec_set(0xffff, 0)
        k.ds(f"ds_write_b64 v4, v[8:9] offset:{QS2}")
        k.arrive(CNT + 8)

    k.vmwait(uktok)
    k.swap_pairs([(48, UK, UK + 4), (52, UK + 8, UK + 12)])
    k.when("s_cmp_ge_u32 s3, 4", p2_piece)
    k.stamp(7)
    k.sexpr(S_TMP, [(sI, 2, None, 11), (sI, 0, 3, 9), (3, 0, None, 6)])
    k.addr(S_B, S_WS, S_TMP, WS_QA)
    e(f"v_lshlrev_b32 v5, 16, v{V_N}")
    e(f"v_lshl_add_u32 v5, v{V_J}, 4, v5")
    e(f"v_and_b32 v4, 1, v{V_N}")
    e("v_lshlrev_b32 v4, 8, v4")
    e(f"v_lshl_add_u32 v4, v{V_J}, 5, v4")
    k.await_cnt(CNT + 8, 4)
    for ks in range(4):
        k.ds(f"ds_read_b128 {vr(c.QF+4*ks,4)}, v4 offset:{QS2+(ks>>1)*128+(ks&1)*16}")
    k.lgwait()
    for ks, f in enumerate((48, UK + 4, 52, UK + 12)):
        e(f"v_mfma_f32_16x16x32_bf16 v[8:11], {vr(f,4)}, {vr(c.QF+4*ks,4)}, {'0' if ks == 0 else 'v[8:11]'}")
    k.tag4(8)
    k.exec_set(0x00030003, 0x00030003)
    k.cond += 1
    k.vm(f"global_store_dwordx4 v5, v[8:11], {sr(S_B)} sc1")
    k.cond -= 1
    k.exec_all()
    k.stamp(8)
    if npre < 4:
        c.kload(0, dep(0), npre, 4)
    e("s_branch L_roleB3")
    end1 = k.vm_n - c.ktok[0]
    k.label("L_roleB2")
    k.vm_n = base
    k.p1_double(-192, 0, lambda: (params(), c.kload(0, 0, 0, bpre)), c.ACC, 32768)
    c.kload(0, dep(0), bpre, 4)
    assert end1 == 0 and k.vm_n == c.ktok[0]
    k.label("L_roleB3")
    c.qaddr()
    qat = o.get("b_qat", 2)
    for t in range(1, 5):
        if t == qat:
            qtok = c.qissue()
        c.kload(t, dep(t))
        if t == o.get("b_qchk", 4):
            k.stamp(2)
            c.qpiece(qtok)
            k.stamp(3)
    c.ifx(0, lambda: c.kload(5, D))
    c.ifx(1, lambda: c.kload(6, D))
    c.qread()
    c.vload(0, DV)
    k.lgwait()
    c.qk(0); c.qk(1)
    c.vload(1, DV)
    c.qk(2); c.qk(3)
    c.vload(2, DV)
    c.qk(4)
    c.ifx(0, lambda: c.qk(5))
    c.ifx(1, lambda: c.qk(6))
    c.vload(3, DV)
    k.stamp(4)
    c.softmax()
    c.vload(4, DV)
    c.pv(0, 2, first=True)
    c.ifx(0, lambda: c.vload(5, DV))
    c.factor(16)
    c.ifx(1, lambda: c.vload(6, DV))
    c.pv(2, 2)
    c.pv(4, 1)
    c.ifx(0, lambda: c.pv(5, 1))
    c.ifx(1, lambda: c.pv(6, 1))
    c.finish(16, 5)


def role_A(k):
    e, o = k.e, k.o
    C0, G, QH, QT, SR, ACC = 128, 64, 64, 96, 48, 128
    Q = 131072
    HOLE, ST1, ST2, CNT = 768, 0, 256, 9728
    VL, VM, VMA = 56, 58, 60
    sB, sCh, sA = S_P + 4, S_P + 5, S_P + 6
    c = Chunk(k, 1, 0, KR=[160], VR=[176], QF=64, SR=48, ACC=96, X=80, VA=28, CNT=CNT, sK=S_C, sV=S_D, sQ=S_B, QG=22)
    k.label("L_roleA")
    e(f"s_sub_u32 s{sA}, s2, {NT}")
    k.sexpr(S_TMP, [(sA, 0, None, 18), (3, 0, None, 14)])
    e("v_bfe_u32 v32, v0, 1, 3")
    e("v_lshlrev_b32 v32, 11, v32")
    e(f"v_lshl_add_u32 v32, v{V_J}, 5, v32")
    e("v_and_b32 v33, 1, v0")
    e("v_lshl_add_u32 v32, v33, 4, v32")
    e("s_waitcnt lgkmcnt(0)")
    SCK = 96 + 2
    k.addr(SCK, S_CKV, S_TMP)
    k.addr(SCK + 2, SCK, None, 131072)
    DA = o.get("depth_a", 5)
    coff = lambda ks: (ks & 1) * 1024 + (ks >> 1) * 128
    CF = []
    for p in range(16):
        CF += [{0: 124, 8: 120}.get(p, C0 + 8 * p - 8), C0 + 8 * p + 4]
    ctok = {}
    st = {"n": 0}

    sVal, sIss = 92, 93
    dyn = {"lo": 99}

    def cload(n):
        m = (n & ~3) | ((n & 1) << 1) | ((n >> 1) & 1)
        ctok[m] = k.ld4(C0 + 4 * m, 32, SCK if n < 16 else SCK + 2, coff(m & 15))

    def pump(upto, d=0):
        while st["n"] < min(upto, 40):
            n = st["n"]
            if n < 32:
                if n >= dyn["lo"]:
                    lab = k.newlabel("L_have")
                    e(f"s_cmp_gt_u32 s{sIss}, {n}")
                    e(f"s_cbranch_scc1 {lab}")
                    cload(n)
                    k.label(lab)
                else:
                    cload(n)
            elif n < 36:
                c.kload(0, d, n - 32, n - 31)
            else:
                c.vload(0, d, n - 36, n - 35)
            st["n"] += 1

    pump(DA)
    k.consts()
    e(f"s_lshr_b32 s{sB}, s{sA}, 5")
    e(f"s_and_b32 s{sCh}, s{sA}, 31")
    e(f"v_bfe_u32 v4, v{V_N}, 1, 2")
    e(f"v_and_b32 v5, 3, v{V_N}")
    e("v_lshl_add_u32 v4, v5, 2, v4")
    e(f"v_lshlrev_b32 v5, 1, v{V_J}")
    e("v_xor_b32 v4, v4, v5")
    e(f"s_lshl_b32 s{S_TMP}, s3, 14")
    e(f"v_lshlrev_b32 v5, 10, v{V_N}")
    e(f"v_add_u32 v5, s{S_TMP}, v5")
    e("v_lshl_add_u32 v40, v4, 4, v5")
    kx = lambda q: (q >> 1) * 128 + (q & 1) * 16
    for q in range(1, 4):
        e(f"v_xor_b32 v{40+q}, {kx(q)}, v40")
    k.sexpr(S_TMP, [(sB, 0, None, 16), (3, 0, None, 13)])
    k.addr(S_A, S_WS, S_TMP, WS_QA)
    k.addr(S_B, S_A, None, 4096)
    e("v_lshlrev_b32 v33, 4, v0")
    e("v_lshlrev_b32 v34, 7, v0")
    e(f"v_lshlrev_b32 v4, 1, v{V_J}")
    e(f"v_xor_b32 v4, v4, v{V_N}")
    e(f"v_lshlrev_b32 v5, 10, v{V_N}")
    e(f"v_add_u32 v5, {Q}, v5")
    e("v_lshl_add_u32 v44, v4, 4, v5")
    for q in range(1, 4):
        e(f"v_xor_b32 v{44+q}, {kx(q)}, v44")
    e(f"v_and_b32 v4, 7, v0")
    e("v_lshl_add_u32 v35, v4, 5, v5")
    e(f"s_lshl_b32 s{S_TMP}, s3, 2")
    e(f"v_add_u32 v36, s{S_TMP}, v35")
    e("v_and_b32 v6, 31, v0")
    e("v_lshlrev_b32 v6, 10, v6")
    e(f"v_add_u32 v6, {Q}, v6")
    e("v_lshl_add_u32 v37, v4, 5, v6")
    e(f"v_lshrrev_b32 v7, 1, v{V_J}")
    e(f"s_lshl_b32 s{S_TMP}, s3, 1")
    e(f"v_add_u32 v7, s{S_TMP}, v7")
    e(f"v_xor_b32 v7, v7, v{V_N}")
    e("v_lshl_add_u32 v7, v7, 4, v5")
    e(f"v_and_b32 v8, 1, v{V_J}")
    e("v_lshl_add_u32 v38, v8, 3, v7")
    e("v_lshrrev_b32 v4, 5, v0")
    e(f"v_xor_b32 v7, v4, v{V_N}")
    e("v_lshl_add_u32 v20, v7, 4, v6")
    e("v_bfe_u32 v5, v0, 2, 2")
    e("v_lshl_add_u32 v6, v4, 3, v5")
    e("v_lshlrev_b32 v6, 10, v6")
    e("v_and_b32 v7, 1, v0")
    e("v_lshl_add_u32 v6, v7, 3, v6")
    k.sexpr(S_TMP, [(3, 1, None, 8)])
    e(f"v_add_u32 v6, s{S_TMP}, v6")
    e("v_bfe_u32 v7, v0, 4, 1")
    e("v_bfe_u32 v8, v0, 1, 1")
    e("v_lshl_add_u32 v7, v7, 1, v8")
    k.sexpr(S_TMP, [(3, 0, 1, 3)])
    e(f"v_add_u32 v7, s{S_TMP}, v7")
    e("v_lshrrev_b32 v8, 1, v5")
    e("v_lshlrev_b32 v5, 2, v5")
    e("v_xor_b32 v7, v7, v5")
    e("v_xor_b32 v7, v7, v8")
    for mt in range(2):
        for ee in range(2):
            r = 16 + 2 * mt + ee
            e(f"v_xor_b32 v{r}, {4*mt + 2*ee}, v7")
            e(f"v_lshl_add_u32 v{r}, v{r}, 4, v6")
            if ee:
                e(f"v_add_u32 v{r}, 4096, v{r}")
    e(f"s_lshr_b32 s{c.sPair}, s{sA}, 2")
    k.sexpr(c.sChunk, [(sA, 0, 3, 0)], 10)
    k.sexpr(c.sTile, [(sA, 0, 3, 3), (3, 0, None, 0)], 480)
    c.setup()
    e("s_waitcnt lgkmcnt(0)")
    k.settag()

    def cwrite(ks):
        k.ds(f"ds_write_b128 v{40+(ks&3)}, {vr(CF[ks],4)} offset:{((ks&15)>>2)*256}")

    def qload(q):
        return k.ld4(G + 4 * q, 33, S_A if q < 4 else S_B, (q & 3) * 1024, "sc1")

    gat = o.get("a_gat", 7)
    for p in range(8):
        pump(2 * p + 2 + DA)
        if p == gat:
            for q in range(8 if o.get("nodep", 0) < 2 else 1):
                gtok = qload(q)
        k.vmwait(ctok[2 * p + 1])
        k.swap_pairs([(CF[2 * p], C0 + 8 * p, C0 + 8 * p + 4)])
        cwrite(2 * p); cwrite(2 * p + 1)
    k.stamp(2)
    n0, step = st["n"], o.get("a_step", 3)
    top, chk, done = k.newlabel("L_qa"), k.newlabel("L_qachk"), k.newlabel("L_qaok")
    e(f"s_mov_b32 s{sVal}, 0")
    e(f"s_mov_b32 s{sIss}, {n0}")
    e(f"s_mov_b32 s{S_SPIN}, {SPIN_MAX}")
    k.vmwait(gtok)
    e(f"s_branch {chk}")
    k.label(top)
    k.cond += 1
    e(f"s_sub_u32 s{S_SPIN}, s{S_SPIN}, 1")
    e(f"s_cbranch_scc1 {done}")
    for q in range(8):
        lab = k.newlabel("L_qsk")
        e(f"s_bitcmp1_b32 s{sVal}, {q}")
        e(f"s_cbranch_scc1 {lab}")
        qload(q)
        k.label(lab)
    full, w0 = k.newlabel("L_qfull"), k.newlabel("L_qw0")
    e(f"s_cmp_gt_u32 s{sIss}, {32 - step}")
    e(f"s_cbranch_scc1 {w0}")
    for g in range(n0, 32 - step + 1, step):
        lab = k.newlabel("L_qp")
        e(f"s_cmp_lg_u32 s{sIss}, {g}")
        e(f"s_cbranch_scc1 {lab}")
        for n in range(g, g + step):
            cload(n)
        k.label(lab)
    e(f"s_add_u32 s{sIss}, s{sIss}, {step}")
    e(f"s_waitcnt vmcnt({step})")
    e(f"s_branch {chk}")
    k.label(w0)
    e("s_waitcnt vmcnt(0)")
    k.label(chk)
    for q in range(8):
        k.chk4(G + 4 * q, 4 + (q & 1), True)
        e(f"s_cmp_eq_u64 {sr(S_BAD)}, 0")
        e(f"s_cselect_b32 s{S_TMP}, {1 << q}, 0")
        e(f"s_or_b32 s{sVal}, s{sVal}, s{S_TMP}")
    e(f"s_cmp_lg_u32 s{sVal}, 0xff")
    e(f"s_cbranch_scc1 {top}")
    k.cond -= 1
    k.label(done)
    dyn["lo"] = n0
    k.stamp(3)
    e("v_lshrrev_b32 v4, 1, v0")
    k.sexpr(S_TMP, [(3, 0, 3, 2)])
    e(f"v_xor_b32 v4, s{S_TMP}, v4")
    e("v_and_b32 v5, 1, v0")
    e("v_lshlrev_b32 v5, 3, v5")
    e("v_lshl_add_u32 v4, v4, 4, v5")
    k.sexpr(S_TMP, [(3, 0, None, 12)], Q)
    e(f"v_add_u32 v4, s{S_TMP}, v4")
    for q in range(8):
        hh, half = q >> 1, q & 1
        if half == 0:
            e(f"v_xor_b32 v5, {hh*16}, v4")
        e(f"v_cvt_pk_bf16_f32 v{G+4*q}, v{G+4*q}, v{G+4*q+1}")
        e(f"v_cvt_pk_bf16_f32 v{G+4*q+1}, v{G+4*q+2}, v{G+4*q+3}")
        k.ds(f"ds_write_b64 v5, {vr(G+4*q,2)} offset:{hh*1024+half*512}")
    k.barrier()
    tk = {}
    qreg = lambda ks, hh: (QH + 8 * (ks - 12) if ks >= 12 else QT + 8 * (ks % 3)) + 4 * hh

    def qread(ks):
        for hh in range(2):
            tk[ks] = k.ds(f"ds_read_b128 {vr(qreg(ks,hh),4)}, v{44+(ks&3)} offset:{hh*16384+(ks>>2)*256}")

    def qkmfma(rnd, ks):
        for hh in range(2):
            d = vr(SR + 4 * hh, 4)
            e(f"v_mfma_f32_16x16x32_bf16 {d}, {vr(CF[16*rnd+ks],4)}, {vr(qreg(ks,hh),4)}, {'0' if ks == 0 else d}")

    qread(0); qread(1)
    for ks in range(16):
        if ks + 2 < 16:
            qread(ks + 2)
        k.lgwait(tk[ks])
        qkmfma(0, ks)
        if ks & 3 == 2:
            pump(min(st["n"] + 1, 32))
    k.stamp(4)

    def softmax(rnd):
        so = HOLE if rnd == 0 else ST1
        for hh in range(2):
            k.chain("v_max3_f32", "v_max_f32", 4 + hh, range(SR + 4 * hh, SR + 4 * hh + 4))
        k.xrow("v_max_f32", [4, 5], [6, 7])
        k.barrier()
        k.exec_set(0xffff, 0)
        for hh in range(2):
            k.ds(f"ds_write_b32 v36, v{4+hh} offset:{so+hh*16384}")
        k.exec_all()
        if rnd:
            pump(36)
            c.qaddr()
            st["q"] = c.qissue()
        else:
            pump(min(st["n"] + 2, 32))
        k.barrier()
        T = QT
        for hh in range(2):
            for q in range(2):
                k.ds(f"ds_read_b128 {vr(T+8*hh+4*q,4)}, v35 offset:{so+hh*16384+q*16}")
        for q in range(2):
            k.ds(f"ds_read_b128 {vr(T+16+4*q,4)}, v37 offset:{so+q*16}")
        k.lgwait()
        for i, dst in enumerate((4, 5, 6)):
            k.chain("v_max3_f32", "v_max_f32", dst, range(T + 8 * i, T + 8 * i + 8))
            e(f"v_mul_f32 v{dst}, s{S_SC}, v{dst}")
        if rnd == 0:
            k.barrier()
        else:
            for i, old in enumerate((VM, VM + 1, VMA)):
                e(f"v_max_f32 v{4+i}, v{4+i}, v{old}")
                e(f"v_sub_f32 v{8+i}, v{old}, v{4+i}")
            for i in range(3):
                e(f"v_exp_f32 v{8+i}, v{8+i}")
        for i in range(8):
            e(f"v_fma_f32 v{SR+i}, v{SR+i}, s{S_SC}, -v{4+(i>>2)}")
        for i in range(8):
            e(f"v_exp_f32 v{SR+i}, v{SR+i}")
        for hh in range(2):
            if rnd == 0:
                k.chain(None, "v_add_f32", VL + hh, range(SR + 4 * hh, SR + 4 * hh + 4))
            else:
                e(f"v_fma_f32 v{VL+hh}, v{VL+hh}, v{8+hh}, v{SR+4*hh}")
                for i in range(1, 4):
                    e(f"v_add_f32 v{VL+hh}, v{VL+hh}, v{SR+4*hh+i}")
        for i in range(4):
            e(f"v_cvt_pk_bf16_f32 v{SR+i}, v{SR+2*i}, v{SR+2*i+1}")
        for hh in range(2):
            k.ds(f"ds_write_b64 v38, {vr(SR+2*hh,2)} offset:{HOLE+hh*16384}")
        e(f"v_mov_b32 v{VMA}, v6")
        if rnd == 0:
            e(f"v_mov_b32 v{VM}, v4")
            e(f"v_mov_b32 v{VM+1}, v5")
            pump(min(st["n"] + 1, 32))
        else:
            k.xrow("v_add_f32", [VL, VL + 1], [4, 5])
            k.exec_set(0xffff, 0)
            for hh in range(2):
                k.ds(f"ds_write_b32 v36, v{VL+hh} offset:{ST2+hh*16384}")
            k.exec_all()
            for i in range(32):
                e(f"v_mul_f32 v{ACC+i}, v10, v{ACC+i}")
        k.barrier()

    FR = [QT, QT + 12, 4]

    def pvround(rnd):
        tk = {}

        def rd(u):
            f = FR[u % 3]
            if u == 4:
                for r in range(16, 20):
                    e(f"v_add_u32 v{r}, 0x10000, v{r}")
            e(f"v_xor_b32 v21, {u*32}, v20")
            k.ds(f"ds_read_b128 {vr(f+8,4)}, v21 offset:{HOLE}")
            for mt in range(2):
                for ee in range(2):
                    tk[u] = k.ds(f"ds_read_b64_tr_b16 {vr(f+4*mt+2*ee,2)}, v{16+2*mt+ee} offset:{(u&3)*16384}")

        rd(0); rd(1)
        for u in range(8):
            if u + 2 < 8:
                rd(u + 2)
            k.lgwait(tk[u])
            f = FR[u % 3]
            for mt in range(2):
                d = vr(ACC + 16 * mt, 16)
                e(f"v_mfma_f32_32x32x16_bf16 {d}, {vr(f+4*mt,4)}, {vr(f+8,4)}, {'0' if (rnd == 0 and u == 0) else d}")
            if rnd == 0 and u & 1:
                pump(min(st["n"] + 1, 32))
        if rnd == 0:
            for r in range(16, 20):
                e(f"v_subrev_u32 v{r}, 0x10000, v{r}")

    softmax(0)
    pvround(0)
    k.stamp(5)
    k.barrier()
    qread(0); qread(1)
    for p in range(8, 16):
        ks = 2 * (p - 8)
        pump(min(2 * p + 2 + DA, 32))
        k.vmwait(ctok[2 * p + 1])
        k.swap_pairs([(CF[2 * p], C0 + 8 * p, C0 + 8 * p + 4)])
        for kk in (ks, ks + 1):
            if kk + 2 < 12:
                qread(kk + 2)
            if kk < 12:
                k.lgwait(tk[kk])
            qkmfma(1, kk)
        cwrite(2 * p); cwrite(2 * p + 1)
    k.stamp(6)
    softmax(1)
    pvround(1)
    k.stamp(10)
    for q in range(2):
        k.ds(f"ds_read_b128 {vr(64+4*q,4)}, v37 offset:{ST2+q*16}")
    e("v_and_b32 v4, 31, v0")
    k.sexpr(S_TMP, [(3, 0, 1, 3)])
    e(f"v_xor_b32 v6, s{S_TMP}, v{V_N}")
    e("v_lshlrev_b32 v6, 4, v6")
    e("v_lshl_add_u32 v6, v4, 10, v6")
    e("v_lshrrev_b32 v7, 5, v0")
    e("v_lshl_add_u32 v6, v7, 3, v6")
    k.sexpr(S_TMP, [(3, 1, None, 8)], Q)
    e(f"v_add_u32 v6, s{S_TMP}, v6")
    k.sexpr(S_TMP, [(3, 0, None, 18), (sB, 0, None, 15), (sCh, 0, None, 10)])
    k.addr(S_A, S_WS, S_TMP, WS_LATP)
    k.sexpr(S_TMP, [(3, 0, 3, 2)])
    e(f"v_xor_b32 v4, s{S_TMP}, v0")
    e("v_lshlrev_b32 v4, 4, v4")
    k.sexpr(S_TMP, [(3, 0, None, 12)], Q)
    e(f"v_add_u32 v4, s{S_TMP}, v4")
    for r in range(12, 16):
        e(f"v_mov_b32 v{r}, 0")
    e(f"v_mov_b32 v11, {CNT}")
    k.lgwait()
    k.chain(None, "v_add_f32", 27, range(64, 72))
    e("v_rcp_f32 v10, v27")
    e("v_log_f32 v27, v27")
    e(f"v_add_f32 v26, v{VMA}, v27")
    e("s_barrier")
    k.ds("ds_write_b128 v11, v[12:15]")
    for g in range(8):
        for i in range(4):
            e(f"v_mul_f32 v{ACC+4*g+i}, v10, v{ACC+4*g+i}")
        e(f"v_cvt_pk_bf16_f32 v{ACC+4*g}, v{ACC+4*g}, v{ACC+4*g+1}")
        e(f"v_cvt_pk_bf16_f32 v{ACC+4*g+1}, v{ACC+4*g+2}, v{ACC+4*g+3}")
        e(f"v_xor_b32 v{40+g}, {g*16}, v6")
        k.ds(f"ds_write_b64 v{40+g}, {vr(ACC+4*g,2)}")
    k.barrier()
    tk = []
    for q in range(4):
        e(f"v_xor_b32 v{16+q}, {q*16}, v4")
        tk.append(k.ds(f"ds_read_b128 {vr(192+4*q,4)}, v{16+q} offset:{q*1024}"))
    for q in range(4):
        k.lgwait(tk[q])
        stok = k.vm(f"global_store_dwordx4 v33, {vr(192+4*q,4)}, {sr(S_A)} {['sc1', 'sc1 nt', 'sc0 sc1 nt'][o.get('lat_st', 0)]}")
        if o.get("dupst"):
            k.addr(S_BAD, S_A, None, 2 << 20)
            stok = k.vm(f"global_store_dwordx4 v33, {vr(192+4*q,4)}, {sr(S_BAD)} sc1")
        if q < 3:
            k.adv(S_A, 65536)
    k.stamp(11)
    if o.get("a_vpre", 0):
        pump(40)
    c.qpiece(st["q"])
    c.qread()
    k.sexpr(S_TMP, [(sB, 0, None, 8), (sCh, 0, None, 3)])
    k.addr(S_A, S_WS, S_TMP, WS_LSEA)
    e("v_lshlrev_b32 v40, 9, v0")
    e(f"v_mov_b32 v27, v{V_T}")
    k.lgwait()
    c.qk(0)
    c.softmax()
    k.vmwait(stok)
    e("s_barrier")

    def flag():
        k.exec_set(0xffffffff, 0)
        k.vm(f"global_store_dwordx2 v40, v[26:27], {sr(S_A)} sc1")
        k.exec_all()

    k.when(f"s_cmp_eq_u32 s3, {PUBW}", flag)
    k.stamp(7)
    pump(40)
    c.factor(128)
    c.pv(0, 1, first=True)
    c.finish(128, 8)


def role_T(k):
    e, o = k.e, k.o
    D = o.get("depth_t", 4)
    R = [32 + 32 * i for i in range(7)]
    WOL, CNT, WSC, CS, OB, P1B = 32768, 16384, 16640, 21504, 25600, 8192
    sStr, sW = S_P + 2, S_P + 3
    SF, SO = 86, 88
    k.label("L_roleT")
    k.remap = {11: 2, 12: 3}
    tok = {}

    def oload(n):
        tok["o", n >> 3] = k.ld4(R[5] + 4 * n, 29, S_C, (n & 3) * 1024)
        if n & 3 == 3:
            k.adv(S_C, 4096 if n & 4 == 0 else 4096 * 7)

    def pre():
        k.sexpr(S_TMP, [(2, 0, None, 17), (3, 2, None, 16), (3, 0, 3, 8)])
        k.addr(S_C, S_WOA, S_TMP)
        e(f"v_lshlrev_b32 v{R[4]}, 13, v{V_J}")
        e(f"v_lshl_add_u32 v{R[4]}, v{V_N}, 4, v{R[4]}")
        for r in range(4):
            e(f"v_mov_b32 v{R[4]+4+r}, 0")
        e(f"v_mov_b32 v{R[4]+1}, {CNT}")
        k.ds(f"ds_write_b128 v{R[4]+1}, {vr(R[4]+4,4)}")

    k.p1_double(0, 192, pre, R[1], P1B)
    e(f"v_mov_b32 v29, v{R[4]}")
    for n in range(D):
        oload(n)
    k.sexpr(S_TMP, [(3, 0, 3, 20), (2, 0, None, 8)])
    k.addr(S_A, S_WUV, S_TMP)
    k.sexpr(S_TMP, [(2, 0, None, 17), (3, 0, 3, 8)])
    k.addr(S_B, S_WOB, S_TMP)
    e("s_cmp_lt_u32 s3, 4")
    e(f"s_cselect_b32 s{sW}, s{S_A}, s{S_B}")
    e(f"s_cselect_b32 s{sW+1}, s{S_A+1}, s{S_B+1}")
    e(f"s_cselect_b32 s{sStr}, 13, 10")
    e(f"s_lshl_b32 s{sStr}, 1, s{sStr}")
    e(f"s_lshl_b32 s{S_TMP}, s{sStr}, 3")
    e(f"v_mul_lo_u32 v28, s{S_TMP}, v{V_J}")
    e(f"v_lshl_add_u32 v28, v{V_N}, 4, v28")
    e(f"s_mul_i32 s{S_P+1}, s{sStr}, 25")
    k.sexpr(S_TMP, [(3, 0, 3, 15), (3, 2, None, 14)], WOL)
    e("v_lshlrev_b32 v31, 4, v0")
    e(f"v_add_u32 v30, s{S_TMP}, v31")
    k.sexpr(S_P, [(3, 0, None, 10)], WSC)

    def wload(n, d):
        k.throttle(d)
        tok["w", n >> 3] = k.ld4(R[1] + 4 * n, 28, sW)
        st = S_P + 1 if n & 7 == 7 else sStr
        e(f"s_add_u32 s{sW}, s{sW}, s{st}")
        e(f"s_addc_u32 s{sW+1}, s{sW+1}, 0")

    def operm(g):
        k.vmwait(tok["o", g])
        for i in range(8):
            x = 8 + 4 * (i & 3)
            k.frag(x, R[5 + g], i, 8)
            k.ds(f"ds_write_b128 v30, {vr(x,4)} offset:{g*8192+i*1024}")

    def wperm(g):
        k.vmwait(tok["w", g])
        for i in range(8):
            k.frag(R[g] + 4 * i, R[g + 1], i, 8)

    for n in range(D, 16):
        k.throttle(D)
        oload(n)
        if n == 11:
            operm(0)
    DA_, DB_ = o.get("depth_ta", 4), o.get("depth_tb", 4)
    for n in range(32):
        if DB_ < DA_:
            lab = k.newlabel("L_td")
            e("s_cmp_lt_u32 s3, 4")
            e(f"s_cbranch_scc1 {lab}")
            k.throttle(DB_)
            k.label(lab)
        wload(n, DA_)
        if n == 3:
            operm(1)
            k.arrive(CNT)
        if n & 7 == 3 and n > 8:
            wperm((n >> 3) - 1)
    e(f"v_bfe_u32 v26, v{V_N}, 2, 1")
    e("v_lshlrev_b32 v25, 8, v26")
    e(f"v_lshl_add_u32 v25, v{V_J}, 4, v25")
    e("v_lshlrev_b32 v24, 3, v0")
    e(f"s_lshr_b32 s{S_P+1}, s3, 2")
    k.sexpr(S_TMP, [(S_P + 1, 0, None, 17), (3, 0, 3, 15), (2, 0, None, 7)])
    k.addr(S_C, S_WS, S_TMP, WS_OUTP)
    e(f"v_lshrrev_b32 v4, 1, v{V_N}")
    e("v_lshlrev_b32 v4, 12, v4")
    e(f"v_and_b32 v5, 1, v{V_N}")
    e("v_lshl_add_u32 v4, v5, 5, v4")
    e(f"v_and_b32 v5, 1, v{V_J}")
    e("v_lshl_add_u32 v4, v5, 6, v4")
    e(f"v_lshrrev_b32 v5, 1, v{V_J}")
    e("v_lshl_add_u32 v23, v5, 4, v4")
    e(f"s_mov_b32 s{S_D}, 0")
    e(f"s_mov_b32 s{S_D+1}, -1")
    k.sexpr(S_TMP, [(S_P + 1, 0, None, 17), (2, 0, None, 12)])
    k.addr(SF, S_WS, S_TMP, WS_OUTP)
    k.sexpr(S_TMP, [(S_P + 1, 0, None, 10), (2, 0, None, 5)])
    k.addr(SO, S_OUT, S_TMP)
    e("v_bfe_u32 v4, v0, 2, 1")
    e("v_lshlrev_b32 v4, 11, v4")
    e("v_and_b32 v5, 3, v0")
    e("v_lshl_add_u32 v27, v5, 3, v4")
    if o.get("touch", 0) & 1:
        k.sexpr(S_TMP, [(3, 0, 3, 10)])
        e(f"v_add_u32 v4, s{S_TMP}, v31")
        k.ld4(12, 4, SF, 0, "sc1")
    wperm(3)
    k.stamp(4)
    X = R[4]
    PA = [R[6] + 8 * kg for kg in range(4)]
    PD = [R[5] + 16 + 4 * i for i in range(4)] + [R[6] + 4 + 8 * i for i in range(4)]

    def proj():
        for kg in range(4):
            for i in range(8):
                d = vr(PD[i], 4)
                e(f"v_mfma_f32_16x16x32_bf16 {d}, {vr(PA[kg],4)}, {vr(R[kg]+4*i,4)}, {'0' if kg == 0 else d}")

    def publish():
        for i in range(4):
            e(f"v_cndmask_b32 v{8+i}, v{PD[i]}, v{PD[4+i]}, {sr(S_D)}")
        k.tag4(8)
        k.vm(f"global_store_dwordx4 v23, v[8:11], {sr(S_C)} sc1")

    e("s_cmp_ge_u32 s3, 4")
    e("s_cbranch_scc1 L_tailB")
    base = k.vm_n
    e(f"s_lshl_b32 s{S_TMP}, s2, 9")
    k.addr(S_A, S_WS, S_TMP, WS_LSEA)
    k.sexpr(S_TMP, [(2, 0, None, 16), (3, 0, None, 8)])
    LB = [98, 100, sW, S_B]
    k.addr(LB[0], S_WS, S_TMP, WS_LATP)
    for i in range(1, 4):
        k.addr(LB[i], LB[0], None, (i >> 1) * 32768 + (i & 1) * 4096)
    sIss, sBlk = 92, 94
    top, done = k.newlabel("L_lat"), k.newlabel("L_latok")
    e(f"s_mov_b64 {sr(sIss)}, 0")
    e(f"v_lshlrev_b32 v21, 3, v{V_J}")
    e(f"s_mov_b32 s{S_SPIN}, {SPIN_MAX}")
    k.label(top)
    k.cond += 1
    e(f"s_sub_u32 s{S_SPIN}, s{S_SPIN}, 1")
    e(f"s_cbranch_scc1 {done}")
    if o.get("dbg_sleep"):
        e(f"s_sleep {o['dbg_sleep']}")
    k.vm(f"global_load_dwordx2 v[8:9], v24, {sr(S_A)} sc1")
    e("s_waitcnt vmcnt(0)")
    e(f"v_cmp_ne_u32 {sr(S_BAD)}, v9, v{V_T}" if not o.get("nodep") else f"s_mov_b64 {sr(S_BAD)}, 0")
    e(f"s_nor_b64 {sr(sBlk)}, {sr(S_BAD)}, {sr(sIss)}")
    e(f"s_cbranch_scc0 {top}")
    e(f"s_or_b64 {sr(sIss)}, {sr(sIss)}, {sr(sBlk)}")
    for b_ in range(2):
        skb = k.newlabel("L_lskb")
        e(f"s_cmp_eq_u32 s{sBlk+b_}, 0")
        e(f"s_cbranch_scc1 {skb}")
        e(f"v_lshrrev_b32 v10, v21, s{sBlk+b_}")
        for t in range(8):
            sk = k.newlabel("L_lsk")
            e(f"v_and_b32 v11, {1 << t}, v10")
            e(f"v_cmp_ne_u32 vcc, 0, v11")
            e(f"s_and_saveexec_b64 {sr(S_TMP)}, vcc")
            e(f"s_cbranch_execz {sk}")
            k.ld4(R[5] + 32 * b_ + 4 * t, 29, LB[2 * b_ + (t >> 2)], (t & 3) * 1024, ['sc1', 'sc1 nt', 'sc0 sc1 nt'][o.get('lat_ld', 1)])
            k.label(sk)
            k.exec_all()
        k.label(skb)
    e(f"s_cmp_lg_u64 {sr(sIss)}, -1")
    e(f"s_cbranch_scc1 {top}")
    k.cond -= 1
    k.label(done)
    k.stamp(5)
    if o.get("prio", 0):
        e("s_setprio 2")

    def red32(op, r, tmp):
        for sh in (8, 4, 2, 1):
            e(f"{op}_dpp v{r}, v{r}, v{r} row_ror:{sh} row_mask:0xf bank_mask:0xf")
        k.xrow(op, [r], [tmp], (16,))

    e("v_mov_b32 v10, v8")
    red32("v_max_f32", 10, 11)
    e("v_sub_f32 v8, v8, v10")
    e("v_exp_f32 v8, v8")
    e("v_lshrrev_b32 v4, 5, v0")
    e("v_mov_b32 v10, v8")
    red32("v_add_f32", 10, 11)
    e("v_rcp_f32 v10, v10")
    e("v_lshlrev_b32 v4, 7, v4")
    e("v_mul_f32 v8, v8, v10")
    e("v_cvt_pk_bf16_f32 v9, v8, v8")
    e("v_and_b32 v10, 0xffff0000, v9")
    e("v_sub_f32 v8, v8, v10")
    e("v_cvt_pk_bf16_f32 v10, v8, v8")
    e("v_and_b32 v5, 31, v0")
    e("v_lshl_add_u32 v4, v5, 1, v4")
    e(f"v_add_u32 v4, s{S_P}, v4")
    k.ds("ds_write_b16 v4, v9")
    k.ds("ds_write_b16 v4, v10 offset:64")
    e(f"v_and_b32 v4, 1, v{V_N}")
    e("v_lshlrev_b32 v4, 6, v4")
    e(f"v_lshl_add_u32 v4, v{V_J}, 4, v4")
    e(f"v_add_u32 v4, s{S_P}, v4")
    k.lgwait()
    k.ds("ds_read_b128 v[8:11], v4")
    k.ds("ds_read_b128 v[12:15], v4 offset:128")
    e(f"v_lshlrev_b32 v4, 4, v{V_N}")
    e(f"v_add_u32 v4, s{S_P}, v4")
    e(f"v_add_u32 v5, s{S_P}, v25")
    k.await_cnt(CNT, 8)
    e("s_waitcnt vmcnt(0)")
    k.stamp(6)
    for b_ in range(2):
        for i in range(8):
            x = 16
            k.frag(x, R[5 + b_], i, 8)
            e(f"v_mfma_f32_16x16x32_bf16 {vr(X+4*i,4)}, {vr(8+4*b_,4)}, {vr(x,4)}, 0")
        for i in range(8):
            e(f"v_add_f32 v{X+4*i}, v{X+4*i}, v{X+4*i+1}")
        for i in range(4):
            e(f"v_cvt_pk_bf16_f32 v{R[5+b_]+i}, v{X+8*i}, v{X+8*i+4}")
        k.exec_set(0xffff, 0)
        k.ds(f"ds_write_b128 v4, {vr(R[5+b_],4)} offset:{256+b_*256}")
        k.exec_all()
    k.lgwait()
    AF = R[5]
    for kg in range(4):
        k.ds(f"ds_read_b128 {vr(AF+4*kg,4)}, v5 offset:{256+kg*64}")
    k.sexpr(S_TMP, [(3, 0, None, 10)], CS)
    e(f"v_lshlrev_b32 v4, 5, v{V_N}")
    e(f"v_lshl_add_u32 v4, v{V_J}, 9, v4")
    e(f"v_add_u32 v4, s{S_TMP}, v4")
    k.lgwait()
    for kg in range(4):
        for i in range(8):
            d = vr(X + 4 * i, 4)
            e(f"v_mfma_f32_16x16x32_bf16 {d}, {vr(AF+4*kg,4)}, {vr(R[kg]+4*i,4)}, {'0' if kg == 0 else d}")
    k.sexpr(S_TMP, [(3, 0, None, 15)], WOL)
    e(f"v_add_u32 v30, s{S_TMP}, v31")
    k.exec_set(0xffffffff, 0)
    for i in range(0, 8, 2):
        k.ds(f"ds_write2_b32 v4, v{X+4*i}, v{X+4*i+4} offset0:{i} offset1:{i+1}")
    k.arrive(CNT + 4)
    for f in range(32):
        k.ds(f"ds_read_b128 {vr(R[0]+4*f,4)}, v30 offset:{f*1024}")
    e(f"v_add_u32 v4, {CS}, v31")
    k.stamp(12)
    k.await_cnt(CNT + 4, 4)
    k.stamp(11)
    for w in range(4):
        k.ds(f"ds_read_b128 {vr(X+4*w,4)}, v4 offset:{w*1024}")
    e(f"v_add_u32 v4, s{S_P}, v24")
    k.lgwait()
    k.tree_add4(X, 4)
    e(f"v_cvt_pk_bf16_f32 v8, v{X}, v{X+1}")
    e(f"v_cvt_pk_bf16_f32 v9, v{X+2}, v{X+3}")
    k.ds("ds_write_b64 v4, v[8:9]")
    k.lgwait()
    for kg in range(4):
        k.ds(f"ds_read_b128 {vr(PA[kg],4)}, v5 offset:{kg*64}")
    k.lgwait()
    proj()
    e("s_branch L_proj")
    k.label("L_tailB")
    k.vm_n = base
    Y = R[4]

    def issue_o(i):
        for c in range(4):
            k.ld4(Y + 16 * i + 4 * c, 21 - (c >> 1), S_B, (c & 1) * 512, "sc1")

    def check_o(i):
        k.chkn([Y + 16 * i + 4 * c for c in range(4)], 6, 7)

    def comb(i):
        k.lgwait()
        for r in range(4):
            e(f"v_mul_f32 v{8+r}, v12, v{Y+16*i+r}")
        for c in range(1, 4):
            for r in range(4):
                e(f"v_fmac_f32 v{8+r}, v{12+c}, v{Y+16*i+4*c+r}")

    e(f"s_lshl_b32 s{S_TMP}, s2, 9")
    k.addr(S_A, S_WS, S_TMP, WS_LSEB)
    e("v_lshrrev_b32 v4, 5, v0")
    e("v_lshlrev_b32 v5, 8, v4")
    e(f"v_min_u32 v6, {NCB-1}, v{V_N}")
    e("v_lshl_add_u32 v22, v6, 4, v5")
    e(f"v_cmp_gt_u32 {sr(98)}, {NCB}, v{V_N}")
    e(f"s_mul_i32 s{S_TMP}, s2, {2*NCB*512}")
    k.sexpr(S_P + 2, [(3, 0, 3, 11)])
    e(f"s_add_u32 s{S_TMP}, s{S_TMP}, s{S_P+2}")
    k.addr(S_B, S_WS, S_TMP, WS_OP)
    e(f"v_mul_u32_u24 v4, {NCB*512}, v4")
    e("v_and_b32 v5, 31, v0")
    e("v_lshl_add_u32 v21, v5, 4, v4")
    e("s_cmp_eq_u32 s3, 7")
    e(f"s_cselect_b32 s{S_TMP}, 0, 0x400")
    e(f"v_add_u32 v20, s{S_TMP}, v21")
    k.sexpr(S_TMP, [(3, 0, 3, 10)], WSC + 768)
    e(f"v_lshlrev_b32 v4, 2, v0")
    e(f"v_add_u32 v19, s{S_TMP}, v4")
    e("v_lshrrev_b32 v4, 5, v0")
    e("v_lshlrev_b32 v4, 7, v4")
    k.sexpr(S_P + 2, [(3, 0, 3, 4), (S_TMP, 0, None, 0)])
    e(f"v_add_u32 v18, s{S_P+2}, v4")
    k.sexpr(S_TMP, [(3, 0, 3, 9)], OB)
    e(f"v_add_u32 v17, s{S_TMP}, v24")
    e(f"v_and_b32 v4, 3, v{V_N}")
    e("v_lshl_add_u32 v4, v4, 9, v25")
    e(f"v_add_u32 v16, {OB}, v4")
    if o.get("touch", 0) & 2:
        issue_o(0)
    k.poll_pipe(o.get("np_l", 2), 1, lambda i: k.ld4(Y + 48 + 4 * i, 22, S_A, 0, "sc1"), lambda i: k.chk_full(Y + 48 + 4 * i, 6, 7),
                lambda i: e(f"v_mov_b32 v8, v{Y+48+4*i}"))
    e("v_mov_b32 v9, 0xff800000")
    e(f"v_cndmask_b32 v8, v9, v8, {sr(98)}")
    e("v_mov_b32 v10, v8")
    for sh in (8, 4, 2, 1):
        e(f"v_max_f32_dpp v10, v10, v10 row_ror:{sh} row_mask:0xf bank_mask:0xf")
    e("v_sub_f32 v8, v8, v10")
    e("v_exp_f32 v8, v8")
    e("v_mov_b32 v10, v8")
    for sh in (8, 4, 2, 1):
        e(f"v_add_f32_dpp v10, v10, v10 row_ror:{sh} row_mask:0xf bank_mask:0xf")
    e("v_rcp_f32 v10, v10")
    e("v_mul_f32 v8, v8, v10")
    k.ds("ds_write_b32 v19, v8")
    k.lgwait()
    k.ds("ds_read_b128 v[12:15], v18")
    k.stamp(7)

    k.poll_pipe(o.get("np_o", 2), 4, issue_o, check_o, comb)
    k.stamp(8)
    e("v_cvt_pk_bf16_f32 v8, v8, v9")
    e("v_cvt_pk_bf16_f32 v9, v10, v11")
    k.ds("ds_write_b64 v17, v[8:9]")
    k.arrive(CNT + 8)
    k.await_cnt(CNT + 8, 4)
    k.stamp(11)
    if o.get("prio"):
        e("s_setprio 3")
    for kg in range(4):
        k.ds(f"ds_read_b128 {vr(PA[kg],4)}, v16 offset:{kg*64}")
    k.lgwait()
    proj()
    for i in range(8):
        e(f"v_add_f32 v{PD[i]}, v{PD[i]}, v{PD[i]+1}")
        e(f"v_add_f32 v{PD[i]+2}, v{PD[i]+2}, v{PD[i]+3}")
    for i in range(8):
        e(f"v_add_f32 v{PD[i]}, v{PD[i]}, v{PD[i]+2}")
    k.label("L_proj")
    publish()
    k.stamp(9)
    e("s_and_b32 s62, s3, 3")
    e("s_cbranch_scc1 L_fin")
    F = R[0]

    def issue(i):
        for q in range(4):
            k.ld4(F + 16 * i + 4 * q, 31, SF, q * 1024, "sc1")

    def check(i):
        k.chkn([F + 16 * i + 4 * q for q in range(4)], 6, 7)

    def fin(i):
        for r in range(8):
            e(f"v_add_f32 v{12+r}, v{F+16*i+r}, v{F+16*i+8+r}")

    lab, lab2 = k.newlabel("L_fa"), k.newlabel("L_fb")
    e("s_cmp_eq_u32 s3, 0")
    e(f"s_cbranch_scc1 {lab}")
    k.poll_pipe(o.get("np_f", 2), 4, issue, check, fin)
    e(f"s_branch {lab2}")
    k.label(lab)
    k.poll_pipe(1, 4, issue, check, fin)
    k.label(lab2)
    k.stamp(10)
    k.tree_add4(12, 2)
    for i in range(4):
        e(f"v_add_f32_dpp v{12+i}, v{12+i}, v{12+i} row_ror:8 row_mask:0xf bank_mask:0xf")
    k.xrow("v_add_f32", [12, 13, 14, 15], [16, 17, 18, 19])
    e("v_cvt_pk_bf16_f32 v12, v12, v13")
    e("v_cvt_pk_bf16_f32 v13, v14, v15")
    k.exec_set(0xff, 0)
    k.vm(f"global_store_dwordx2 v27, v[12:13], {sr(SO)}" + (" sc1" if o.get("outsc") else ""))
    e(f"s_or_b32 s{S_TMP}, s2, s3")
    e(f"s_cmp_lg_u32 s{S_TMP}, 0")
    e("s_cbranch_scc1 L_fin")
    k.exec_set(1, 0)
    e("v_mov_b32 v4, 0")
    k.vm(f"global_store_dword v4, v{V_T}, {sr(S_WS)}")
    e("s_branch L_fin")


def finish(k):
    e = k.e
    k.label("L_fin")
    if k.o.get("stamps"):
        k.exec_all()
        k.stamp(15)
        e(f"s_memtime {sr(S_STAMP + 28)}")
        k.sexpr(S_TMP, [(2, 0, None, 10), (3, 0, None, 7)])
        e(f"s_load_dwordx2 {sr(S_WS)}, s[0:1], 104")
        e("s_waitcnt lgkmcnt(0)")
        k.addr(S_A, S_WS, S_TMP, WS_STAMP)
        e("s_waitcnt lgkmcnt(0)")
        e("v_mov_b32 v4, 0")
        k.exec_set(1, 0)
        for i in range(8):
            for q in range(4):
                e(f"v_mov_b32 v{8+q}, s{S_STAMP+4*i+q}")
            e(f"global_store_dwordx4 v4, v[8:11], {sr(S_A)} offset:{i*16}")
    k.label("L_end")
    e("s_endpgm")


def tile_table(o):
    late, par, b2 = o.get("adj_late", 0), o.get("adj_par", 0), o.get("adj_b2", 0)
    kind = lambda i: (i >= 128, (i & 7) >= 4, (i >> 3) & 1 if i < 128 else 0)
    members = [[] for _ in range(16)]
    seen = {}
    for i in range(NB):
        n = seen.get(kind(i), 0)
        seen[kind(i)] = n + 1
        members[n % 16].append(i)
    out = [0] * NB
    for p, m in enumerate(members):
        assert len(m) == 10
        w = []
        for i in m:
            isb2, isl, odd = kind(i)
            a = -late if isl else late
            if isl and not isb2:
                a += par if odd else -par
            w.append(48 + a + (b2 if isb2 else -b2 / 4))
        n = [int(v // 1) for v in w]
        for j in sorted(range(10), key=lambda j: n[j] - w[j])[:480 - sum(n)]:
            n[j] += 1
        assert sum(n) == 480
        st = 0
        for ch, (i, v) in enumerate(zip(m, n)):
            assert 40 <= v <= 56
            out[i] = st | min(v - 40, 8) << 16 | max(v - 48, 0) << 20 | p << 24 | ch << 28
            st += v
    return out


def generate(**opt):
    k = K(opt)
    head = [l.rstrip("\n") for l in open(REF) if l.startswith(";") and "@launch" not in l and "Override" not in l and "grid=ceil" not in l]
    L = k.L
    L += head
    L.append("; @launch grid=(256,1,1) block=(512,1,1) lds=163840")
    L.append('.amdgcn_target "amdgcn-amd-amdhsa--gfx950"')
    L += [".text", f".globl {NAME}_kernel", ".p2align 8", f".type {NAME}_kernel,@function", f"{NAME}_kernel:"]
    if opt.get("stamps"):
        for r in range(S_STAMP, S_STAMP + 32):
            k.e(f"s_mov_b32 s{r}, 0")
    k.prologue()
    k.e(f"s_cmp_ge_u32 s2, {NT+NA}")
    k.e("s_cbranch_scc1 L_roleB")
    k.e(f"s_cmp_ge_u32 s2, {NT}")
    k.e("s_cbranch_scc1 L_roleA")
    base = k.vm_n
    role_T(k)
    k.vm_n = base
    k.remap = {}
    role_A(k)
    k.vm_n = base
    role_B(k)
    finish(k)
    L.append(".p2align 2")
    L.append(".type L_tiles,@object")
    L.append("L_tiles:")
    L += [f".long {w:#x}" for w in tile_table(opt)]
    L += ['.section .rodata,"a"', ".p2align 6", f".amdhsa_kernel {NAME}_kernel",
          "  .amdhsa_next_free_vgpr 256", "  .amdhsa_next_free_sgpr 102", "  .amdhsa_accum_offset 256",
          "  .amdhsa_group_segment_fixed_size 0", "  .amdhsa_kernarg_size 112", "  .amdhsa_user_sgpr_count 2",
          "  .amdhsa_user_sgpr_kernarg_segment_ptr 1", "  .amdhsa_system_sgpr_workgroup_id_x 1", ".end_amdhsa_kernel"]
    return k.text()


if __name__ == "__main__":
    opt = {}
    for a in sys.argv[2:]:
        kk, v = a.split("=")
        opt[kk] = int(v)
    open(sys.argv[1], "w").write(generate(**opt))
```

```python
import sys, struct
from asmlib import Gen, vr, sr

NAME = "concat_heads__compressed_kv_cla__gqa_block_cached__decode"
REF = "cdna_kernels/" + NAME + ".s.ref"

NT, NA, NB = 32, 64, 160
NCB = 14
WS_QP = 0x010000
WS_QA = 0x060000
WS_LSEA = 0x090000
WS_LSEB = 0x0A0000
WS_OP = 0x0B0000
WS_OUTP = 0x140000
WS_LATP = 0x200000
WS_STAMP = 128 << 20
SCALE = (128 ** -0.5) * 1.4426950408889634


def f2u(x):
    return struct.unpack("<I", struct.pack("<f", x))[0]


S_AX, S_CKV, S_WQA, S_WUK, S_WUV, S_WOA, S_BX, S_K, S_V, S_WQB, S_WOB, S_OUT, S_DBG, S_WS = range(4, 32, 2)
S_E, S_T = 32, 33
S_SEL = 34
S_LO, S_HI = 38, 39
S_A, S_B, S_C, S_D = 40, 42, 44, 46
S_X0, S_X1, S_X2 = 48, 49, 50
S_SC = 51
S_SPIN = 52
S_P = 53
S_BAD = 60
S_TMP = 62
S_STAMP = 64
S_EVEN = 96
S_SL = 100
V_L, V_N, V_J, V_T = 0, 1, 2, 3
SPIN_MAX = 1 << 18
PUBW = 7


class K(Gen):
    def __init__(self, opt):
        super().__init__()
        self.o = opt
        self.remap = {}

    def stamp(self, k):
        if self.o.get("stamps"):
            self.e(f"s_memrealtime {sr(S_STAMP + 2 * self.remap.get(k, k))}")

    def addr(self, dst, base, off_s=None, off_i=0):
        if off_s is not None:
            self.e(f"s_add_u32 s{dst}, s{base}, s{off_s}")
            self.e(f"s_addc_u32 s{dst+1}, s{base+1}, 0")
            base = dst
        if off_i or off_s is None:
            self.e(f"s_add_u32 s{dst}, s{base}, {off_i}")
            self.e(f"s_addc_u32 s{dst+1}, s{base+1}, 0")

    def adv(self, a, n):
        self.e(f"s_add_u32 s{a}, s{a}, {n}")
        self.e(f"s_addc_u32 s{a+1}, s{a+1}, 0")

    def sexpr(self, dst, terms, const=0):
        first = True
        for reg, shr, mask, shl in terms:
            t = dst if first else S_TMP + 1
            src = reg
            if shr:
                self.e(f"s_lshr_b32 s{t}, s{src}, {shr}"); src = t
            if mask is not None:
                self.e(f"s_and_b32 s{t}, s{src}, {mask}"); src = t
            if shl or src != t:
                self.e(f"s_lshl_b32 s{t}, s{src}, {shl}")
            if not first:
                self.e(f"s_add_u32 s{dst}, s{dst}, s{t}")
            first = False
        if const:
            self.e(f"s_add_u32 s{dst}, s{dst}, {const}")

    def ld4(self, dst, voff, sbase, off=0, fl="nt"):
        return self.vm(f"global_load_dwordx4 {vr(dst,4)}, v{voff}, {sr(sbase)} offset:{off} {fl}")

    def throttle(self, d):
        if d:
            self.e(f"s_waitcnt vmcnt({d-1})")

    def tag4(self, r):
        for k in range(4):
            self.e(f"v_perm_b32 v{r+k}, v{r+k}, v{V_T}, s{S_SEL+k}")

    def chkn(self, regs, acc, tmp):
        if self.o.get("nodep"):
            self.e(f"s_mov_b64 {sr(S_BAD)}, 0")
            return
        for i, r in enumerate(regs):
            self.e(f"v_perm_b32 v{tmp}, v{r+3}, v{r}, s{S_X0}")
            if len(regs) == 1:
                self.e(f"v_cmp_ne_u32 {sr(S_BAD)}, s{S_X1}, v{tmp}")
                return
            if i == 0:
                self.e(f"v_xor_b32 v{acc}, s{S_X1}, v{tmp}")
            else:
                self.e(f"v_xad_u32 v{acc}, v{tmp}, s{S_X1}, v{acc}")
        self.e(f"v_cmp_ne_u32 {sr(S_BAD)}, 0, v{acc}")

    def chk4(self, r, tmp, first):
        self.chkn([r], tmp, tmp)

    def chk_full(self, r, a, b):
        if self.o.get("nodep"):
            self.e(f"s_mov_b64 {sr(S_BAD)}, 0")
            return
        self.e(f"v_perm_b32 v{a}, v{r+1}, v{r}, s{S_X0}")
        self.e(f"v_perm_b32 v{b}, v{r+3}, v{r+2}, s{S_X0}")
        self.e(f"v_lshl_or_b32 v{a}, v{b}, 16, v{a}")
        self.e(f"v_cmp_ne_u32 {sr(S_BAD)}, v{a}, v{V_T}")

    def poll(self, issue, check, pre_issued=None, light=None):
        top, done = self.newlabel("L_poll"), self.newlabel("L_got")
        self.e(f"s_mov_b32 s{S_SPIN}, {SPIN_MAX}")
        if pre_issued is not None:
            self.vmwait(pre_issued)
            check()
            self.e(f"s_cmp_eq_u64 {sr(S_BAD)}, 0")
            self.e(f"s_cbranch_scc1 {done}")
        self.label(top)
        self.cond += 1
        self.e(f"s_sub_u32 s{S_SPIN}, s{S_SPIN}, 1")
        self.e(f"s_cbranch_scc1 {done}")
        if light:
            light[0]()
            self.e("s_waitcnt vmcnt(0)")
            light[1]()
            self.e(f"s_cmp_eq_u64 {sr(S_BAD)}, 0")
            self.e(f"s_cbranch_scc0 {top}")
        issue()
        self.e("s_waitcnt vmcnt(0)")
        check()
        self.cond -= 1
        self.e(f"s_cmp_eq_u64 {sr(S_BAD)}, 0")
        self.e(f"s_cbranch_scc0 {top}")
        self.label(done)

    def poll_pipe(self, nset, nld, issue, check, finish):
        top, done = self.newlabel("L_pp"), self.newlabel("L_ppok")
        oks = [self.newlabel("L_ppv") for _ in range(nset)]
        self.cond += 1
        self.e(f"s_mov_b32 s{S_SPIN}, {SPIN_MAX}")
        for i in range(nset - 1):
            issue(i)
        self.label(top)
        if self.o.get("dbg_sleep2") and nld == 1:
            self.e(f"s_sleep {self.o['dbg_sleep2']}")
        for i in range(nset):
            issue((i + nset - 1) % nset)
            self.e(f"s_waitcnt vmcnt({nld * (nset - 1)})")
            check(i)
            self.e(f"s_cmp_eq_u64 {sr(S_BAD)}, 0")
            self.e(f"s_cbranch_scc1 {oks[i]}")
        self.e(f"s_sub_u32 s{S_SPIN}, s{S_SPIN}, 1")
        self.e(f"s_cbranch_scc0 {top}")
        for i in reversed(range(nset)):
            self.label(oks[i])
            finish(i)
            if i:
                self.e(f"s_branch {done}")
        self.label(done)
        self.cond -= 1

    def when(self, cmp, fn):
        lab = self.newlabel("L_skip")
        self.e(cmp)
        self.e(f"s_cbranch_scc0 {lab}")
        self.cond += 1
        fn()
        self.cond -= 1
        self.label(lab)

    def arrive(self, cnt):
        self.e("v_mov_b32 v6, 1")
        self.e(f"v_mov_b32 v7, {cnt}")
        self.exec_set(1, 0)
        self.ds("ds_add_u32 v7, v6")
        self.exec_all()

    def await_cnt(self, cnt, n):
        top, done = self.newlabel("L_cnt"), self.newlabel("L_cntok")
        e = self.e
        e(f"v_mov_b32 v7, {cnt}")
        e(f"s_mov_b32 s{S_SPIN}, {SPIN_MAX*16}")
        self.label(top)
        if self.o.get("dbg_sleep3"):
            e(f"s_sleep {self.o['dbg_sleep3']}")
        e("ds_read_b32 v6, v7")
        e(f"s_sub_u32 s{S_SPIN}, s{S_SPIN}, 1")
        e(f"s_cbranch_scc1 {done}")
        e("s_waitcnt lgkmcnt(0)")
        e(f"v_readfirstlane_b32 s{S_TMP}, v6")
        e(f"s_cmp_lt_u32 s{S_TMP}, {n}")
        e(f"s_cbranch_scc1 {top}")
        self.label(done)

    def xrow(self, op, regs, tmps, which=(16, 32)):
        for w in which:
            for r, t in zip(regs, tmps):
                self.e(f"v_mov_b32 v{t}, v{r}")
            for r, t in zip(regs, tmps):
                self.e(f"v_permlane{w}_swap_b32 v{t}, v{r}")
            for r, t in zip(regs, tmps):
                self.e(f"{op} v{r}, v{r}, v{t}")

    def frag(self, dst, raw, i, nld):
        for p in range(nld // 2):
            self.e(f"v_perm_b32 v{dst+p}, v{raw + 4*(2*p+1) + (i >> 1)}, v{raw + 4*(2*p) + (i >> 1)}, s{S_HI if i & 1 else S_LO}")

    def swap_pairs(self, pairs):
        dpp = "quad_perm:[1,0,3,2] row_mask:0xf bank_mask:0xf"
        self.e(f"s_mov_b64 vcc, {sr(S_EVEN)}")
        for d, a, b in pairs:
            for k in range(4):
                self.e(f"v_cndmask_b32_dpp v{d+k}, v{b+k}, v{a+k}, vcc {dpp}")
                self.e(f"v_xor_b32 v{a+k}, v{a+k}, v{d+k}")
            for k in range(4):
                self.e(f"v_xor_b32_dpp v{b+k}, v{a+k}, v{b+k} {dpp}")

    def tree_add4(self, r, n):
        st = n // 2
        while st:
            for w in range(st):
                for k in range(4):
                    self.e(f"v_add_f32 v{r+4*w+k}, v{r+4*w+k}, v{r+4*(w+st)+k}")
            st //= 2

    def chain(self, op3, op2, dst, regs):
        regs = list(regs)
        if len(regs) >= 3 and op3:
            self.e(f"{op3} v{dst}, v{regs[0]}, v{regs[1]}, v{regs[2]}")
            rest = regs[3:]
            while len(rest) >= 2:
                self.e(f"{op3} v{dst}, v{dst}, v{rest[0]}, v{rest[1]}")
                rest = rest[2:]
        else:
            self.e(f"{op2} v{dst}, v{regs[0]}, v{regs[1]}")
            rest = regs[2:]
        for r in rest:
            self.e(f"{op2} v{dst}, v{dst}, v{r}")

    def exec_set(self, lo, hi):
        self.e(f"s_mov_b32 exec_lo, {lo:#x}")
        self.e(f"s_mov_b32 exec_hi, {hi:#x}")

    def exec_all(self):
        self.e("s_mov_b64 exec, -1")

    def prologue(self):
        e = self.e
        e("s_cmp_ge_u32 s2, 256")
        e("s_cbranch_scc1 L_end")
        self.stamp(0)
        if self.o.get("stamps"):
            pass
        e("s_load_dwordx16 s[4:19], s[0:1], 0")
        e("s_load_dwordx8 s[20:27], s[0:1], 64")
        e("s_load_dwordx4 s[28:31], s[0:1], 96")
        e("v_lshrrev_b32 v4, 6, v0")
        e("v_and_b32 v0, 63, v0")
        e("v_readfirstlane_b32 s3, v4")
        e(f"v_and_b32 v{V_N}, 15, v0")
        e(f"v_lshrrev_b32 v{V_J}, 4, v0")

    def consts(self):
        e = self.e
        if self.o.get("wsoff"):
            self.adv(S_WS, self.o["wsoff"] << 20)
        e(f"s_load_dword s{S_E}, {sr(S_WS)}, 0")
        if self.o.get("cpf"):
            def pf():
                lab = self.newlabel("L_cp")
                e(f"s_getpc_b64 {sr(S_BAD)}")
                self.label(lab)
                e(f"s_sub_u32 s{S_BAD}, s{S_BAD}, {lab}-{NAME}_kernel")
                e(f"s_subb_u32 s{S_BAD+1}, s{S_BAD+1}, 0")
                self.sexpr(S_TMP, [(2, 3, None, 11)])
                e(f"s_min_u32 s{S_TMP}, s{S_TMP}, L_tiles-{NAME}_kernel-2048")
                self.addr(S_BAD, S_BAD, S_TMP)
                e("v_lshlrev_b32 v247, 5, v0")
                self.vm(f"global_load_dword v246, v247, {sr(S_BAD)}")
            self.when("s_cmp_eq_u32 s3, 1", pf)
        for k in range(4):
            e(f"s_mov_b32 s{S_SEL+k}, {0x07060500 + k:#x}")
        e(f"s_mov_b32 s{S_LO}, 0x05040100")
        e(f"s_mov_b32 s{S_HI}, 0x07060302")
        e(f"s_mov_b32 s{S_X0}, 0x0c0c0400")
        e(f"s_mov_b32 s{S_SC}, {f2u(SCALE):#x}")
        e(f"s_mov_b32 s{S_EVEN}, 0x55555555")
        e(f"s_mov_b32 s{S_EVEN+1}, 0x55555555")

    def bitmasks(self, r):
        e = self.e
        e("v_and_b32 v4, 3, v0")
        e("v_lshlrev_b32 v4, 3, v4")
        e(f"v_lshrrev_b32 v4, v4, v{V_T}")
        for q in range(4):
            e(f"v_bfe_u32 v5, v4, {2*q+1}, 1")
            e(f"v_bfe_u32 v{r+q}, v4, {2*q}, 1")
            e(f"v_lshl_or_b32 v{r+q}, v5, 16, v{r+q}")

    def settag(self):
        self.e(f"s_add_u32 s{S_T}, s{S_E}, 0x01010101")
        self.e(f"v_mov_b32 v{V_T}, s{S_T}")
        self.e(f"s_lshr_b32 s{S_X1}, s{S_T}, 16")
        self.e(f"s_and_b32 s{S_X1}, s{S_X1}, 0xff00")
        self.e(f"s_and_b32 s{S_X2}, s{S_T}, 0xff")
        self.e(f"s_or_b32 s{S_X1}, s{S_X1}, s{S_X2}")

    def p1_issue(self, sSl, sW, sX, xr, wr, first=True):
        e = self.e
        if first:
            e(f"v_lshlrev_b32 v4, 15, v{V_J}")
            e(f"v_lshl_add_u32 v4, v{V_N}, 4, v4")
            e(f"v_bfe_u32 v5, v{V_N}, 2, 1")
            e("v_lshlrev_b32 v5, 10, v5")
            e(f"v_lshl_add_u32 v5, v{V_J}, 3, v5")
        self.sexpr(S_TMP, [(sSl, 0, 3, 7), (3, 0, None, 4)])
        self.sexpr(S_A, [(S_TMP, 0, None, 13), (sSl, 2, 31, 8)])
        e(f"s_lshl_b32 s{S_TMP}, s{S_TMP}, 1")
        if first:
            e("s_waitcnt lgkmcnt(0)")
        sW(); sX()
        self.vm(f"global_load_dwordx2 {vr(xr, 2)}, v5, {sr(S_B)}")
        for t in range(4):
            tok = self.ld4(wr + 4 * t, 4, S_A)
            if t < 3:
                self.adv(S_A, 8192)
        if first:
            e("s_barrier")
        return tok

    def p1_plain(self, sSl, W, X, xr, wr, first=True):
        def sW():
            self.e(f"s_add_u32 s{S_A}, s{W}, s{S_A}")
            self.e(f"s_addc_u32 s{S_A+1}, s{W+1}, 0")
        return self.p1_issue(sSl, sW, lambda: self.addr(S_B, X, S_TMP), xr, wr, first)

    def p1_compute(self, sSl, tok, xr, wr, d0, X, lds=0, first=True):
        e = self.e
        e(f"v_lshlrev_b32 v4, 5, v{V_N}")
        e(f"v_lshl_add_u32 v4, v{V_J}, 9, v4")
        self.sexpr(S_TMP, [(3, 0, None, 10)], lds)
        e(f"v_add_u32 v4, s{S_TMP}, v4")
        self.vmwait(tok)
        for i in range(8):
            t = X + 2 * (i & 3)
            self.frag(t, wr, i, 4)
            e(f"v_mfma_f32_16x16x16_bf16 {vr(d0+4*i,4)}, {vr(xr,2)}, {vr(t,2)}, 0")
        self.exec_set(0xffffffff, 0)
        for i in range(0, 8, 2):
            self.ds(f"ds_write2_b32 v4, v{d0+4*i}, v{d0+4*i+4} offset0:{i} offset1:{i+1}")
        self.exec_all()
        e("s_waitcnt lgkmcnt(0)")
        if first:
            self.settag()
        e("s_barrier")

        def pub():
            e("v_lshlrev_b32 v4, 4, v0")
            for w in range(8):
                self.ds(f"ds_read_b128 {vr(d0+4*w,4)}, v4 offset:{lds+w*1024}")
            e(f"s_lshl_b32 s{S_TMP}, s{sSl}, 10")
            self.addr(S_B, S_WS, S_TMP, WS_QP)
            e("s_waitcnt lgkmcnt(0)")
            self.tree_add4(d0, 8)
            self.tag4(d0)
            self.vm(f"global_store_dwordx4 v4, {vr(d0,4)}, {sr(S_B)} sc1")

        self.when(f"s_cmp_eq_u32 s3, {PUBW if first else 0}", pub)
        if first:
            self.stamp(1)

    def p1_multi(self, offs, pre, d0, lds):
        e = self.e
        sl, raw, tok = [S_SL, S_SL + 1, 99], [16, 32, 100], []
        for i, off in enumerate(offs):
            e(f"s_add_u32 s{sl[i]}, s2, {off}")
            tok.append(self.p1_plain(sl[i], S_WQB if i else S_WQA, S_BX if i else S_AX, 8 + 2 * i, raw[i], first=not i))
        self.consts()
        pre()
        for i in range(len(offs)):
            self.p1_compute(sl[i], tok[i], 8 + 2 * i, raw[i], d0, 48, lds[i], first=not i)


class Chunk:
    QS, ST, OS = 8192, 9216, 10240

    def __init__(self, k, nb, extra, KR, VR, QF, SR, ACC, X, VA, CNT, sK, sV, sQ, QG=8):
        self.k, self.nb, self.extra, self.QG = k, nb, extra, QG
        self.KR, self.VR, self.QF, self.SR, self.ACC, self.X = KR, VR, QF, SR, ACC, X
        self.vK, self.vV, self.vQ, self.vF = VA, VA + 1, VA + 2, VA + 3
        self.CNT, self.sK, self.sV, self.sQ = CNT, sK, sV, sQ
        self.sPair, self.sChunk, self.sTile, self.sNx = S_P, S_P + 1, S_P + 2, [S_P + 3, S_P + 5]
        self.ktok, self.vtok = {}, {}

    def ifx(self, i, fn):
        self.k.when(f"s_cmp_lt_u32 s3, s{self.sNx[i]}", fn)

    def setup(self):
        k = self.k; e = k.e
        k.sexpr(S_TMP, [(self.sPair, 0, None, 21), (self.sTile, 0, None, 12)])
        k.addr(self.sK, S_K, S_TMP)
        k.addr(self.sV, S_V, S_TMP)
        a, b = self.vQ, self.vF
        e(f"v_bfe_u32 v{a}, v0, 1, 1")
        e(f"v_lshlrev_b32 v{a}, 11, v{a}")
        e(f"v_bfe_u32 v{b}, v0, 2, 2")
        e(f"v_lshl_add_u32 v{a}, v{b}, 8, v{a}")
        e(f"v_lshl_add_u32 v{a}, v{V_J}, 5, v{a}")
        e(f"v_and_b32 v{b}, 1, v0")
        e(f"v_lshl_add_u32 v{self.vK}, v{b}, 4, v{a}")
        e(f"v_lshlrev_b32 v{self.vV}, 4, v0")
        e(f"v_lshlrev_b32 v{self.vQ}, 10, v{V_J}")
        e(f"v_lshl_add_u32 v{self.vQ}, v{V_N}, 4, v{self.vQ}")

    def qaddr(self):
        k = self.k
        k.sexpr(S_TMP, [(self.sPair, 0, 7, 14), (3, 1, None, 12), (self.sPair, 3, None, 9), (3, 0, 1, 8)])
        k.addr(self.sQ, S_WS, S_TMP, WS_QP + 128 * 1024)

    def kload(self, t, d=0, lo=0, hi=4):
        for ks in range(lo, hi):
            self.k.throttle(d)
            r = (ks >> 1) + 2 * (ks & 1)
            self.ktok[t] = self.k.ld4(self.KR[t] + 4 * r, self.vK, self.sK, (ks >> 1) * 1024 + (ks & 1) * 128)
        if hi == 4:
            self.k.adv(self.sK, 4096)

    def vload(self, t, d=0, lo=0, hi=4):
        for i in range(lo, hi):
            self.k.throttle(d)
            self.vtok[t] = self.k.ld4(self.VR[t] + 4 * i, self.vV, self.sV, i * 1024)
        if hi == 4:
            self.k.adv(self.sV, 4096)

    def qissue(self):
        return self.k.ld4(self.QG, self.vQ, self.sQ, 0, "sc1")

    def qpiece(self, tok=None):
        k = self.k; e = k.e
        g = self.QG
        k.poll(self.qissue, lambda: k.chk4(g, 4, True), pre_issued=tok)
        k.xrow("v_add_f32", [g, g + 1, g + 2, g + 3], [12, 13, 14, 15])
        e(f"v_cvt_pk_bf16_f32 v{g}, v{g}, v{g+1}")
        e(f"v_cvt_pk_bf16_f32 v{g+1}, v{g+2}, v{g+3}")
        e(f"s_lshl_b32 s{S_TMP}, s3, 7")
        e(f"v_lshlrev_b32 v4, 3, v{V_N}")
        e(f"v_add_u32 v4, s{S_TMP}, v4")
        k.exec_set(0xffff, 0)
        k.ds(f"ds_write_b64 v4, {vr(g,2)} offset:{self.QS}")
        k.arrive(self.CNT)

    def qread(self):
        k = self.k; e = k.e
        k.await_cnt(self.CNT, 8)
        e(f"v_lshrrev_b32 v4, 2, v{V_N}")
        e("v_lshlrev_b32 v4, 8, v4")
        e(f"v_lshl_add_u32 v4, v{V_J}, 5, v4")
        for ks in range(4):
            k.ds(f"ds_read_b128 {vr(self.QF+4*ks,4)}, v4 offset:{self.QS+(ks>>1)*128+(ks&1)*16}")
        for r in range(4 * self.extra):
            e(f"v_mov_b32 v{self.SR+4*self.nb+r}, 0xff800000")

    def qk(self, t):
        k = self.k
        k.vmwait(self.ktok[t])
        k0, x = self.KR[t], self.X + 8 * (t & 1)
        k.swap_pairs([(x, k0, k0 + 4), (x + 4, k0 + 8, k0 + 12)])
        d = vr(self.SR + 4 * t, 4)
        for ks, f in enumerate((x, k0 + 4, x + 4, k0 + 12)):
            k.e(f"v_mfma_f32_16x16x32_bf16 {d}, {vr(f,4)}, {vr(self.QF+4*ks,4)}, {'0' if ks == 0 else d}")

    def softmax(self):
        k = self.k; e = k.e
        SR = self.SR
        n = 4 * (self.nb + self.extra)
        k.chain("v_max3_f32", "v_max_f32", 4, range(SR, SR + n))
        k.xrow("v_max_f32", [4], [5])
        e(f"v_mul_f32 v4, s{S_SC}, v4")
        for i in range(n):
            e(f"v_fma_f32 v{SR+i}, v{SR+i}, s{S_SC}, -v4")
        for i in range(n):
            e(f"v_exp_f32 v{SR+i}, v{SR+i}")
        k.chain(None, "v_add_f32", 5, range(SR, SR + n))
        for i in range(n // 2):
            e(f"v_cvt_pk_bf16_f32 v{SR+i}, v{SR+2*i}, v{SR+2*i+1}")
        k.xrow("v_add_f32", [5], [6])
        e(f"s_lshl_b32 s{S_TMP}, s3, 5")
        e(f"v_lshlrev_b32 v6, 1, v{V_N}")
        e(f"v_add_u32 v6, s{S_TMP}, v6")
        k.exec_set(0x1111, 0)
        k.ds(f"ds_write_b64 v6, v[4:5] offset:{self.ST}")
        k.arrive(self.CNT + 4)

    def pv(self, t, n, first=False):
        k = self.k
        k.vmwait(self.vtok[t + n - 1])
        for i in range(8):
            x = self.X + 4 * (i & 3)
            k.frag(x, self.VR[t], i, 4 * n)
            d = vr(self.ACC + 4 * i, 4)
            op = "v_mfma_f32_16x16x32_bf16" if n == 2 else "v_mfma_f32_16x16x16_bf16"
            k.e(f"{op} {d}, {vr(self.SR+2*t,2*n)}, {vr(x,2*n)}, {'0' if first else d}")

    def factor(self, T0):
        k = self.k; e = k.e
        k.await_cnt(self.CNT + 4, 8)
        e(f"v_lshlrev_b32 v6, 3, v{V_J}")
        for w in range(8):
            k.ds(f"ds_read_b64 {vr(T0+2*w,2)}, v6 offset:{self.ST+w*32}")
        e(f"s_lshl_b32 s{S_TMP}, s3, 5")
        e(f"v_add_u32 v6, s{S_TMP}, v6")
        k.ds(f"ds_read_b64 v[4:5], v6 offset:{self.ST}")
        k.lgwait()
        k.chain("v_max3_f32", "v_max_f32", 7, range(T0, T0 + 16, 2))
        for w in range(8):
            e(f"v_sub_f32 v{T0+2*w}, v{T0+2*w}, v7")
        e("v_sub_f32 v4, v4, v7")
        for w in range(8):
            e(f"v_exp_f32 v{T0+2*w}, v{T0+2*w}")
        e("v_exp_f32 v4, v4")
        e(f"v_mul_f32 v5, v{T0}, v{T0+1}")
        for w in range(1, 8):
            e(f"v_fmac_f32 v5, v{T0+2*w}, v{T0+2*w+1}")
        e("v_rcp_f32 v6, v5")
        e("v_log_f32 v5, v5")
        e(f"v_mul_f32 v{self.vF}, v4, v6")

        def lse():
            for i in range(4):
                e(f"v_add_f32 v{8+i}, v5, v7")
            k.tag4(8)
            k.sexpr(S_TMP, [(self.sPair, 0, 7, 11), (self.sPair, 3, None, 8), (self.sChunk, 0, None, 4)])
            k.addr(self.sQ, S_WS, S_TMP, WS_LSEB)
            e(f"v_lshlrev_b32 v4, 9, v{V_J}")
            k.exec_set(0x00010001, 0x00010001)
            k.vm(f"global_store_dwordx4 v4, v[8:11], {sr(self.sQ)} sc1")
            k.exec_all()

        k.when(f"s_cmp_eq_u32 s3, {PUBW}", lse)
        k.sexpr(S_TMP, [(self.sPair, 0, 7, 3), (3, 0, 1, 2), (self.sPair, 3, None, 0)])
        e(f"s_mul_i32 s{S_TMP}, s{S_TMP}, {NCB}")
        e(f"s_add_u32 s{S_TMP}, s{S_TMP}, s{self.sChunk}")
        e(f"s_lshl_b32 s{S_TMP}, s{S_TMP}, 9")
        k.addr(self.sQ, S_WS, S_TMP, WS_OP)
        e("v_lshrrev_b32 v4, 5, v0")
        e(f"v_mul_u32_u24 v4, {2*NCB*512}, v4")
        e("v_and_b32 v5, 31, v0")
        e(f"v_lshl_add_u32 v{self.vQ}, v5, 4, v4")
        e(f"s_lshl_b32 s{S_TMP}, s3, 11")
        e(f"v_lshlrev_b32 v4, 9, v{V_J}")
        e(f"v_lshl_add_u32 v4, v{V_N}, 5, v4")
        e(f"v_add_u32 v{self.vK}, s{S_TMP}, v4")
        k.sexpr(S_TMP, [(3, 0, 1, 10)])
        e(f"v_add_u32 v{T0}, s{S_TMP}, v{self.vV}")
        self.vR = T0

    def finish(self, T0, st):
        k = self.k; e = k.e
        k.stamp(st)
        T0 += 4
        for i in range(8):
            e(f"v_mul_f32 v{T0+i}, v{self.vF}, v{self.ACC+4*i}")
        k.ds(f"ds_write_b128 v{self.vK}, {vr(T0,4)} offset:{self.OS}")
        k.ds(f"ds_write_b128 v{self.vK}, {vr(T0+4,4)} offset:{self.OS+16}")
        k.barrier()
        e("s_cmp_lt_u32 s3, 6")
        e("s_cbranch_scc1 L_fin")
        for w in range(8):
            k.ds(f"ds_read_b128 {vr(T0+4*w,4)}, v{self.vR} offset:{self.OS+w*2048}")
        k.lgwait()
        k.tree_add4(T0, 8)
        k.tag4(T0)
        k.vm(f"global_store_dwordx4 v{self.vQ}, {vr(T0,4)}, {sr(self.sQ)} sc1")
        k.stamp(st + 1)
        e("s_branch L_fin")


def role_B(k):
    e, o = k.e, k.o
    D1, D, DV, SW = o.get("depth_b1", 3), o.get("depth_b", 6), o.get("depth_v", 8), o.get("b_sw", 2)
    KR = [160 + 16 * t for t in range(6)] + [144]
    VR = [16, 32, KR[0], KR[1], KR[2], KR[3], KR[4]]
    CNT, QS2, QAS, UK = 9728, 9856, 40960, 144
    c = Chunk(k, 5, 2, KR, VR, QF=128, SR=100, ACC=64, X=48, VA=96, CNT=CNT, sK=S_C, sV=S_D, sQ=S_A)
    sI = S_P + 4
    dep = lambda t: D1 if t < SW else D
    npre, bpre = o.get("p2_at", 4), o.get("b_pre", 1)

    def kstream(lo, hi, thr):
        for n in range(lo, hi):
            c.kload(n >> 2, dep(n >> 2) if thr else 0, n & 3, (n & 3) + 1)

    def params():
        e("s_waitcnt lgkmcnt(0)")
        e(f"s_bfe_u32 s{c.sNx[0]}, s{c.sTile}, 0x40010")
        e(f"s_bfe_u32 s{c.sNx[1]}, s{c.sTile}, 0x40014")
        e(f"s_bfe_u32 s{c.sPair}, s{c.sTile}, 0x40018")
        e(f"s_lshr_b32 s{c.sChunk}, s{c.sTile}, 28")
        e(f"s_and_b32 s{c.sTile}, s{c.sTile}, 0xffff")
        e(f"s_mul_i32 s{S_TMP}, s3, 5")
        e(f"s_add_u32 s{c.sTile}, s{c.sTile}, s{S_TMP}")
        for i in range(2):
            e(f"s_min_u32 s{S_TMP}, s3, s{c.sNx[i]}")
            e(f"s_add_u32 s{c.sTile}, s{c.sTile}, s{S_TMP}")
        c.setup()
        for r in range(124, 128):
            e(f"v_mov_b32 v{r}, 0")
        e(f"v_mov_b32 v123, {CNT}")
        k.ds("ds_write_b128 v123, v[124:127]")

    k.label("L_roleB")
    e(f"s_sub_u32 s{sI}, s2, {NT+NA}")
    e(f"s_getpc_b64 {sr(S_C)}")
    k.label("L_pc")
    e(f"s_lshl_b32 s{S_TMP}, s{sI}, 2")
    e(f"s_add_u32 s{S_C}, s{S_C}, L_tiles-L_pc")
    e(f"s_addc_u32 s{S_C+1}, s{S_C+1}, 0")
    e(f"s_load_dword s{c.sTile}, {sr(S_C)}, s{S_TMP}")
    e("s_cmp_ge_u32 s2, 224")
    e("s_cbranch_scc1 L_roleB2")
    base = k.vm_n
    e(f"s_add_u32 s{S_SL}, s{sI}, 64")

    def selW():
        e(f"s_cmp_lt_u32 s{sI}, 64")
        e(f"s_cselect_b32 s{S_C}, s{S_WQA}, s{S_WQB}")
        e(f"s_cselect_b32 s{S_C+1}, s{S_WQA+1}, s{S_WQB+1}")
        e(f"s_cselect_b32 s{S_B}, s{S_AX}, s{S_BX}")
        e(f"s_cselect_b32 s{S_B+1}, s{S_AX+1}, s{S_BX+1}")
        e(f"s_add_u32 s{S_A}, s{S_C}, s{S_A}")
        e(f"s_addc_u32 s{S_A+1}, s{S_C+1}, 0")

    tok = k.p1_issue(S_SL, selW, lambda: k.addr(S_B, S_B, S_TMP), 8, 16)
    k.sexpr(S_TMP, [(sI, 0, 3, 20), (3, 0, None, 17), (sI, 2, None, 8)])
    k.addr(S_C, S_WUK, S_TMP)
    e("v_bfe_u32 v33, v0, 1, 3")
    e("v_lshlrev_b32 v33, 14, v33")
    e(f"v_lshl_add_u32 v33, v{V_J}, 5, v33")
    e("v_and_b32 v32, 1, v0")
    e("v_lshl_add_u32 v33, v32, 4, v33")
    e("v_add_u32 v32, 0x2000, v33")
    for ks in range(4):
        uktok = k.ld4(UK + 4 * ((ks >> 1) + 2 * (ks & 1)), 33 - (ks >> 1), S_C, (ks & 1) * 128)
    k.consts()
    params()
    kstream(0, bpre, False)
    k.p1_compute(S_SL, tok, 8, 16, c.ACC, 48)
    kstream(bpre, npre, False)
    k.sexpr(S_TMP, [(sI, 2, None, 12), (3, 0, 3, 8)])
    k.addr(S_B, S_WS, S_TMP, WS_QP)

    def p2_piece():
        e(f"s_waitcnt vmcnt({o.get('p2_w', 0)})")
        k.poll(lambda: k.ld4(8, c.vQ, S_B, 0, "sc1"), lambda: k.chk4(8, 4, True))
        k.xrow("v_add_f32", [8, 9, 10, 11], [12, 13, 14, 15])
        e("v_cvt_pk_bf16_f32 v8, v8, v9")
        e("v_cvt_pk_bf16_f32 v9, v10, v11")
        k.sexpr(S_TMP, [(3, 0, 3, 7)])
        e(f"v_lshlrev_b32 v4, 3, v{V_N}")
        e(f"v_add_u32 v4, s{S_TMP}, v4")
        k.exec_set(0xffff, 0)
        k.ds(f"ds_write_b64 v4, v[8:9] offset:{QS2}")
        k.arrive(CNT + 8)

    k.vmwait(uktok)
    k.swap_pairs([(48, UK, UK + 4), (52, UK + 8, UK + 12)])
    k.when("s_cmp_ge_u32 s3, 4", p2_piece)
    k.stamp(7)
    k.sexpr(S_TMP, [(sI, 2, None, 10), (sI, 0, 3, 8)])
    k.addr(S_B, S_WS, S_TMP, WS_QA)
    k.bitmasks(12)
    e("v_mov_b32 v16, 0xfffefffe")
    e(f"v_lshlrev_b32 v17, 15, v{V_J}")
    e(f"v_lshl_add_u32 v17, v{V_N}, 4, v17")
    e(f"v_lshlrev_b32 v5, 8, v{V_N}")
    e(f"v_lshl_add_u32 v5, v{V_J}, 3, v5")
    e(f"s_lshl_b32 s{S_TMP}, s3, 5")
    e(f"v_add_u32 v5, s{S_TMP}, v5")
    e(f"v_and_b32 v4, 1, v{V_N}")
    e("v_lshlrev_b32 v4, 8, v4")
    e(f"v_lshl_add_u32 v4, v{V_J}, 5, v4")
    k.await_cnt(CNT + 8, 4)
    for ks in range(4):
        k.ds(f"ds_read_b128 {vr(c.QF+4*ks,4)}, v4 offset:{QS2+(ks>>1)*128+(ks&1)*16}")
    k.lgwait()
    for ks, f in enumerate((48, UK + 4, 52, UK + 12)):
        e(f"v_mfma_f32_16x16x32_bf16 v[8:11], {vr(f,4)}, {vr(c.QF+4*ks,4)}, {'0' if ks == 0 else 'v[8:11]'}")
    e("v_cvt_pk_bf16_f32 v8, v8, v9")
    e("v_cvt_pk_bf16_f32 v9, v10, v11")
    k.exec_set(0x00030003, 0x00030003)
    k.ds(f"ds_write_b64 v5, v[8:9] offset:{QAS}")
    k.arrive(CNT + 12)

    def qa_pub():
        k.await_cnt(CNT + 12, 8)
        k.ds(f"ds_read_b128 v[8:11], v{c.vV} offset:{QAS}")
        k.lgwait()
        for q in range(4):
            e(f"v_and_or_b32 v{8+q}, v{8+q}, v16, v{12+q}")
        k.exec_set(0xffffffff, 0)
        k.vm(f"global_store_dwordx4 v17, v[8:11], {sr(S_B)} sc1")
        k.exec_all()

    k.when(f"s_cmp_eq_u32 s3, {o.get('qaw', 3)}", qa_pub)
    k.stamp(8)
    e("s_branch L_roleB3")
    k.label("L_roleB2")
    k.vm_n = base
    T1 = o.get("t_one", 0)
    k.p1_multi([-192, 0] + [-32] * T1, lambda: (params(), kstream(0, bpre, False)), c.ACC, [0, 32768, 49152])
    kstream(bpre, npre, True)
    k.label("L_roleB3")
    c.qaddr()
    qat = o.get("b_qat", 2)
    for t in range(5):
        if t == qat:
            qtok = c.qissue()
        kstream(max(4 * t, npre), max(4 * t + 4, npre), True)
        if t == o.get("b_qchk", 4):
            k.stamp(2)
            c.qpiece(qtok)
            k.stamp(3)
    c.ifx(0, lambda: c.kload(5, D))
    c.ifx(1, lambda: c.kload(6, D))
    c.qread()
    c.vload(0, DV)
    k.lgwait()
    c.qk(0); c.qk(1)
    c.vload(1, DV)
    c.qk(2); c.qk(3)
    c.vload(2, DV)
    c.qk(4)
    c.ifx(0, lambda: c.qk(5))
    c.ifx(1, lambda: c.qk(6))
    c.vload(3, DV)
    k.stamp(4)
    c.softmax()
    c.vload(4, DV)
    c.pv(0, 2, first=True)
    c.ifx(0, lambda: c.vload(5, DV))
    c.factor(16)
    c.ifx(1, lambda: c.vload(6, DV))
    c.pv(2, 2)
    c.pv(4, 1)
    c.ifx(0, lambda: c.pv(5, 1))
    c.ifx(1, lambda: c.pv(6, 1))
    c.finish(16, 5)


def role_A(k):
    e, o = k.e, k.o
    C0, G, QT, SR, ACC = 128, 64, 64, 48, 96
    Q = 131072
    PB, ST, ST2, CNT = Q, Q + 16384, Q + 17408, 9728
    sB, sCh, sA = S_P + 4, S_P + 5, S_P + 6
    AT = o.get("a_t", 1)
    c = Chunk(k, AT, 0, KR=[128, 144][:AT], VR=[160, 176][:AT], QF=64, SR=48, ACC=96, X=80, VA=28, CNT=CNT, sK=S_C, sV=S_D, sQ=S_B, QG=22)
    k.label("L_roleA")
    e(f"s_sub_u32 s{sA}, s2, {NT}")
    k.sexpr(S_TMP, [(sA, 0, None, 18), (3, 0, None, 14)])
    e("v_bfe_u32 v32, v0, 1, 3")
    e("v_lshlrev_b32 v32, 11, v32")
    e(f"v_lshl_add_u32 v32, v{V_J}, 5, v32")
    e("v_and_b32 v33, 1, v0")
    e("v_lshl_add_u32 v32, v33, 4, v32")
    e("s_waitcnt lgkmcnt(0)")
    SCK = 98
    k.addr(SCK, S_CKV, S_TMP)
    DA = o.get("depth_a", 5)
    coff = lambda ks: (ks & 1) * 1024 + (ks >> 1) * 128
    CF = []
    for p in range(16):
        CF += [C0 + 8 * p - 8 if p else 124, C0 + 8 * p + 4]
    ctok = {}
    st = {"n": 0}
    sVal = 92

    def pump(upto):
        while st["n"] < min(upto, 32):
            n = st["n"]
            if n == 16:
                k.adv(SCK, 131072)
            m = (n & ~3) | ((n & 1) << 1) | ((n >> 1) & 1)
            ctok[m] = k.ld4(C0 + 4 * m, 32, SCK, coff(m & 15))
            st["n"] += 1

    pump(DA)
    k.consts()
    e(f"s_lshr_b32 s{sB}, s{sA}, 5")
    e(f"s_and_b32 s{sCh}, s{sA}, 31")
    e(f"v_bfe_u32 v4, v{V_N}, 1, 2")
    e(f"v_and_b32 v5, 3, v{V_N}")
    e("v_lshl_add_u32 v4, v5, 2, v4")
    e(f"v_lshlrev_b32 v5, 1, v{V_J}")
    e("v_xor_b32 v4, v4, v5")
    e(f"s_lshl_b32 s{S_TMP}, s3, 14")
    e(f"v_lshlrev_b32 v5, 10, v{V_N}")
    e(f"v_add_u32 v5, s{S_TMP}, v5")
    e("v_lshl_add_u32 v40, v4, 4, v5")
    kx = lambda q: (q >> 1) * 128 + (q & 1) * 16
    for q in range(1, 4):
        e(f"v_xor_b32 v{40+q}, {kx(q)}, v40")
    k.sexpr(S_TMP, [(sB, 0, None, 15), (3, 0, None, 12)])
    k.addr(S_A, S_WS, S_TMP, WS_QA)
    e("v_lshlrev_b32 v33, 4, v0")
    e(f"v_lshlrev_b32 v4, 1, v{V_J}")
    e(f"v_xor_b32 v4, v4, v{V_N}")
    e(f"v_lshlrev_b32 v5, 10, v{V_N}")
    e(f"v_add_u32 v5, {Q}, v5")
    e("v_lshl_add_u32 v44, v4, 4, v5")
    for q in range(1, 4):
        e(f"v_xor_b32 v{44+q}, {kx(q)}, v44")
    e(f"v_lshlrev_b32 v4, 5, v{V_N}")
    e(f"v_add_u32 v35, {ST}, v4")
    e(f"s_lshl_b32 s{S_TMP}, s3, 2")
    e(f"v_add_u32 v36, s{S_TMP}, v35")
    e("v_and_b32 v6, 31, v0")
    e("v_lshlrev_b32 v4, 5, v6")
    e(f"v_add_u32 v37, {ST}, v4")
    e(f"v_lshrrev_b32 v7, 1, v{V_J}")
    e(f"s_lshl_b32 s{S_TMP}, s3, 1")
    e(f"v_add_u32 v7, s{S_TMP}, v7")
    e(f"v_xor_b32 v7, v7, v{V_N}")
    e("v_lshlrev_b32 v7, 4, v7")
    e(f"v_lshl_add_u32 v7, v{V_N}, 9, v7")
    e(f"v_and_b32 v8, 1, v{V_J}")
    e("v_lshl_add_u32 v7, v8, 3, v7")
    e(f"v_add_u32 v38, {PB}, v7")
    e("v_lshrrev_b32 v4, 5, v0")
    e(f"v_xor_b32 v7, v4, v{V_N}")
    e("v_lshlrev_b32 v7, 4, v7")
    e("v_lshl_add_u32 v7, v6, 9, v7")
    e(f"v_add_u32 v20, {PB}, v7")
    k.sexpr(S_TMP, [(3, 0, 1, 3)])
    e(f"v_xor_b32 v7, s{S_TMP}, v{V_N}")
    e("v_lshlrev_b32 v7, 4, v7")
    e("v_lshl_add_u32 v7, v6, 10, v7")
    e("v_lshl_add_u32 v7, v4, 3, v7")
    k.sexpr(S_TMP, [(3, 1, None, 8)], Q)
    e(f"v_add_u32 v39, s{S_TMP}, v7")
    k.sexpr(S_TMP, [(3, 0, 3, 2)])
    e(f"v_xor_b32 v7, s{S_TMP}, v0")
    e("v_lshlrev_b32 v7, 4, v7")
    k.sexpr(S_TMP, [(3, 0, None, 12)], Q)
    e(f"v_add_u32 v27, s{S_TMP}, v7")
    e("v_bfe_u32 v5, v0, 2, 2")
    e("v_lshl_add_u32 v6, v4, 3, v5")
    e("v_lshlrev_b32 v6, 10, v6")
    e("v_and_b32 v7, 1, v0")
    e("v_lshl_add_u32 v6, v7, 3, v6")
    k.sexpr(S_TMP, [(3, 1, None, 8)])
    e(f"v_add_u32 v6, s{S_TMP}, v6")
    e("v_bfe_u32 v7, v0, 4, 1")
    e("v_bfe_u32 v8, v0, 1, 1")
    e("v_lshl_add_u32 v7, v7, 1, v8")
    k.sexpr(S_TMP, [(3, 0, 1, 3)])
    e(f"v_add_u32 v7, s{S_TMP}, v7")
    e("v_lshrrev_b32 v8, 1, v5")
    e("v_lshlrev_b32 v5, 2, v5")
    e("v_xor_b32 v7, v7, v5")
    e("v_xor_b32 v7, v7, v8")
    for mt in range(2):
        for ee in range(2):
            r = 16 + 2 * mt + ee
            e(f"v_xor_b32 v{r}, {4*mt + 2*ee}, v7")
            e(f"v_lshl_add_u32 v{r}, v{r}, 4, v6")
            if ee:
                e(f"v_add_u32 v{r}, 4096, v{r}")
    e(f"s_lshr_b32 s{c.sPair}, s{sA}, 2")
    k.sexpr(c.sChunk, [(sA, 0, 3, 0)], 10)
    k.sexpr(c.sTile, [(sA, 0, 3, 2 + AT), (3, 0, None, AT - 1)], 512 - 32 * AT)
    c.setup()
    SL, SFL = 94, 100
    k.sexpr(S_TMP, [(3, 0, None, 18), (sB, 0, None, 15), (sCh, 0, None, 10)])
    k.addr(SL, S_WS, S_TMP, WS_LATP)
    k.sexpr(S_TMP, [(sA, 0, None, 3)])
    k.addr(SFL, S_WS, S_TMP, WS_LSEA)
    e("s_waitcnt lgkmcnt(0)")
    k.settag()
    k.bitmasks(G + 16)

    def cwrite(ks):
        k.ds(f"ds_write_b128 v{40+(ks&3)}, {vr(CF[ks],4)} offset:{((ks&15)>>2)*256}")

    def qload(q):
        return k.ld4(G + 4 * q, 33, S_A, q * 1024, "sc1")

    gat = o.get("a_gat", 10)
    for p in range(16):
        pump(2 * p + 2 + DA)
        if p == gat:
            for q in range(4):
                gtok = qload(q)
        k.vmwait(ctok[2 * p + 1])
        k.swap_pairs([(CF[2 * p], C0 + 8 * p, C0 + 8 * p + 4)])
        if p < 8:
            cwrite(2 * p); cwrite(2 * p + 1)
    k.stamp(2)
    top, chk, done = k.newlabel("L_qa"), k.newlabel("L_qachk"), k.newlabel("L_qaok")
    e(f"s_mov_b32 s{sVal}, 0")
    e(f"s_mov_b32 s{S_SPIN}, {SPIN_MAX}")
    e(f"s_branch {chk}")
    k.label(top)
    k.cond += 1
    e(f"s_sub_u32 s{S_SPIN}, s{S_SPIN}, 1")
    e(f"s_cbranch_scc1 {done}")
    for q in range(4):
        lab = k.newlabel("L_qsk")
        e(f"s_bitcmp1_b32 s{sVal}, {q}")
        e(f"s_cbranch_scc1 {lab}")
        qload(q)
        k.label(lab)
    k.label(chk)
    e("s_waitcnt vmcnt(0)")
    for q in range(4):
        for i in range(4):
            e(f"v_xor_b32 v{4+i}, v{G+4*q+i}, v{G+16+i}")
        e("v_or3_b32 v4, v4, v5, v6")
        e("v_or_b32 v4, v4, v7")
        e("v_and_b32 v4, 0x10001, v4")
        e(f"v_cmp_ne_u32 {sr(S_BAD)}, 0, v4")
        e(f"s_cmp_eq_u64 {sr(S_BAD)}, 0")
        e(f"s_cselect_b32 s{S_TMP}, {1 << q}, 0")
        e(f"s_or_b32 s{sVal}, s{sVal}, s{S_TMP}")
    e(f"s_cmp_lg_u32 s{sVal}, 15")
    e(f"s_cbranch_scc1 {top}")
    k.cond -= 1
    k.label(done)
    k.stamp(3)
    for q in range(4):
        e(f"v_xor_b32 v{4+q}, {q*16}, v27")
        k.ds(f"ds_write_b128 v{4+q}, {vr(G+4*q,4)} offset:{q*1024}")
    k.barrier()
    tk = {}

    def qread(ks):
        for hh in range(2):
            tk[ks] = k.ds(f"ds_read_b128 {vr(QT+8*(ks&3)+4*hh,4)}, v{44+(ks&3)} offset:{hh*16384+(ks>>2)*256}")

    for ks in range(3):
        qread(ks)
    for ks in range(16):
        if ks + 3 < 16:
            qread(ks + 3)
        k.lgwait(tk[ks])
        for hh in range(2):
            for rnd in range(2):
                d = vr(SR + 8 * hh + 4 * rnd, 4)
                e(f"v_mfma_f32_16x16x32_bf16 {d}, {vr(CF[16*rnd+ks],4)}, {vr(QT+8*(ks&3)+4*hh,4)}, {'0' if ks == 0 else d}")
        if ks in (6, 9, 12, 15):
            c.kload(0, 0, (ks - 6) // 3, (ks - 6) // 3 + 1)
    k.stamp(4)
    for hh in range(2):
        k.chain("v_max3_f32", "v_max_f32", 4 + hh, range(SR + 8 * hh, SR + 8 * hh + 8))
    k.xrow("v_max_f32", [4, 5], [6, 7])
    k.barrier()
    k.exec_set(0xffff, 0)
    for hh in range(2):
        k.ds(f"ds_write_b32 v36, v{4+hh} offset:{hh*512}")
    k.exec_all()
    if AT == 2:
        c.kload(1, 0, 0, 2)
    k.barrier()
    for hh in range(2):
        for q in range(2):
            k.ds(f"ds_read_b128 {vr(64+8*hh+4*q,4)}, v35 offset:{hh*512+q*16}")
    for q in range(2):
        k.ds(f"ds_read_b128 {vr(80+4*q,4)}, v37 offset:{q*16}")
    k.lgwait()
    for i, dst in enumerate((4, 5, 26)):
        k.chain("v_max3_f32", "v_max_f32", dst, range(64 + 8 * i, 72 + 8 * i))
        e(f"v_mul_f32 v{dst}, s{S_SC}, v{dst}")
    for i in range(16):
        e(f"v_fma_f32 v{SR+i}, v{SR+i}, s{S_SC}, -v{4+(i>>3)}")
    for i in range(16):
        e(f"v_exp_f32 v{SR+i}, v{SR+i}")
    for hh in range(2):
        k.chain(None, "v_add_f32", 6 + hh, range(SR + 8 * hh, SR + 8 * hh + 8))
    for i in range(8):
        e(f"v_cvt_pk_bf16_f32 v{SR+i}, v{SR+2*i}, v{SR+2*i+1}")
    for hh in range(2):
        for rnd in range(2):
            k.ds(f"ds_write_b64 v38, {vr(SR+4*hh+2*rnd,2)} offset:{hh*8192+rnd*256}")
    k.xrow("v_add_f32", [6, 7], [8, 9])
    k.exec_set(0xffff, 0)
    for hh in range(2):
        k.ds(f"ds_write_b32 v36, v{6+hh} offset:{ST2-ST+hh*512}")
    k.exec_all()
    if AT == 2:
        c.kload(1, 0, 2, 4)
    k.barrier()
    FR = 48

    def pvpart(rnd, u0, u1):
        tk = {}

        def rd(u):
            f = FR + 12 * (u % 3)
            if u == 4:
                for r in range(16, 20):
                    e(f"v_add_u32 v{r}, 0x10000, v{r}")
            e(f"v_xor_b32 v21, {u*32}, v20")
            k.ds(f"ds_read_b128 {vr(f+8,4)}, v21 offset:{rnd*256}")
            for mt in range(2):
                for ee in range(2):
                    tk[u] = k.ds(f"ds_read_b64_tr_b16 {vr(f+4*mt+2*ee,2)}, v{16+2*mt+ee} offset:{(u&3)*16384}")

        rd(u0); rd(u0 + 1)
        for u in range(u0, u1):
            if u + 2 < u1:
                rd(u + 2)
            k.lgwait(tk[u])
            f = FR + 12 * (u % 3)
            for mt in range(2):
                d = vr(ACC + 16 * mt, 16)
                e(f"v_mfma_f32_32x32x16_bf16 {d}, {vr(f+4*mt,4)}, {vr(f+8,4)}, {'0' if (rnd == 0 and u == 0) else d}")
        if u1 == 8 and rnd == 0:
            for r in range(16, 20):
                e(f"v_subrev_u32 v{r}, 0x10000, v{r}")

    def cw1():
        for ks in range(16, 32):
            cwrite(ks)

    if o.get("a_ovl", 0):
        pvpart(0, 0, 4)
        k.barrier()
        k.when("s_cmp_lt_u32 s3, 4", cw1)
        pvpart(0, 4, 8)
        k.stamp(5)
        c.qaddr()
        qtok = c.qissue()
        if o.get("a_ve", 1):
            c.vload(0, 0)
        k.barrier()
        k.when("s_cmp_ge_u32 s3, 4", cw1)
        pvpart(1, 0, 4)
        k.barrier()
        k.stamp(6)
        pvpart(1, 4, 8)
    else:
        pvpart(0, 0, 8)
        k.stamp(5)
        k.barrier()
        c.qaddr()
        qtok = c.qissue()
        cw1()
        if o.get("a_ve", 1):
            c.vload(0, 0)
        k.barrier()
        k.stamp(6)
        pvpart(1, 0, 8)
    k.stamp(10)
    for q in range(2):
        k.ds(f"ds_read_b128 {vr(64+4*q,4)}, v37 offset:{ST2-ST+q*16}")
    for r in range(12, 16):
        e(f"v_mov_b32 v{r}, 0")
    e(f"v_mov_b32 v11, {CNT}")
    k.lgwait()
    k.chain(None, "v_add_f32", 9, range(64, 72))
    e("v_rcp_f32 v10, v9")
    e("v_log_f32 v9, v9")
    e("v_add_f32 v26, v26, v9")
    e("s_barrier")
    k.ds("ds_write_b128 v11, v[12:15]")
    for g in range(8):
        for i in range(4):
            e(f"v_mul_f32 v{ACC+4*g+i}, v10, v{ACC+4*g+i}")
        e(f"v_cvt_pk_bf16_f32 v{ACC+4*g}, v{ACC+4*g}, v{ACC+4*g+1}")
        e(f"v_cvt_pk_bf16_f32 v{ACC+4*g+1}, v{ACC+4*g+2}, v{ACC+4*g+3}")
        e(f"v_xor_b32 v{40+g}, {g*16}, v39")
        k.ds(f"ds_write_b64 v{40+g}, {vr(ACC+4*g,2)}")
    k.barrier()
    tk = []
    for q in range(4):
        e(f"v_xor_b32 v{16+q}, {q*16}, v27")
        tk.append(k.ds(f"ds_read_b128 {vr(192+4*q,4)}, v{16+q} offset:{q*1024}"))
    for q in range(4):
        k.lgwait(tk[q])
        stok = k.vm(f"global_store_dwordx4 v33, {vr(192+4*q,4)}, {sr(SL)} sc1")
        if q < 3:
            k.adv(SL, 65536)
    if AT == 2 and o.get("a_v1", 0):
        c.vload(1, 0)
    k.stamp(11)
    c.qpiece(qtok)
    c.qread()
    e("v_lshlrev_b32 v40, 9, v0")
    e(f"v_mov_b32 v27, v{V_T}")
    k.lgwait()
    for t in range(AT):
        c.qk(t)
    c.softmax()
    k.vmwait(stok)
    e("s_barrier")

    def flag():
        k.exec_set(0xffffffff, 0)
        k.vm(f"global_store_dwordx2 v40, v[26:27], {sr(SFL)} sc1")
        k.exec_all()

    k.when(f"s_cmp_eq_u32 s3, {PUBW}", flag)
    if not o.get("a_ve", 1):
        c.vload(0, 0)
    if AT == 2 and not o.get("a_v1", 0):
        c.vload(1, 0)
    k.stamp(7)
    c.factor(208)
    c.pv(0, AT, first=True)
    c.finish(208, 8)


def role_T(k):
    e, o = k.e, k.o
    D = o.get("depth_t", 3)
    R = [32 + 32 * i for i in range(7)]
    WOL, CNT, WSC, CS, OB, P1B = 32768, 16384, 16640, 21504, 25600, 8192
    sStr, sW = S_P + 2, S_P + 3
    SF, SO = 86, 88
    k.label("L_roleT")
    k.remap = {11: 2, 12: 3}
    tok = {}

    def oload(n):
        tok["o", n >> 3] = k.ld4(R[5] + 4 * n, 29, S_C, (n & 3) * 1024)
        if n & 3 == 3:
            k.adv(S_C, 4096 if n & 4 == 0 else 4096 * 7)

    def pre():
        k.sexpr(S_TMP, [(2, 0, None, 17), (3, 2, None, 16), (3, 0, 3, 8)])
        k.addr(S_C, S_WOA, S_TMP)
        e(f"v_lshlrev_b32 v{R[4]}, 13, v{V_J}")
        e(f"v_lshl_add_u32 v{R[4]}, v{V_N}, 4, v{R[4]}")
        for r in range(4):
            e(f"v_mov_b32 v{R[4]+4+r}, 0")
        e(f"v_mov_b32 v{R[4]+1}, {CNT}")
        k.ds(f"ds_write_b128 v{R[4]+1}, {vr(R[4]+4,4)}")

    k.p1_multi([0] if o.get("t_one", 0) else [0, 192], pre, R[1], [0, P1B])
    e(f"v_mov_b32 v29, v{R[4]}")
    for n in range(D):
        oload(n)
    k.sexpr(S_TMP, [(3, 0, 3, 20), (2, 0, None, 8)])
    k.addr(S_A, S_WUV, S_TMP)
    k.sexpr(S_TMP, [(2, 0, None, 17), (3, 0, 3, 8)])
    k.addr(S_B, S_WOB, S_TMP)
    e("s_cmp_lt_u32 s3, 4")
    e(f"s_cselect_b32 s{sW}, s{S_A}, s{S_B}")
    e(f"s_cselect_b32 s{sW+1}, s{S_A+1}, s{S_B+1}")
    e(f"s_cselect_b32 s{sStr}, 13, 10")
    e(f"s_lshl_b32 s{sStr}, 1, s{sStr}")
    e(f"s_lshl_b32 s{S_TMP}, s{sStr}, 3")
    e(f"v_mul_lo_u32 v28, s{S_TMP}, v{V_J}")
    e(f"v_lshl_add_u32 v28, v{V_N}, 4, v28")
    e(f"s_mul_i32 s{S_P+1}, s{sStr}, 25")
    k.sexpr(S_TMP, [(3, 0, 3, 15), (3, 2, None, 14)], WOL)
    e("v_lshlrev_b32 v31, 4, v0")
    e(f"v_add_u32 v30, s{S_TMP}, v31")
    k.sexpr(S_P, [(3, 0, None, 10)], WSC)

    def wload(n, d):
        k.throttle(d)
        tok["w", n >> 3] = k.ld4(R[1] + 4 * n, 28, sW)
        st = S_P + 1 if n & 7 == 7 else sStr
        e(f"s_add_u32 s{sW}, s{sW}, s{st}")
        e(f"s_addc_u32 s{sW+1}, s{sW+1}, 0")

    def operm(g):
        k.vmwait(tok["o", g])
        for i in range(8):
            x = 8 + 4 * (i & 3)
            k.frag(x, R[5 + g], i, 8)
            k.ds(f"ds_write_b128 v30, {vr(x,4)} offset:{g*8192+i*1024}")

    def wperm(g):
        k.vmwait(tok["w", g])
        for i in range(8):
            k.frag(R[g] + 4 * i, R[g + 1], i, 8)

    for n in range(D, 16):
        k.throttle(D)
        oload(n)
        if n == 11:
            operm(0)
    DA_, DB_ = o.get("depth_ta", 3), o.get("depth_tb", 3)
    for n in range(32):
        if DB_ < DA_:
            lab = k.newlabel("L_td")
            e("s_cmp_lt_u32 s3, 4")
            e(f"s_cbranch_scc1 {lab}")
            k.throttle(DB_)
            k.label(lab)
        wload(n, DA_)
        if n == 3:
            operm(1)
            k.arrive(CNT)
        if n & 7 == 3 and n > 8:
            wperm((n >> 3) - 1)
    e(f"v_bfe_u32 v26, v{V_N}, 2, 1")
    e("v_lshlrev_b32 v25, 8, v26")
    e(f"v_lshl_add_u32 v25, v{V_J}, 4, v25")
    e("v_lshlrev_b32 v24, 3, v0")
    e(f"s_lshr_b32 s{S_P+1}, s3, 2")
    k.sexpr(S_TMP, [(S_P + 1, 0, None, 17), (3, 0, 3, 15), (2, 0, None, 7)])
    k.addr(S_C, S_WS, S_TMP, WS_OUTP)
    e(f"v_lshrrev_b32 v4, 1, v{V_N}")
    e("v_lshlrev_b32 v4, 12, v4")
    e(f"v_and_b32 v5, 1, v{V_N}")
    e("v_lshl_add_u32 v4, v5, 5, v4")
    e(f"v_and_b32 v5, 1, v{V_J}")
    e("v_lshl_add_u32 v4, v5, 6, v4")
    e(f"v_lshrrev_b32 v5, 1, v{V_J}")
    e("v_lshl_add_u32 v23, v5, 4, v4")
    e(f"s_mov_b32 s{S_D}, 0")
    e(f"s_mov_b32 s{S_D+1}, -1")
    k.sexpr(S_TMP, [(S_P + 1, 0, None, 17), (2, 0, None, 12)])
    k.addr(SF, S_WS, S_TMP, WS_OUTP)
    k.sexpr(S_TMP, [(S_P + 1, 0, None, 10), (2, 0, None, 5)])
    k.addr(SO, S_OUT, S_TMP)
    e("v_bfe_u32 v4, v0, 2, 1")
    e("v_lshlrev_b32 v4, 11, v4")
    e("v_and_b32 v5, 3, v0")
    e("v_lshl_add_u32 v27, v5, 3, v4")
    if o.get("touch", 0) & 1:
        k.sexpr(S_TMP, [(3, 0, 3, 10)])
        e(f"v_add_u32 v4, s{S_TMP}, v31")
        k.ld4(12, 4, SF, 0, "sc1")
    wperm(3)
    k.stamp(4)
    X = R[4]
    PA = [R[6] + 8 * kg for kg in range(4)]
    PD = [R[5] + 16 + 4 * i for i in range(4)] + [R[6] + 4 + 8 * i for i in range(4)]

    def proj():
        for kg in range(4):
            for i in range(8):
                d = vr(PD[i], 4)
                e(f"v_mfma_f32_16x16x32_bf16 {d}, {vr(PA[kg],4)}, {vr(R[kg]+4*i,4)}, {'0' if kg == 0 else d}")

    def publish():
        for i in range(4):
            e(f"v_cndmask_b32 v{8+i}, v{PD[i]}, v{PD[4+i]}, {sr(S_D)}")
        k.tag4(8)
        k.vm(f"global_store_dwordx4 v23, v[8:11], {sr(S_C)} sc1")

    e("s_cmp_ge_u32 s3, 4")
    e("s_cbranch_scc1 L_tailB")
    base = k.vm_n
    e(f"s_lshl_b32 s{S_TMP}, s2, 9")
    k.addr(S_A, S_WS, S_TMP, WS_LSEA)
    k.sexpr(S_TMP, [(2, 0, None, 16), (3, 0, None, 8)])
    LB = [98, 100, sW, S_B]
    k.addr(LB[0], S_WS, S_TMP, WS_LATP)
    for i in range(1, 4):
        k.addr(LB[i], LB[0], None, (i >> 1) * 32768 + (i & 1) * 4096)
    sIss, sBlk = 92, 94
    top, done = k.newlabel("L_lat"), k.newlabel("L_latok")
    e(f"s_mov_b64 {sr(sIss)}, 0")
    e(f"v_lshlrev_b32 v21, 3, v{V_J}")
    e(f"s_mov_b32 s{S_SPIN}, {SPIN_MAX}")
    sN = 91
    k.cond += 1
    k.vm(f"global_load_dwordx2 v[8:9], v24, {sr(S_A)} sc1")
    e(f"s_mov_b32 s{sN}, 0")
    k.label(top)
    e(f"s_sub_u32 s{S_SPIN}, s{S_SPIN}, 1")
    e(f"s_cbranch_scc1 {done}")
    if o.get("dbg_sleep"):
        e(f"s_sleep {o['dbg_sleep']}")
    got = k.newlabel("L_lw")
    for n in (8, 4, 2, 1):
        e(f"s_waitcnt vmcnt({n})")
        e(f"s_cmp_ge_u32 s{sN}, {n}")
        e(f"s_cbranch_scc1 {got}")
    e("s_waitcnt vmcnt(0)")
    k.label(got)
    e(f"v_cmp_ne_u32 {sr(S_BAD)}, v9, v{V_T}")
    e("v_mov_b32 v12, v8")
    e(f"s_mov_b32 s{sN}, 0")
    k.vm(f"global_load_dwordx2 v[8:9], v24, {sr(S_A)} sc1")
    e(f"s_nor_b64 {sr(sBlk)}, {sr(S_BAD)}, {sr(sIss)}")
    e(f"s_cbranch_scc0 {top}")
    e(f"s_or_b64 {sr(sIss)}, {sr(sIss)}, {sr(sBlk)}")
    for b_ in range(2):
        skb = k.newlabel("L_lskb")
        e(f"s_cmp_eq_u32 s{sBlk+b_}, 0")
        e(f"s_cbranch_scc1 {skb}")
        e(f"v_lshrrev_b32 v10, v21, s{sBlk+b_}")
        for t in range(8):
            sk = k.newlabel("L_lsk")
            e(f"v_and_b32 v11, {1 << t}, v10")
            e(f"v_cmp_ne_u32 vcc, 0, v11")
            e(f"s_and_saveexec_b64 {sr(S_TMP)}, vcc")
            e(f"s_cbranch_execz {sk}")
            k.ld4(R[5] + 32 * b_ + 4 * t, 29, LB[2 * b_ + (t >> 2)], (t & 3) * 1024, ['sc1', 'sc1 nt', 'sc0 sc1 nt'][o.get('lat_ld', 1)])
            e(f"s_add_u32 s{sN}, s{sN}, 1")
            k.label(sk)
            k.exec_all()
        k.label(skb)
    e(f"s_cmp_lg_u64 {sr(sIss)}, -1")
    e(f"s_cbranch_scc1 {top}")
    k.cond -= 1
    k.label(done)
    k.stamp(5)
    if o.get("prio", 0):
        e("s_setprio 2")

    def red32(op, r, tmp):
        for sh in (8, 4, 2, 1):
            e(f"{op}_dpp v{r}, v{r}, v{r} row_ror:{sh} row_mask:0xf bank_mask:0xf")
        k.xrow(op, [r], [tmp], (16,))

    e("v_mov_b32 v10, v12")
    red32("v_max_f32", 10, 11)
    e("v_sub_f32 v12, v12, v10")
    e("v_exp_f32 v12, v12")
    e("v_lshrrev_b32 v4, 5, v0")
    e("v_mov_b32 v10, v12")
    red32("v_add_f32", 10, 11)
    e("v_rcp_f32 v10, v10")
    e("v_lshlrev_b32 v4, 7, v4")
    e("v_mul_f32 v12, v12, v10")
    e("v_cvt_pk_bf16_f32 v13, v12, v12")
    e("v_and_b32 v10, 0xffff0000, v13")
    e("v_sub_f32 v12, v12, v10")
    e("v_cvt_pk_bf16_f32 v10, v12, v12")
    e("v_and_b32 v5, 31, v0")
    e("v_lshl_add_u32 v4, v5, 1, v4")
    e(f"v_add_u32 v4, s{S_P}, v4")
    k.ds("ds_write_b16 v4, v13")
    k.ds("ds_write_b16 v4, v10 offset:64")
    e(f"v_and_b32 v4, 1, v{V_N}")
    e("v_lshlrev_b32 v4, 6, v4")
    e(f"v_lshl_add_u32 v4, v{V_J}, 4, v4")
    e(f"v_add_u32 v4, s{S_P}, v4")
    k.lgwait()
    k.ds(f"ds_read_b128 {vr(R[4]+24,4)}, v4")
    k.ds("ds_read_b128 v[12:15], v4 offset:128")
    e(f"v_lshlrev_b32 v4, 4, v{V_N}")
    e(f"v_add_u32 v4, s{S_P}, v4")
    e(f"v_add_u32 v5, s{S_P}, v25")
    k.await_cnt(CNT, 8)
    e("s_waitcnt vmcnt(0)")
    k.stamp(6)
    for i in range(4):
        e(f"v_mov_b32 v{8+i}, v{R[4]+24+i}")
    for b_ in range(2):
        for i in range(8):
            x = 16
            k.frag(x, R[5 + b_], i, 8)
            e(f"v_mfma_f32_16x16x32_bf16 {vr(X+4*i,4)}, {vr(8+4*b_,4)}, {vr(x,4)}, 0")
        for i in range(8):
            e(f"v_add_f32 v{X+4*i}, v{X+4*i}, v{X+4*i+1}")
        for i in range(4):
            e(f"v_cvt_pk_bf16_f32 v{R[5+b_]+i}, v{X+8*i}, v{X+8*i+4}")
        k.exec_set(0xffff, 0)
        k.ds(f"ds_write_b128 v4, {vr(R[5+b_],4)} offset:{256+b_*256}")
        k.exec_all()
    k.lgwait()
    AF = R[5]
    for kg in range(4):
        k.ds(f"ds_read_b128 {vr(AF+4*kg,4)}, v5 offset:{256+kg*64}")
    k.sexpr(S_TMP, [(3, 0, None, 10)], CS)
    e(f"v_lshlrev_b32 v4, 5, v{V_N}")
    e(f"v_lshl_add_u32 v4, v{V_J}, 9, v4")
    e(f"v_add_u32 v4, s{S_TMP}, v4")
    k.lgwait()
    for kg in range(4):
        for i in range(8):
            d = vr(X + 4 * i, 4)
            e(f"v_mfma_f32_16x16x32_bf16 {d}, {vr(AF+4*kg,4)}, {vr(R[kg]+4*i,4)}, {'0' if kg == 0 else d}")
    k.sexpr(S_TMP, [(3, 0, None, 15)], WOL)
    e(f"v_add_u32 v30, s{S_TMP}, v31")
    k.exec_set(0xffffffff, 0)
    for i in range(0, 8, 2):
        k.ds(f"ds_write2_b32 v4, v{X+4*i}, v{X+4*i+4} offset0:{i} offset1:{i+1}")
    k.arrive(CNT + 4)
    for f in range(32):
        k.ds(f"ds_read_b128 {vr(R[0]+4*f,4)}, v30 offset:{f*1024}")
    e(f"v_add_u32 v4, {CS}, v31")
    k.stamp(12)
    k.await_cnt(CNT + 4, 4)
    k.stamp(11)
    for w in range(4):
        k.ds(f"ds_read_b128 {vr(X+4*w,4)}, v4 offset:{w*1024}")
    e(f"v_add_u32 v4, s{S_P}, v24")
    k.lgwait()
    k.tree_add4(X, 4)
    e(f"v_cvt_pk_bf16_f32 v8, v{X}, v{X+1}")
    e(f"v_cvt_pk_bf16_f32 v9, v{X+2}, v{X+3}")
    k.ds("ds_write_b64 v4, v[8:9]")
    k.lgwait()
    for kg in range(4):
        k.ds(f"ds_read_b128 {vr(PA[kg],4)}, v5 offset:{kg*64}")
    k.lgwait()
    proj()
    e("s_branch L_proj")
    k.label("L_tailB")
    k.vm_n = base
    Y = R[4]

    def issue_o(i):
        for c in range(4):
            k.ld4(Y + 16 * i + 4 * c, 21 - (c >> 1), S_B, (c & 1) * 512, "sc1")

    def check_o(i):
        k.chkn([Y + 16 * i + 4 * c for c in range(4)], 6, 7)

    def comb(i):
        k.lgwait()
        for r in range(4):
            e(f"v_mul_f32 v{8+r}, v12, v{Y+16*i+r}")
        for c in range(1, 4):
            for r in range(4):
                e(f"v_fmac_f32 v{8+r}, v{12+c}, v{Y+16*i+4*c+r}")

    e(f"s_lshl_b32 s{S_TMP}, s2, 9")
    k.addr(S_A, S_WS, S_TMP, WS_LSEB)
    e("v_lshrrev_b32 v4, 5, v0")
    e("v_lshlrev_b32 v5, 8, v4")
    e(f"v_min_u32 v6, {NCB-1}, v{V_N}")
    e("v_lshl_add_u32 v22, v6, 4, v5")
    e(f"v_cmp_gt_u32 {sr(98)}, {NCB}, v{V_N}")
    e(f"s_mul_i32 s{S_TMP}, s2, {2*NCB*512}")
    k.sexpr(S_P + 2, [(3, 0, 3, 11)])
    e(f"s_add_u32 s{S_TMP}, s{S_TMP}, s{S_P+2}")
    k.addr(S_B, S_WS, S_TMP, WS_OP)
    e(f"v_mul_u32_u24 v4, {NCB*512}, v4")
    e("v_and_b32 v5, 31, v0")
    e("v_lshl_add_u32 v21, v5, 4, v4")
    e("s_cmp_eq_u32 s3, 7")
    e(f"s_cselect_b32 s{S_TMP}, 0, 0x400")
    e(f"v_add_u32 v20, s{S_TMP}, v21")
    k.sexpr(S_TMP, [(3, 0, 3, 10)], WSC + 768)
    e(f"v_lshlrev_b32 v4, 2, v0")
    e(f"v_add_u32 v19, s{S_TMP}, v4")
    e("v_lshrrev_b32 v4, 5, v0")
    e("v_lshlrev_b32 v4, 7, v4")
    k.sexpr(S_P + 2, [(3, 0, 3, 4), (S_TMP, 0, None, 0)])
    e(f"v_add_u32 v18, s{S_P+2}, v4")
    k.sexpr(S_TMP, [(3, 0, 3, 9)], OB)
    e(f"v_add_u32 v17, s{S_TMP}, v24")
    e(f"v_and_b32 v4, 3, v{V_N}")
    e("v_lshl_add_u32 v4, v4, 9, v25")
    e(f"v_add_u32 v16, {OB}, v4")
    if o.get("touch", 0) & 2:
        issue_o(0)
    k.poll_pipe(o.get("np_l", 2), 1, lambda i: k.ld4(Y + 48 + 4 * i, 22, S_A, 0, "sc1"), lambda i: k.chk_full(Y + 48 + 4 * i, 6, 7),
                lambda i: e(f"v_mov_b32 v8, v{Y+48+4*i}"))
    e("v_mov_b32 v9, 0xff800000")
    e(f"v_cndmask_b32 v8, v9, v8, {sr(98)}")
    e("v_mov_b32 v10, v8")
    for sh in (8, 4, 2, 1):
        e(f"v_max_f32_dpp v10, v10, v10 row_ror:{sh} row_mask:0xf bank_mask:0xf")
    e("v_sub_f32 v8, v8, v10")
    e("v_exp_f32 v8, v8")
    e("v_mov_b32 v10, v8")
    for sh in (8, 4, 2, 1):
        e(f"v_add_f32_dpp v10, v10, v10 row_ror:{sh} row_mask:0xf bank_mask:0xf")
    e("v_rcp_f32 v10, v10")
    e("v_mul_f32 v8, v8, v10")
    k.ds("ds_write_b32 v19, v8")
    k.lgwait()
    k.ds("ds_read_b128 v[12:15], v18")
    k.stamp(7)

    k.poll_pipe(o.get("np_o", 2), 4, issue_o, check_o, comb)
    k.stamp(8)
    e("v_cvt_pk_bf16_f32 v8, v8, v9")
    e("v_cvt_pk_bf16_f32 v9, v10, v11")
    k.ds("ds_write_b64 v17, v[8:9]")
    k.arrive(CNT + 8)
    k.await_cnt(CNT + 8, 4)
    k.stamp(11)
    if o.get("prio"):
        e("s_setprio 3")
    for kg in range(4):
        k.ds(f"ds_read_b128 {vr(PA[kg],4)}, v16 offset:{kg*64}")
    k.lgwait()
    proj()
    for i in range(8):
        e(f"v_add_f32 v{PD[i]}, v{PD[i]}, v{PD[i]+1}")
        e(f"v_add_f32 v{PD[i]+2}, v{PD[i]+2}, v{PD[i]+3}")
    for i in range(8):
        e(f"v_add_f32 v{PD[i]}, v{PD[i]}, v{PD[i]+2}")
    k.label("L_proj")
    publish()
    k.stamp(9)
    e("s_and_b32 s62, s3, 3")
    e("s_cbranch_scc1 L_fin")
    F = R[0]

    def issue(i):
        for q in range(4):
            k.ld4(F + 16 * i + 4 * q, 31, SF, q * 1024, "sc1")

    def check(i):
        k.chkn([F + 16 * i + 4 * q for q in range(4)], 6, 7)

    def fin(i):
        for r in range(8):
            e(f"v_add_f32 v{12+r}, v{F+16*i+r}, v{F+16*i+8+r}")

    lab, lab2 = k.newlabel("L_fa"), k.newlabel("L_fb")
    e("s_cmp_eq_u32 s3, 0")
    e(f"s_cbranch_scc1 {lab}")
    k.poll_pipe(o.get("np_f", 2), 4, issue, check, fin)
    e(f"s_branch {lab2}")
    k.label(lab)
    k.poll_pipe(1, 4, issue, check, fin)
    k.label(lab2)
    k.stamp(10)
    k.tree_add4(12, 2)
    for i in range(4):
        e(f"v_add_f32_dpp v{12+i}, v{12+i}, v{12+i} row_ror:8 row_mask:0xf bank_mask:0xf")
    k.xrow("v_add_f32", [12, 13, 14, 15], [16, 17, 18, 19])
    e("v_cvt_pk_bf16_f32 v12, v12, v13")
    e("v_cvt_pk_bf16_f32 v13, v14, v15")
    k.exec_set(0xff, 0)
    k.vm(f"global_store_dwordx2 v27, v[12:13], {sr(SO)}" + (" sc1" if o.get("outsc") else ""))
    e(f"s_or_b32 s{S_TMP}, s2, s3")
    e(f"s_cmp_lg_u32 s{S_TMP}, 0")
    e("s_cbranch_scc1 L_fin")
    k.exec_set(1, 0)
    e("v_mov_b32 v4, 0")
    k.vm(f"global_store_dword v4, v{V_T}, {sr(S_WS)}")
    e("s_branch L_fin")


def finish(k):
    e = k.e
    k.label("L_fin")
    if k.o.get("stamps"):
        k.exec_all()
        k.stamp(15)
        e(f"s_memtime {sr(S_STAMP + 28)}")
        k.sexpr(S_TMP, [(2, 0, None, 10), (3, 0, None, 7)])
        e(f"s_load_dwordx2 {sr(S_WS)}, s[0:1], 104")
        e("s_waitcnt lgkmcnt(0)")
        k.addr(S_A, S_WS, S_TMP, WS_STAMP)
        e("s_waitcnt lgkmcnt(0)")
        e("v_mov_b32 v4, 0")
        k.exec_set(1, 0)
        for i in range(8):
            for q in range(4):
                e(f"v_mov_b32 v{8+q}, s{S_STAMP+4*i+q}")
            e(f"global_store_dwordx4 v4, v[8:11], {sr(S_A)} offset:{i*16}")
    k.label("L_end")
    e("s_endpgm")


def tile_table(o):
    late, par, b2 = o.get("adj_late", 0), o.get("adj_par", 0), o.get("adj_b2", -2 if o.get("t_one", 0) else 0)
    tot = 512 - 32 * o.get("a_t", 1)
    kind = lambda i: (i >= 128, (i & 7) >= 4, (i >> 3) & 1 if i < 128 else 0)
    members = [[] for _ in range(16)]
    seen = {}
    for i in range(NB):
        n = seen.get(kind(i), 0)
        seen[kind(i)] = n + 1
        members[n % 16].append(i)
    out = [0] * NB
    for p, m in enumerate(members):
        assert len(m) == 10
        w = []
        for i in m:
            isb2, isl, odd = kind(i)
            a = -late if isl else late
            if isl and not isb2:
                a += par if odd else -par
            w.append(tot / 10 + a + (b2 if isb2 else -b2 / 4))
        n = [int(v // 1) for v in w]
        for j in sorted(range(10), key=lambda j: n[j] - w[j])[:tot - sum(n)]:
            n[j] += 1
        assert sum(n) == tot
        st = 0
        for ch, (i, v) in enumerate(zip(m, n)):
            assert 40 <= v <= 56
            out[i] = st | min(v - 40, 8) << 16 | max(v - 48, 0) << 20 | p << 24 | ch << 28
            st += v
    return out


def generate(**opt):
    k = K(opt)
    head = [l.rstrip("\n") for l in open(REF) if l.startswith(";") and "@launch" not in l and "Override" not in l and "grid=ceil" not in l]
    L = k.L
    L += head
    L.append("; @launch grid=(256,1,1) block=(512,1,1) lds=163840")
    L.append('.amdgcn_target "amdgcn-amd-amdhsa--gfx950"')
    L += [".text", f".globl {NAME}_kernel", ".p2align 8", f".type {NAME}_kernel,@function", f"{NAME}_kernel:"]
    if opt.get("stamps"):
        for r in range(S_STAMP, S_STAMP + 32):
            k.e(f"s_mov_b32 s{r}, 0")
    k.prologue()
    k.e(f"s_cmp_ge_u32 s2, {NT+NA}")
    k.e("s_cbranch_scc1 L_roleB")
    k.e(f"s_cmp_ge_u32 s2, {NT}")
    k.e("s_cbranch_scc1 L_roleA")
    base = k.vm_n
    role_T(k)
    k.vm_n = base
    k.remap = {}
    role_A(k)
    k.vm_n = base
    role_B(k)
    finish(k)
    L.append(".p2align 2")
    L.append(".type L_tiles,@object")
    L.append("L_tiles:")
    L += [f".long {w:#x}" for w in tile_table(opt)]
    L += ['.section .rodata,"a"', ".p2align 6", f".amdhsa_kernel {NAME}_kernel",
          "  .amdhsa_next_free_vgpr 256", "  .amdhsa_next_free_sgpr 102", "  .amdhsa_accum_offset 256",
          "  .amdhsa_group_segment_fixed_size 0", "  .amdhsa_kernarg_size 112", "  .amdhsa_user_sgpr_count 2",
          "  .amdhsa_user_sgpr_kernarg_segment_ptr 1", "  .amdhsa_system_sgpr_workgroup_id_x 1", ".end_amdhsa_kernel"]
    return k.text()


if __name__ == "__main__":
    opt = {}
    for a in sys.argv[2:]:
        kk, v = a.split("=")
        opt[kk] = int(v)
    open(sys.argv[1], "w").write(generate(**opt))
```

```python
import sys, struct
from asmlib import Gen, vr, sr

NAME = "concat_heads__compressed_kv_cla__gqa_block_cached__decode"
REF = "cdna_kernels/" + NAME + ".s.ref"

NT, NA, NB = 32, 64, 160
WOL, TBW, OB, CNTB = 32768, 26624, 27648, 29696
NCB = 16
WS_QP = 0x010000
WS_QA = 0x060000
WS_LSEA = 0x090000
WS_GO = 0x098000
WS_LSEB = 0x0A0000
WS_OP = 0x0B0000
WS_OUTP = 0x140000
WS_LATP = 0x200000
WS_STAMP = 128 << 20
SCALE = (128 ** -0.5) * 1.4426950408889634

ABOUT = """;
; Hand-offs between workgroups go through d_ws with write-through stores; every piece carries this launch's tag
;"""


def f2u(x):
    return struct.unpack("<I", struct.pack("<f", x))[0]


S_AX, S_CKV, S_WQA, S_WUK, S_WUV, S_WOA, S_BX, S_K, S_V, S_WQB, S_WOB, S_OUT, S_DBG, S_WS = range(4, 32, 2)
S_E, S_T = 32, 33
S_SEL = 34
S_LO, S_HI = 38, 39
S_A, S_B, S_C, S_D = 40, 42, 44, 46
S_X0, S_X1, S_X2 = 48, 49, 50
S_SC = 51
S_SPIN = 52
S_P = 53
S_BAD = 60
S_TMP = 62
S_STAMP = 64
S_EVEN = 96
S_SL = 100
V_L, V_N, V_J, V_T = 0, 1, 2, 3
SPIN_MAX = 1 << 18
PUBW = 7


class K(Gen):
    def __init__(self, opt):
        super().__init__()
        self.o = opt
        self.remap = {}
        self.role7 = False

    def stamp(self, k):
        if self.o.get("stamps"):
            self.e(f"s_memrealtime {sr(S_STAMP + 2 * self.remap.get(k, k))}")

    def addr(self, dst, base, off_s=None, off_i=0):
        if off_s is not None:
            self.e(f"s_add_u32 s{dst}, s{base}, s{off_s}")
            self.e(f"s_addc_u32 s{dst+1}, s{base+1}, 0")
            base = dst
        if off_i or off_s is None:
            self.e(f"s_add_u32 s{dst}, s{base}, {off_i}")
            self.e(f"s_addc_u32 s{dst+1}, s{base+1}, 0")

    def adv(self, a, n):
        self.e(f"s_add_u32 s{a}, s{a}, {n}")
        self.e(f"s_addc_u32 s{a+1}, s{a+1}, 0")

    def sexpr(self, dst, terms, const=0):
        first = True
        for reg, shr, mask, shl in terms:
            t = dst if first else S_TMP + 1
            src = reg
            if shr:
                self.e(f"s_lshr_b32 s{t}, s{src}, {shr}"); src = t
            if mask is not None:
                self.e(f"s_and_b32 s{t}, s{src}, {mask}"); src = t
            if shl or src != t:
                self.e(f"s_lshl_b32 s{t}, s{src}, {shl}")
            if not first:
                self.e(f"s_add_u32 s{dst}, s{dst}, s{t}")
            first = False
        if const:
            self.e(f"s_add_u32 s{dst}, s{dst}, {const}")

    def ld4(self, dst, voff, sbase, off=0, fl="nt"):
        return self.vm(f"global_load_dwordx4 {vr(dst,4)}, v{voff}, {sr(sbase)} offset:{off} {fl}")

    def throttle(self, d):
        if d:
            self.e(f"s_waitcnt vmcnt({d-1})")

    def tag4(self, r):
        for k in range(4):
            self.e(f"v_perm_b32 v{r+k}, v{r+k}, v{V_T}, s{S_SEL+k}")

    def untag(self, r, n=4):
        for i in range(n):
            self.e(f"v_and_b32 v{r+i}, s{S_X2}, v{r+i}")

    def chkn(self, regs, acc, tmp):
        if self.o.get("nodep"):
            self.e(f"s_mov_b64 {sr(S_BAD)}, 0")
            return
        for i, r in enumerate(regs):
            self.e(f"v_perm_b32 v{tmp}, v{r+3}, v{r}, s{S_X0}")
            if len(regs) == 1:
                self.e(f"v_cmp_ne_u32 {sr(S_BAD)}, s{S_X1}, v{tmp}")
                return
            if i == 0:
                self.e(f"v_xor_b32 v{acc}, s{S_X1}, v{tmp}")
            else:
                self.e(f"v_xad_u32 v{acc}, v{tmp}, s{S_X1}, v{acc}")
        self.e(f"v_cmp_ne_u32 {sr(S_BAD)}, 0, v{acc}")

    def chk4(self, r, tmp, first):
        self.chkn([r], tmp, tmp)

    def chk_full(self, r, a, b):
        if self.o.get("nodep"):
            self.e(f"s_mov_b64 {sr(S_BAD)}, 0")
            return
        self.e(f"v_perm_b32 v{a}, v{r+1}, v{r}, s{S_X0}")
        self.e(f"v_perm_b32 v{b}, v{r+3}, v{r+2}, s{S_X0}")
        self.e(f"v_lshl_or_b32 v{a}, v{b}, 16, v{a}")
        self.e(f"v_cmp_ne_u32 {sr(S_BAD)}, v{a}, v{V_T}")

    def poll(self, issue, check, pre_issued=None, light=None):
        top, done = self.newlabel("L_poll"), self.newlabel("L_got")
        self.e(f"s_mov_b32 s{S_SPIN}, {SPIN_MAX}")
        if pre_issued is not None:
            self.vmwait(pre_issued)
            check()
            self.e(f"s_cmp_eq_u64 {sr(S_BAD)}, 0")
            self.e(f"s_cbranch_scc1 {done}")
        self.label(top)
        self.cond += 1
        self.e(f"s_sub_u32 s{S_SPIN}, s{S_SPIN}, 1")
        self.e(f"s_cbranch_scc1 {done}")
        if light:
            light[0]()
            self.e("s_waitcnt vmcnt(0)")
            light[1]()
            self.e(f"s_cmp_eq_u64 {sr(S_BAD)}, 0")
            self.e(f"s_cbranch_scc0 {top}")
        issue()
        self.e("s_waitcnt vmcnt(0)")
        check()
        self.cond -= 1
        self.e(f"s_cmp_eq_u64 {sr(S_BAD)}, 0")
        self.e(f"s_cbranch_scc0 {top}")
        self.label(done)

    def poll_pipe(self, nset, nld, issue, check, finish):
        top, done = self.newlabel("L_pp"), self.newlabel("L_ppok")
        oks = [self.newlabel("L_ppv") for _ in range(nset)]
        self.cond += 1
        self.e(f"s_mov_b32 s{S_SPIN}, {SPIN_MAX}")
        for i in range(nset - 1):
            issue(i)
        self.label(top)
        if self.o.get("dbg_sleep2") and nld == 1:
            self.e(f"s_sleep {self.o['dbg_sleep2']}")
        for i in range(nset):
            issue((i + nset - 1) % nset)
            self.e(f"s_waitcnt vmcnt({nld * (nset - 1)})")
            check(i)
            self.e(f"s_cmp_eq_u64 {sr(S_BAD)}, 0")
            self.e(f"s_cbranch_scc1 {oks[i]}")
        self.e(f"s_sub_u32 s{S_SPIN}, s{S_SPIN}, 1")
        self.e(f"s_cbranch_scc0 {top}")
        for i in reversed(range(nset)):
            self.label(oks[i])
            finish(i)
            if i:
                self.e(f"s_branch {done}")
        self.label(done)
        self.cond -= 1

    def when(self, cmp, fn):
        lab = self.newlabel("L_skip")
        self.e(cmp)
        self.e(f"s_cbranch_scc0 {lab}")
        self.cond += 1
        fn()
        self.cond -= 1
        self.label(lab)

    def arrive(self, cnt):
        self.e("v_mov_b32 v6, 1")
        self.e(f"v_mov_b32 v7, {cnt}")
        self.exec_set(1, 0)
        self.ds("ds_add_u32 v7, v6")
        self.exec_all()

    def await_cnt(self, cnt, n):
        top, done = self.newlabel("L_cnt"), self.newlabel("L_cntok")
        e = self.e
        e(f"v_mov_b32 v7, {cnt}")
        e(f"s_mov_b32 s{S_SPIN}, {SPIN_MAX*16}")
        self.label(top)
        if self.o.get("dbg_sleep3"):
            e(f"s_sleep {self.o['dbg_sleep3']}")
        e("ds_read_b32 v6, v7")
        e(f"s_sub_u32 s{S_SPIN}, s{S_SPIN}, 1")
        e(f"s_cbranch_scc1 {done}")
        e("s_waitcnt lgkmcnt(0)")
        e(f"v_readfirstlane_b32 s{S_TMP}, v6")
        e(f"s_cmp_lt_u32 s{S_TMP}, {n}")
        e(f"s_cbranch_scc1 {top}")
        self.label(done)

    def xrow(self, op, regs, tmps, which=(16, 32)):
        for w in which:
            for r, t in zip(regs, tmps):
                self.e(f"v_mov_b32 v{t}, v{r}")
            for r, t in zip(regs, tmps):
                self.e(f"v_permlane{w}_swap_b32 v{t}, v{r}")
            for r, t in zip(regs, tmps):
                self.e(f"{op} v{r}, v{r}, v{t}")

    def frag(self, dst, raw, i, nld):
        for p in range(nld // 2):
            self.e(f"v_perm_b32 v{dst+p}, v{raw + 4*(2*p+1) + (i >> 1)}, v{raw + 4*(2*p) + (i >> 1)}, s{S_HI if i & 1 else S_LO}")

    def swap_pairs(self, pairs):
        dpp = "quad_perm:[1,0,3,2] row_mask:0xf bank_mask:0xf"
        self.e(f"s_mov_b64 vcc, {sr(S_EVEN)}")
        for d, a, b in pairs:
            for k in range(4):
                self.e(f"v_cndmask_b32_dpp v{d+k}, v{b+k}, v{a+k}, vcc {dpp}")
                self.e(f"v_xor_b32 v{a+k}, v{a+k}, v{d+k}")
            for k in range(4):
                self.e(f"v_xor_b32_dpp v{b+k}, v{a+k}, v{b+k} {dpp}")

    def tree_add4(self, r, n):
        st = n // 2
        while st:
            for w in range(st):
                for k in range(4):
                    self.e(f"v_add_f32 v{r+4*w+k}, v{r+4*w+k}, v{r+4*(w+st)+k}")
            st //= 2

    def chain(self, op3, op2, dst, regs):
        regs = list(regs)
        if len(regs) >= 3 and op3:
            self.e(f"{op3} v{dst}, v{regs[0]}, v{regs[1]}, v{regs[2]}")
            rest = regs[3:]
            while len(rest) >= 2:
                self.e(f"{op3} v{dst}, v{dst}, v{rest[0]}, v{rest[1]}")
                rest = rest[2:]
        else:
            self.e(f"{op2} v{dst}, v{regs[0]}, v{regs[1]}")
            rest = regs[2:]
        for r in rest:
            self.e(f"{op2} v{dst}, v{dst}, v{r}")

    def exec_set(self, lo, hi):
        self.e(f"s_mov_b32 exec_lo, {lo:#x}")
        self.e(f"s_mov_b32 exec_hi, {hi:#x}")

    def exec_all(self):
        self.e("s_mov_b64 exec, -1")

    def prologue(self):
        e = self.e
        e("s_cmp_ge_u32 s2, 256")
        e("s_cbranch_scc1 L_end")
        self.stamp(0)
        if self.o.get("stamps"):
            pass
        e("s_load_dwordx16 s[4:19], s[0:1], 0")
        e("s_load_dwordx8 s[20:27], s[0:1], 64")
        e("s_load_dwordx4 s[28:31], s[0:1], 96")
        e("v_lshrrev_b32 v4, 6, v0")
        e("v_and_b32 v0, 63, v0")
        e("v_readfirstlane_b32 s3, v4")
        e(f"v_and_b32 v{V_N}, 15, v0")
        e(f"v_lshrrev_b32 v{V_J}, 4, v0")

    def consts(self):
        e = self.e
        if self.o.get("wsoff"):
            self.adv(S_WS, self.o["wsoff"] << 20)
        e(f"s_load_dword s{S_E}, {sr(S_WS)}, 0")
        if self.o.get("cpf"):
            def pf():
                lab = self.newlabel("L_cp")
                e(f"s_getpc_b64 {sr(S_BAD)}")
                self.label(lab)
                e(f"s_sub_u32 s{S_BAD}, s{S_BAD}, {lab}-{NAME}_kernel")
                e(f"s_subb_u32 s{S_BAD+1}, s{S_BAD+1}, 0")
                self.sexpr(S_TMP, [(2, 3, None, 11)])
                e(f"s_min_u32 s{S_TMP}, s{S_TMP}, L_tiles-{NAME}_kernel-2048")
                self.addr(S_BAD, S_BAD, S_TMP)
                e("v_lshlrev_b32 v247, 5, v0")
                self.vm(f"global_load_dword v246, v247, {sr(S_BAD)}")
            self.when("s_cmp_eq_u32 s3, 1", pf)
        for k in range(4):
            e(f"s_mov_b32 s{S_SEL+k}, {0x07060500 + k:#x}")
        e(f"s_mov_b32 s{S_LO}, 0x05040100")
        e(f"s_mov_b32 s{S_HI}, 0x07060302")
        e(f"s_mov_b32 s{S_X0}, 0x0c0c0400")
        e(f"s_mov_b32 s{S_SC}, {f2u(SCALE):#x}")
        e(f"s_mov_b32 s{S_EVEN}, 0x55555555")
        e(f"s_mov_b32 s{S_EVEN+1}, 0x55555555")

    def bitmasks(self, r):
        e = self.e
        e("v_and_b32 v4, 3, v0")
        e("v_lshlrev_b32 v4, 3, v4")
        e(f"v_lshrrev_b32 v4, v4, v{V_T}")
        for q in range(4):
            e(f"v_bfe_u32 v5, v4, {2*q+1}, 1")
            e(f"v_bfe_u32 v{r+q}, v4, {2*q}, 1")
            e(f"v_lshl_or_b32 v{r+q}, v5, 16, v{r+q}")

    def settag(self):
        self.e(f"s_add_u32 s{S_T}, s{S_E}, 0x01010101")
        self.e(f"v_mov_b32 v{V_T}, s{S_T}")
        self.e(f"s_lshr_b32 s{S_X1}, s{S_T}, 16")
        self.e(f"s_and_b32 s{S_X1}, s{S_X1}, 0xff00")
        self.e(f"s_and_b32 s{S_X2}, s{S_T}, 0xff")
        self.e(f"s_or_b32 s{S_X1}, s{S_X1}, s{S_X2}")
        self.e(f"s_mov_b32 s{S_X2}, 0xffffff00")
        if self.o.get("stamps"):
            self.e(f"s_lshl_b32 s{S_E}, s2, 3")
            self.e(f"s_add_u32 s{S_E}, s{S_E}, s3")

    def p1_issue(self, sSl, sW, sX, xr, wr, first=True):
        e = self.e
        if first:
            e(f"v_lshlrev_b32 v4, 15, v{V_J}")
            e(f"v_lshl_add_u32 v4, v{V_N}, 4, v4")
            e(f"v_bfe_u32 v5, v{V_N}, 2, 1")
            e("v_lshlrev_b32 v5, 10, v5")
            e(f"v_lshl_add_u32 v5, v{V_J}, 3, v5")
        self.sexpr(S_TMP, [(sSl, 0, 3, 7), (3, 0, None, 4)])
        self.sexpr(S_A, [(S_TMP, 0, None, 13), (sSl, 2, 31, 8)])
        e(f"s_lshl_b32 s{S_TMP}, s{S_TMP}, 1")
        if first:
            e("s_waitcnt lgkmcnt(0)")
        sW(); sX()
        self.vm(f"global_load_dwordx2 {vr(xr, 2)}, v5, {sr(S_B)}")
        for t in range(4):
            tok = self.ld4(wr + 4 * t, 4, S_A)
            if t < 3:
                self.adv(S_A, 8192)
        if first:
            e("s_barrier")
        return tok

    def p1_plain(self, sSl, W, X, xr, wr, first=True):
        def sW():
            self.e(f"s_add_u32 s{S_A}, s{W}, s{S_A}")
            self.e(f"s_addc_u32 s{S_A+1}, s{W+1}, 0")
        return self.p1_issue(sSl, sW, lambda: self.addr(S_B, X, S_TMP), xr, wr, first)

    def p1_compute(self, sSl, tok, xr, wr, d0, X, lds=0, first=True):
        e = self.e
        e(f"v_lshlrev_b32 v4, 5, v{V_N}")
        e(f"v_lshl_add_u32 v4, v{V_J}, 9, v4")
        self.sexpr(S_TMP, [(3, 0, None, 10)], lds)
        e(f"v_add_u32 v4, s{S_TMP}, v4")
        self.vmwait(tok)
        for i in range(8):
            t = X + 2 * (i & 3)
            self.frag(t, wr, i, 4)
            e(f"v_mfma_f32_16x16x16_bf16 {vr(d0+4*i,4)}, {vr(xr,2)}, {vr(t,2)}, 0")
        self.exec_set(0xffffffff, 0)
        for i in range(0, 8, 2):
            self.ds(f"ds_write2_b32 v4, v{d0+4*i}, v{d0+4*i+4} offset0:{i} offset1:{i+1}")
        self.exec_all()
        e("s_waitcnt lgkmcnt(0)")
        if first:
            self.settag()
        e("s_barrier")

        def pub():
            e("v_lshlrev_b32 v4, 4, v0")
            for w in range(8):
                self.ds(f"ds_read_b128 {vr(d0+4*w,4)}, v4 offset:{lds+w*1024}")
            e(f"s_lshl_b32 s{S_TMP}, s{sSl}, 10")
            self.addr(S_B, S_WS, S_TMP, WS_QP)
            e("s_waitcnt lgkmcnt(0)")
            self.tree_add4(d0, 8)
            self.tag4(d0)
            self.vm(f"global_store_dwordx4 v4, {vr(d0,4)}, {sr(S_B)} sc1")

        self.when(f"s_cmp_eq_u32 s3, {PUBW if first or self.role7 else 0}", pub)
        if first:
            self.stamp(1)

    def p1_multi(self, offs, pre, d0, lds):
        e = self.e
        sl, raw, tok = [S_SL, S_SL + 1, 99], [16, 32, 100], []
        for i, off in enumerate(offs):
            e(f"s_add_u32 s{sl[i]}, s2, {off}")
            tok.append(self.p1_plain(sl[i], S_WQB if i else S_WQA, S_BX if i else S_AX, 8 + 2 * i, raw[i], first=not i))
        self.consts()
        pre()
        for i in range(len(offs)):
            self.p1_compute(sl[i], tok[i], 8 + 2 * i, raw[i], d0, 48, lds[i], first=not i)


class Chunk:
    QS, ST, OS = 8192, 9216, 10240

    def __init__(self, k, nb, extra, KR, VR, QF, SR, ACC, X, VA, CNT, sK, sV, sQ, QG=8, w0=0, lds=None):
        self.k, self.nb, self.extra, self.QG, self.w0 = k, nb, extra, QG, w0
        if lds:
            self.QS, self.ST, self.OS = lds
        self.KR, self.VR, self.QF, self.SR, self.ACC, self.X = KR, VR, QF, SR, ACC, X
        self.vK, self.vV, self.vQ, self.vF = VA, VA + 1, VA + 2, VA + 3
        self.CNT, self.sK, self.sV, self.sQ = CNT, sK, sV, sQ
        self.sPair, self.sChunk, self.sTile, self.sNx = S_P, S_P + 1, S_P + 2, [S_P + 3, S_P + 5]
        self.ktok, self.vtok = {}, {}

    def ifx(self, i, fn):
        self.k.when(f"s_cmp_lt_u32 s3, s{self.sNx[i]}", fn)

    def setup(self):
        k = self.k; e = k.e
        k.sexpr(S_TMP, [(self.sPair, 0, None, 21), (self.sTile, 0, None, 12)])
        k.addr(self.sK, S_K, S_TMP)
        k.addr(self.sV, S_V, S_TMP)
        a, b = self.vQ, self.vF
        e(f"v_bfe_u32 v{a}, v0, 1, 1")
        e(f"v_lshlrev_b32 v{a}, 11, v{a}")
        e(f"v_bfe_u32 v{b}, v0, 2, 2")
        e(f"v_lshl_add_u32 v{a}, v{b}, 8, v{a}")
        e(f"v_lshl_add_u32 v{a}, v{V_J}, 5, v{a}")
        e(f"v_and_b32 v{b}, 1, v0")
        e(f"v_lshl_add_u32 v{self.vK}, v{b}, 4, v{a}")
        e(f"v_lshlrev_b32 v{self.vV}, 4, v0")
        e(f"v_lshlrev_b32 v{self.vQ}, 10, v{V_J}")
        e(f"v_lshl_add_u32 v{self.vQ}, v{V_N}, 4, v{self.vQ}")

    def qaddr(self):
        k = self.k
        if self.w0 == 0:
            k.sexpr(S_TMP, [(self.sPair, 0, 7, 14), (3, 1, None, 12), (self.sPair, 3, None, 9), (3, 0, 1, 8)])
        else:
            k.sexpr(S_TMP, [(self.sPair, 0, 7, 14), (3, 0, 3, 12), (self.sPair, 3, None, 9)])
        k.addr(self.sQ, S_WS, S_TMP, WS_QP + 128 * 1024)

    def kload(self, t, d=0, lo=0, hi=4):
        for ks in range(lo, hi):
            self.k.throttle(d)
            r = (ks >> 1) + 2 * (ks & 1)
            self.ktok[t] = self.k.ld4(self.KR[t] + 4 * r, self.vK, self.sK, (ks >> 1) * 1024 + (ks & 1) * 128)
        if hi == 4:
            self.k.adv(self.sK, 4096)

    def vload(self, t, d=0, lo=0, hi=4):
        for i in range(lo, hi):
            self.k.throttle(d)
            self.vtok[t] = self.k.ld4(self.VR[t] + 4 * i, self.vV, self.sV, i * 1024)
        if hi == 4:
            self.k.adv(self.sV, 4096)

    def qissue(self):
        for i in range(2 if self.w0 else 1):
            t = self.k.ld4(self.QG + 4 * i, self.vQ, self.sQ, i * 256, "sc1")
        return t

    def qpiece(self, tok=None):
        k = self.k; e = k.e
        g, n = self.QG, 2 if self.w0 else 1
        k.poll(self.qissue, lambda: k.chkn([g + 4 * i for i in range(n)], 4, 5), pre_issued=tok)
        k.untag(g, 4 * n)
        for i in range(n):
            r = g + 4 * i
            k.xrow("v_add_f32", [r, r + 1, r + 2, r + 3], [self.X + j for j in range(4)])
            e(f"v_cvt_pk_bf16_f32 v{r}, v{r}, v{r+1}")
            e(f"v_cvt_pk_bf16_f32 v{r+1}, v{r+2}, v{r+3}")
        k.sexpr(S_TMP, [(3, 0, 3 if self.w0 else None, 6 + n)])
        e(f"v_lshlrev_b32 v4, 3, v{V_N}")
        e(f"v_add_u32 v4, s{S_TMP}, v4")
        k.exec_set(0xffff, 0)
        for i in range(n):
            k.ds(f"ds_write_b64 v4, {vr(g+4*i,2)} offset:{self.QS+i*128}")
        k.arrive(self.CNT)

    def qread(self):
        k = self.k; e = k.e
        k.await_cnt(self.CNT, 8 - self.w0)
        e(f"v_lshrrev_b32 v4, 2, v{V_N}")
        e("v_lshlrev_b32 v4, 8, v4")
        e(f"v_lshl_add_u32 v4, v{V_J}, 5, v4")
        for ks in range(4):
            k.ds(f"ds_read_b128 {vr(self.QF+4*ks,4)}, v4 offset:{self.QS+(ks>>1)*128+(ks&1)*16}")
        for r in range(4 * self.extra):
            e(f"v_mov_b32 v{self.SR+4*self.nb+r}, 0xff800000")

    def qk(self, t):
        k = self.k
        k.vmwait(self.ktok[t])
        k0, x = self.KR[t], self.X + 8 * (t & 1)
        k.swap_pairs([(x, k0, k0 + 4), (x + 4, k0 + 8, k0 + 12)])
        d = vr(self.SR + 4 * t, 4)
        for ks, f in enumerate((x, k0 + 4, x + 4, k0 + 12)):
            k.e(f"v_mfma_f32_16x16x32_bf16 {d}, {vr(f,4)}, {vr(self.QF+4*ks,4)}, {'0' if ks == 0 else d}")

    def softmax(self):
        k = self.k; e = k.e
        SR = self.SR
        n = 4 * (self.nb + self.extra)
        k.chain("v_max3_f32", "v_max_f32", 4, range(SR, SR + n))
        k.xrow("v_max_f32", [4], [5])
        e(f"v_mul_f32 v4, s{S_SC}, v4")
        for i in range(n):
            e(f"v_fma_f32 v{SR+i}, v{SR+i}, s{S_SC}, -v4")
        for i in range(n):
            e(f"v_exp_f32 v{SR+i}, v{SR+i}")
        k.chain(None, "v_add_f32", 5, range(SR, SR + n))
        for i in range(n // 2):
            e(f"v_cvt_pk_bf16_f32 v{SR+i}, v{SR+2*i}, v{SR+2*i+1}")
        k.xrow("v_add_f32", [5], [6])
        e(f"s_lshl_b32 s{S_TMP}, s3, 5")
        e(f"v_lshlrev_b32 v6, 1, v{V_N}")
        e(f"v_add_u32 v6, s{S_TMP}, v6")
        k.exec_set(0x1111, 0)
        k.ds(f"ds_write_b64 v6, v[4:5] offset:{self.ST}")
        k.arrive(self.CNT + 4)

    def pv(self, t, n, first=False):
        k = self.k
        k.vmwait(self.vtok[t + n - 1])
        for i in range(8):
            x = self.X + 4 * (i & 3)
            k.frag(x, self.VR[t], i, 4 * n)
            d = vr(self.ACC + 4 * i, 4)
            op = "v_mfma_f32_16x16x32_bf16" if n == 2 else "v_mfma_f32_16x16x16_bf16"
            k.e(f"{op} {d}, {vr(self.SR+2*t,2*n)}, {vr(x,2*n)}, {'0' if first else d}")

    def factor(self, T0):
        k = self.k; e = k.e
        nw = 8 - self.w0
        k.await_cnt(self.CNT + 4, nw)
        e(f"v_lshlrev_b32 v6, 3, v{V_J}")
        for w in range(nw):
            k.ds(f"ds_read_b64 {vr(T0+2*w,2)}, v6 offset:{self.ST+(self.w0+w)*32}")
        e(f"s_lshl_b32 s{S_TMP}, s3, 5")
        e(f"v_add_u32 v6, s{S_TMP}, v6")
        k.ds(f"ds_read_b64 v[4:5], v6 offset:{self.ST}")
        k.lgwait()
        k.chain("v_max3_f32", "v_max_f32", 7, range(T0, T0 + 2 * nw, 2))
        for w in range(nw):
            e(f"v_sub_f32 v{T0+2*w}, v{T0+2*w}, v7")
        e("v_sub_f32 v4, v4, v7")
        for w in range(nw):
            e(f"v_exp_f32 v{T0+2*w}, v{T0+2*w}")
        e("v_exp_f32 v4, v4")
        e(f"v_mul_f32 v5, v{T0}, v{T0+1}")
        for w in range(1, nw):
            e(f"v_fmac_f32 v5, v{T0+2*w}, v{T0+2*w+1}")
        e("v_rcp_f32 v6, v5")
        e("v_log_f32 v5, v5")
        e(f"v_mul_f32 v{self.vF}, v4, v6")

        def lse():
            for i in range(4):
                e(f"v_add_f32 v{8+i}, v5, v7")
            k.tag4(8)
            k.sexpr(S_TMP, [(self.sPair, 0, 7, 11), (self.sPair, 3, None, 8), (self.sChunk, 0, None, 4)])
            k.addr(self.sQ, S_WS, S_TMP, WS_LSEB)
            e(f"v_lshlrev_b32 v4, 9, v{V_J}")
            k.exec_set(0x00010001, 0x00010001)
            k.vm(f"global_store_dwordx4 v4, v[8:11], {sr(self.sQ)} sc1")
            k.exec_all()

        k.when(f"s_cmp_eq_u32 s3, {PUBW}", lse)
        k.sexpr(S_TMP, [(self.sPair, 0, 7, 3), (3, 0, 1, 2), (self.sPair, 3, None, 0)])
        e(f"s_mul_i32 s{S_TMP}, s{S_TMP}, {NCB}")
        e(f"s_add_u32 s{S_TMP}, s{S_TMP}, s{self.sChunk}")
        e(f"s_lshl_b32 s{S_TMP}, s{S_TMP}, 9")
        k.addr(self.sQ, S_WS, S_TMP, WS_OP)
        e("v_lshrrev_b32 v4, 5, v0")
        e(f"v_mul_u32_u24 v4, {2*NCB*512}, v4")
        e("v_and_b32 v5, 31, v0")
        e(f"v_lshl_add_u32 v{self.vQ}, v5, 4, v4")
        e(f"s_lshl_b32 s{S_TMP}, s3, 11")
        e(f"v_lshlrev_b32 v4, 9, v{V_J}")
        e(f"v_lshl_add_u32 v4, v{V_N}, 5, v4")
        e(f"v_add_u32 v{self.vK}, s{S_TMP}, v4")
        k.sexpr(S_TMP, [(3, 0, 1, 10)])
        e(f"v_add_u32 v{T0}, s{S_TMP}, v{self.vV}")
        self.vR = T0

    def finish(self, T0, st, cont=False):
        k = self.k; e = k.e
        k.stamp(st)
        T0 += 4
        for i in range(8):
            e(f"v_mul_f32 v{T0+i}, v{self.vF}, v{self.ACC+4*i}")
        k.ds(f"ds_write_b128 v{self.vK}, {vr(T0,4)} offset:{self.OS}")
        k.ds(f"ds_write_b128 v{self.vK}, {vr(T0+4,4)} offset:{self.OS+16}")
        nw = 8 - self.w0
        if self.w0:
            k.arrive(self.CNT + 8)
        else:
            k.barrier()

        def pub():
            if self.w0:
                k.await_cnt(self.CNT + 8, nw)
            for w in range(nw):
                k.ds(f"ds_read_b128 {vr(T0+4*w,4)}, v{self.vR} offset:{self.OS+(self.w0+w)*2048}")
            k.lgwait()
            k.tree_add4(T0, nw)
            k.tag4(T0)
            k.vm(f"global_store_dwordx4 v{self.vQ}, {vr(T0,4)}, {sr(self.sQ)} sc1")
            k.stamp(st + 1)

        k.when("s_cmp_ge_u32 s3, 6", pub)
        if not cont:
            e("s_branch L_fin")


def role_B(k):
    e, o = k.e, k.o
    D1, D, DV, SW = o.get("depth_b1", 3), o.get("depth_b", 6), o.get("depth_v", 8), o.get("b_sw", 2)
    KR = [160 + 16 * t for t in range(6)] + [144]
    VR = [16, 32, KR[0], KR[1], KR[2], KR[3], KR[4]]
    CNT, QS2, QAS, UK = 9728, 9856, 40960, 144
    c = Chunk(k, 5, 2, KR, VR, QF=128, SR=100, ACC=64, X=48, VA=96, CNT=CNT, sK=S_C, sV=S_D, sQ=S_A)
    sI = S_P + 4
    dep = lambda t: D1 if t < SW else D
    npre, bpre = o.get("p2_at", 2), o.get("b_pre", 1)

    def kstream(lo, hi, thr, c=c):
        for n in range(lo, hi):
            c.kload(n >> 2, dep(n >> 2) if thr else 0, n & 3, (n & 3) + 1)

    def params(c=c):
        e("s_waitcnt lgkmcnt(0)")
        e(f"s_bfe_u32 s{c.sNx[0]}, s{c.sTile}, 0x40010")
        e(f"s_bfe_u32 s{c.sNx[1]}, s{c.sTile}, 0x40014")
        e(f"s_bfe_u32 s{c.sPair}, s{c.sTile}, 0x40018")
        e(f"s_lshr_b32 s{c.sChunk}, s{c.sTile}, 28")
        e(f"s_and_b32 s{c.sTile}, s{c.sTile}, 0xffff")
        e(f"s_mul_i32 s{S_TMP}, s3, {c.nb}")
        e(f"s_add_u32 s{c.sTile}, s{c.sTile}, s{S_TMP}")
        for i in range(2):
            e(f"s_min_u32 s{S_TMP}, s3, s{c.sNx[i]}")
            e(f"s_add_u32 s{c.sTile}, s{c.sTile}, s{S_TMP}")
        c.setup()
        for r in range(124, 128):
            e(f"v_mov_b32 v{r}, 0")
        e(f"v_mov_b32 v123, {CNT}")
        k.ds("ds_write_b128 v123, v[124:127]")

    k.c("================ role B1")
    k.label("L_roleB")
    e(f"s_sub_u32 s{sI}, s2, {NT+NA}")
    e(f"s_getpc_b64 {sr(S_C)}")
    k.label("L_pc")
    e(f"s_lshl_b32 s{S_TMP}, s{sI}, 2")
    e(f"s_add_u32 s{S_C}, s{S_C}, L_tiles-L_pc")
    e(f"s_addc_u32 s{S_C+1}, s{S_C+1}, 0")
    e(f"s_load_dword s{c.sTile}, {sr(S_C)}, s{S_TMP}")
    e("s_cmp_ge_u32 s2, 224")
    e("s_cbranch_scc1 L_roleB2")
    base = k.vm_n
    e(f"s_add_u32 s{S_SL}, s{sI}, 64")

    def selW():
        e(f"s_cmp_lt_u32 s{sI}, 64")
        e(f"s_cselect_b32 s{S_C}, s{S_WQA}, s{S_WQB}")
        e(f"s_cselect_b32 s{S_C+1}, s{S_WQA+1}, s{S_WQB+1}")
        e(f"s_cselect_b32 s{S_B}, s{S_AX}, s{S_BX}")
        e(f"s_cselect_b32 s{S_B+1}, s{S_AX+1}, s{S_BX+1}")
        e(f"s_add_u32 s{S_A}, s{S_C}, s{S_A}")
        e(f"s_addc_u32 s{S_A+1}, s{S_C+1}, 0")

    tok = k.p1_issue(S_SL, selW, lambda: k.addr(S_B, S_B, S_TMP), 8, 16)
    k.sexpr(S_TMP, [(sI, 0, 3, 20), (3, 0, None, 17), (sI, 2, None, 8)])
    k.addr(S_C, S_WUK, S_TMP)
    e("v_bfe_u32 v33, v0, 1, 3")
    e("v_lshlrev_b32 v33, 14, v33")
    e(f"v_lshl_add_u32 v33, v{V_J}, 5, v33")
    e("v_and_b32 v32, 1, v0")
    e("v_lshl_add_u32 v33, v32, 4, v33")
    e("v_add_u32 v32, 0x2000, v33")
    for ks in range(4):
        uktok = k.ld4(UK + 4 * ((ks >> 1) + 2 * (ks & 1)), 33 - (ks >> 1), S_C, (ks & 1) * 128)
    k.consts()
    params()
    kstream(0, bpre, False)
    k.p1_compute(S_SL, tok, 8, 16, c.ACC, 48)
    kstream(bpre, npre, False)
    k.sexpr(S_TMP, [(sI, 2, None, 12), (3, 0, 3, 8)])
    k.addr(S_B, S_WS, S_TMP, WS_QP)

    def p2_piece():
        e(f"s_waitcnt vmcnt({o.get('p2_w', 0)})")
        k.poll(lambda: k.ld4(8, c.vQ, S_B, 0, "sc1"), lambda: k.chk4(8, 4, True))
        k.untag(8)
        k.xrow("v_add_f32", [8, 9, 10, 11], [12, 13, 14, 15])
        e("v_cvt_pk_bf16_f32 v8, v8, v9")
        e("v_cvt_pk_bf16_f32 v9, v10, v11")
        k.sexpr(S_TMP, [(3, 0, 3, 7)])
        e(f"v_lshlrev_b32 v4, 3, v{V_N}")
        e(f"v_add_u32 v4, s{S_TMP}, v4")
        k.exec_set(0xffff, 0)
        k.ds(f"ds_write_b64 v4, v[8:9] offset:{QS2}")
        k.arrive(CNT + 8)

    k.vmwait(uktok)
    k.swap_pairs([(48, UK, UK + 4), (52, UK + 8, UK + 12)])
    k.when("s_cmp_ge_u32 s3, 4", p2_piece)
    k.stamp(7)
    k.sexpr(S_TMP, [(sI, 2, None, 10), (sI, 0, 3, 8)])
    k.addr(S_B, S_WS, S_TMP, WS_QA)
    k.bitmasks(12)
    e("v_mov_b32 v16, 0xfffefffe")
    e(f"v_lshlrev_b32 v17, 15, v{V_J}")
    e(f"v_lshl_add_u32 v17, v{V_N}, 4, v17")
    e(f"v_lshlrev_b32 v5, 8, v{V_N}")
    e(f"v_lshl_add_u32 v5, v{V_J}, 3, v5")
    e(f"s_lshl_b32 s{S_TMP}, s3, 5")
    e(f"v_add_u32 v5, s{S_TMP}, v5")
    e(f"v_and_b32 v4, 1, v{V_N}")
    e("v_lshlrev_b32 v4, 8, v4")
    e(f"v_lshl_add_u32 v4, v{V_J}, 5, v4")
    k.await_cnt(CNT + 8, 4)
    for ks in range(4):
        k.ds(f"ds_read_b128 {vr(c.QF+4*ks,4)}, v4 offset:{QS2+(ks>>1)*128+(ks&1)*16}")
    k.lgwait()
    for ks, f in enumerate((48, UK + 4, 52, UK + 12)):
        e(f"v_mfma_f32_16x16x32_bf16 v[8:11], {vr(f,4)}, {vr(c.QF+4*ks,4)}, {'0' if ks == 0 else 'v[8:11]'}")
    for i in range(4):
        e(f"v_add_u32 v{8+i}, 0x10000, v{8+i}")
    e(f"v_perm_b32 v8, v9, v8, s{S_HI}")
    e(f"v_perm_b32 v9, v11, v10, s{S_HI}")
    k.exec_set(0x00030003, 0x00030003)
    k.ds(f"ds_write_b64 v5, v[8:9] offset:{QAS}")
    k.arrive(CNT + 12)

    def qa_pub():
        k.await_cnt(CNT + 12, 8)
        k.ds(f"ds_read_b128 v[8:11], v{c.vV} offset:{QAS}")
        k.lgwait()
        for q in range(4):
            e(f"v_and_or_b32 v{8+q}, v{8+q}, v16, v{12+q}")
        k.exec_set(0xffffffff, 0)
        k.vm(f"global_store_dwordx4 v17, v[8:11], {sr(S_B)} sc1")
        k.exec_all()

    k.when(f"s_cmp_eq_u32 s3, {o.get('qaw', 3)}", qa_pub)
    k.stamp(8)
    c.qaddr()
    qat = o.get("b_qat", 2)
    for t in range(5):
        if t == qat:
            qtok = c.qissue()
        kstream(max(4 * t, npre), max(4 * t + 4, npre), True)
        if t == o.get("b_qchk", 4):
            k.stamp(2)
            c.qpiece(qtok)
            k.stamp(3)
    c.ifx(0, lambda: c.kload(5, D))
    c.ifx(1, lambda: c.kload(6, D))
    c.qread()
    c.vload(0, DV)
    k.lgwait()
    c.qk(0); c.qk(1)
    c.vload(1, DV)
    c.qk(2); c.qk(3)
    c.vload(2, DV)
    c.qk(4)
    c.ifx(0, lambda: c.qk(5))
    c.ifx(1, lambda: c.qk(6))
    c.vload(3, DV)
    k.stamp(4)
    c.softmax()
    c.vload(4, DV)
    c.pv(0, 2, first=True)
    c.ifx(0, lambda: c.vload(5, DV))
    c.factor(16)
    c.ifx(1, lambda: c.vload(6, DV))
    c.pv(2, 2)
    c.pv(4, 1)
    c.ifx(0, lambda: c.pv(5, 1))
    c.ifx(1, lambda: c.pv(6, 1))
    c.finish(16, 5)
    k.c("================ role B2")
    k.label("L_roleB2")
    k.vm_n = base
    K2 = [160, 176, 192, 208]
    c = Chunk(k, 3, 1, K2, [16, 32, K2[0], K2[1]], QF=128, SR=100, ACC=64, X=48, VA=96, CNT=CNT, sK=S_C, sV=S_D, sQ=S_A)
    k.p1_multi([-192, 0], lambda: (params(c), kstream(0, bpre, False, c)), c.ACC, [0, 16384])
    D2 = o.get("depth_b2", 4)
    SW2 = 98
    k.sexpr(S_TMP, [(2, 0, 31, 17), (3, 2, None, 16), (3, 0, 3, 8)])
    k.addr(SW2, S_WOB, S_TMP)
    e(f"v_lshlrev_b32 v144, 13, v{V_J}")
    e(f"v_lshl_add_u32 v144, v{V_N}, 4, v144")
    k.sexpr(S_TMP, [(3, 0, 3, 15), (3, 2, None, 14)], WOL)
    e(f"v_add_u32 v145, s{S_TMP}, v{c.vV}")
    c.qaddr()
    for n in range(bpre, 12):
        if n == 8:
            qtok = c.qissue()
        c.kload(n >> 2, D2, n & 3, (n & 3) + 1)
    c.ifx(0, lambda: c.kload(3, D2))
    c.vload(0, D2)
    c.qpiece(qtok)
    c.vload(1, D2)
    c.qread()
    k.lgwait()
    c.qk(0); c.qk(1); c.qk(2)
    c.ifx(0, lambda: c.qk(3))
    c.vload(2, D2)
    c.ifx(0, lambda: c.vload(3, D2))
    k.stamp(4)
    c.softmax()
    wtok = {}

    def wload(g):
        for t in range(8):
            k.throttle(D2)
            wtok[g] = k.ld4((224, 192)[g] + 4 * t, 144, SW2, (t & 3) * 1024)
            if t & 3 == 3:
                k.adv(SW2, 4096 if t == 3 else 4096 * 7)

    c.pv(0, 2, first=True)
    c.factor(16)
    wload(0)
    c.pv(2, 1)
    c.ifx(0, lambda: c.pv(3, 1))
    c.finish(16, 5, cont=True)
    wload(1)
    for r in range(4, 8):
        e(f"v_mov_b32 v{r}, 0")
    e(f"v_mov_b32 v8, {CNTB}")
    k.ds("ds_write_b128 v8, v[4:7]")
    for g in range(2):
        k.vmwait(wtok[g])
        for i in range(8):
            x = 8 + 4 * (i & 3)
            k.frag(x, (224, 192)[g], i, 8)
            k.ds(f"ds_write_b128 v145, {vr(x,4)} offset:{g*8192+i*1024}")
    k.barrier()
    e("s_cmp_ge_u32 s3, 4")
    e("s_cbranch_scc1 L_fin")
    k.sexpr(S_TMP, [(3, 0, None, 15)], WOL)
    e("v_lshlrev_b32 v31, 4, v0")
    e(f"v_add_u32 v30, s{S_TMP}, v31")
    for f in range(32):
        k.ds(f"ds_read_b128 {vr(32+4*f,4)}, v30 offset:{f*1024}")
    e("s_and_b32 s2, s2, 31")
    e("s_add_u32 s3, s3, 4")
    e("s_branch L_ldok")


def role_A(k):
    e, o = k.e, k.o
    C0, G, QT, SR, ACC = 128, 64, 64, 48, 96
    Q = 131072
    PB, ST, ST2, CNT = Q, Q + 16384, Q + 17408, 9728
    sB, sCh, sA = S_P + 4, S_P + 5, S_P + 6
    AT = o.get("a_t", 1)
    c = Chunk(k, AT, 0, KR=[128, 144][:AT], VR=[160, 176][:AT], QF=64, SR=48, ACC=96, X=80, VA=28, CNT=CNT, sK=S_C, sV=S_D, sQ=S_B, QG=22)
    k.c("================ role A")
    k.label("L_roleA")
    e(f"s_sub_u32 s{sA}, s2, {NT}")
    k.sexpr(S_TMP, [(sA, 0, None, 18), (3, 0, None, 14)])
    e("v_bfe_u32 v32, v0, 1, 3")
    e("v_lshlrev_b32 v32, 11, v32")
    e(f"v_lshl_add_u32 v32, v{V_J}, 5, v32")
    e("v_and_b32 v33, 1, v0")
    e("v_lshl_add_u32 v32, v33, 4, v32")
    e("s_waitcnt lgkmcnt(0)")
    SCK = 98
    k.addr(SCK, S_CKV, S_TMP)
    DA = o.get("depth_a", 5)
    coff = lambda ks: (ks & 1) * 1024 + (ks >> 1) * 128
    CF = []
    for p in range(16):
        CF += [C0 + 8 * p - 8 if p else 124, C0 + 8 * p + 4]
    ctok = {}
    st = {"n": 0}
    sVal = 92

    def pump(upto):
        while st["n"] < min(upto, 32):
            n = st["n"]
            if n == 16:
                k.adv(SCK, 131072)
            m = (n & ~3) | ((n & 1) << 1) | ((n >> 1) & 1)
            ctok[m] = k.ld4(C0 + 4 * m, 32, SCK, coff(m & 15))
            st["n"] += 1

    pump(DA)
    k.consts()
    e(f"s_lshr_b32 s{sB}, s{sA}, 5")
    e(f"s_and_b32 s{sCh}, s{sA}, 31")
    e(f"v_bfe_u32 v4, v{V_N}, 1, 2")
    e(f"v_and_b32 v5, 3, v{V_N}")
    e("v_lshl_add_u32 v4, v5, 2, v4")
    e(f"v_lshlrev_b32 v5, 1, v{V_J}")
    e("v_xor_b32 v4, v4, v5")
    e(f"s_lshl_b32 s{S_TMP}, s3, 14")
    e(f"v_lshlrev_b32 v5, 10, v{V_N}")
    e(f"v_add_u32 v5, s{S_TMP}, v5")
    e("v_lshl_add_u32 v40, v4, 4, v5")
    kx = lambda q: (q >> 1) * 128 + (q & 1) * 16
    for q in range(1, 4):
        e(f"v_xor_b32 v{40+q}, {kx(q)}, v40")
    k.sexpr(S_TMP, [(sB, 0, None, 15), (3, 0, None, 12)])
    k.addr(S_A, S_WS, S_TMP, WS_QA)
    e("v_lshlrev_b32 v33, 4, v0")
    e(f"v_lshlrev_b32 v4, 1, v{V_J}")
    e(f"v_xor_b32 v4, v4, v{V_N}")
    e(f"v_lshlrev_b32 v5, 10, v{V_N}")
    e(f"v_add_u32 v5, {Q}, v5")
    e("v_lshl_add_u32 v44, v4, 4, v5")
    for q in range(1, 4):
        e(f"v_xor_b32 v{44+q}, {kx(q)}, v44")
    e(f"v_lshlrev_b32 v4, 5, v{V_N}")
    e(f"v_add_u32 v35, {ST}, v4")
    e(f"s_lshl_b32 s{S_TMP}, s3, 2")
    e(f"v_add_u32 v36, s{S_TMP}, v35")
    e("v_and_b32 v6, 31, v0")
    e("v_lshlrev_b32 v4, 5, v6")
    e(f"v_add_u32 v37, {ST}, v4")
    e(f"v_lshrrev_b32 v7, 1, v{V_J}")
    e(f"s_lshl_b32 s{S_TMP}, s3, 1")
    e(f"v_add_u32 v7, s{S_TMP}, v7")
    e(f"v_xor_b32 v7, v7, v{V_N}")
    e("v_lshlrev_b32 v7, 4, v7")
    e(f"v_lshl_add_u32 v7, v{V_N}, 9, v7")
    e(f"v_and_b32 v8, 1, v{V_J}")
    e("v_lshl_add_u32 v7, v8, 3, v7")
    e(f"v_add_u32 v38, {PB}, v7")
    e("v_lshrrev_b32 v4, 5, v0")
    e(f"v_xor_b32 v7, v4, v{V_N}")
    e("v_lshlrev_b32 v7, 4, v7")
    e("v_lshl_add_u32 v7, v6, 9, v7")
    e(f"v_add_u32 v20, {PB}, v7")
    k.sexpr(S_TMP, [(3, 0, 1, 3)])
    e(f"v_xor_b32 v7, s{S_TMP}, v{V_N}")
    e("v_lshlrev_b32 v7, 4, v7")
    e("v_lshl_add_u32 v7, v6, 10, v7")
    e("v_lshl_add_u32 v7, v4, 3, v7")
    k.sexpr(S_TMP, [(3, 1, None, 8)], Q)
    e(f"v_add_u32 v39, s{S_TMP}, v7")
    k.sexpr(S_TMP, [(3, 0, 3, 2)])
    e(f"v_xor_b32 v7, s{S_TMP}, v0")
    e("v_lshlrev_b32 v7, 4, v7")
    k.sexpr(S_TMP, [(3, 0, None, 12)], Q)
    e(f"v_add_u32 v27, s{S_TMP}, v7")
    e("v_bfe_u32 v5, v0, 2, 2")
    e("v_lshl_add_u32 v6, v4, 3, v5")
    e("v_lshlrev_b32 v6, 10, v6")
    e("v_and_b32 v7, 1, v0")
    e("v_lshl_add_u32 v6, v7, 3, v6")
    k.sexpr(S_TMP, [(3, 1, None, 8)])
    e(f"v_add_u32 v6, s{S_TMP}, v6")
    e("v_bfe_u32 v7, v0, 4, 1")
    e("v_bfe_u32 v8, v0, 1, 1")
    e("v_lshl_add_u32 v7, v7, 1, v8")
    k.sexpr(S_TMP, [(3, 0, 1, 3)])
    e(f"v_add_u32 v7, s{S_TMP}, v7")
    e("v_lshrrev_b32 v8, 1, v5")
    e("v_lshlrev_b32 v5, 2, v5")
    e("v_xor_b32 v7, v7, v5")
    e("v_xor_b32 v7, v7, v8")
    for mt in range(2):
        for ee in range(2):
            r = 16 + 2 * mt + ee
            e(f"v_xor_b32 v{r}, {4*mt + 2*ee}, v7")
            e(f"v_lshl_add_u32 v{r}, v{r}, 4, v6")
            if ee:
                e(f"v_add_u32 v{r}, 4096, v{r}")
    e(f"s_lshr_b32 s{c.sPair}, s{sA}, 2")
    k.sexpr(c.sChunk, [(sA, 0, 3, 0)], 10)
    k.sexpr(c.sTile, [(sA, 0, 3, 2 + AT), (3, 0, None, AT - 1)], 512 - 32 * AT)
    c.setup()
    SL, SFL = 94, 100
    k.sexpr(S_TMP, [(3, 0, None, 18), (sB, 0, None, 15), (sCh, 0, None, 10)])
    k.addr(SL, S_WS, S_TMP, WS_LATP)
    k.sexpr(S_TMP, [(sA, 0, None, 3)])
    k.addr(SFL, S_WS, S_TMP, WS_LSEA)
    e("s_waitcnt lgkmcnt(0)")
    k.settag()
    k.bitmasks(G + 16)

    def cwrite(ks):
        k.ds(f"ds_write_b128 v{40+(ks&3)}, {vr(CF[ks],4)} offset:{((ks&15)>>2)*256}")

    def qload(q):
        return k.ld4(G + 4 * q, 33, S_A, q * 1024, "sc1")

    gat, gq = o.get("a_gat", 10), o.get("a_gq", 12)

    def cproc(p):
        pump(2 * p + 2 + DA)
        if p == gat:
            for q in range(4):
                st["g"] = qload(q)
        k.vmwait(ctok[2 * p + 1])
        k.swap_pairs([(CF[2 * p], C0 + 8 * p, C0 + 8 * p + 4)])
        if p < 8:
            cwrite(2 * p); cwrite(2 * p + 1)

    for p in range(gq + 1):
        cproc(p)
    pump(2 * gq + 4 + DA)
    k.stamp(2)
    top, chk, done = k.newlabel("L_qa"), k.newlabel("L_qachk"), k.newlabel("L_qaok")
    e(f"s_mov_b32 s{sVal}, 0")
    e(f"s_mov_b32 s{S_SPIN}, {SPIN_MAX}")
    k.vmwait(st["g"])
    e(f"s_branch {chk}")
    k.label(top)
    k.cond += 1
    e(f"s_sub_u32 s{S_SPIN}, s{S_SPIN}, 1")
    e(f"s_cbranch_scc1 {done}")
    for q in range(4):
        lab = k.newlabel("L_qsk")
        e(f"s_bitcmp1_b32 s{sVal}, {q}")
        e(f"s_cbranch_scc1 {lab}")
        qload(q)
        k.label(lab)
    e("s_waitcnt vmcnt(0)")
    k.label(chk)
    for q in range(4):
        for i in range(4):
            e(f"v_xor_b32 v{4+i}, v{G+4*q+i}, v{G+16+i}")
        e("v_or3_b32 v4, v4, v5, v6")
        e("v_or_b32 v4, v4, v7")
        e("v_and_b32 v4, 0x10001, v4")
        e(f"v_cmp_ne_u32 {sr(S_BAD)}, 0, v4")
        e(f"s_cmp_eq_u64 {sr(S_BAD)}, 0")
        e(f"s_cselect_b32 s{S_TMP}, {1 << q}, 0")
        e(f"s_or_b32 s{sVal}, s{sVal}, s{S_TMP}")
    e(f"s_cmp_lg_u32 s{sVal}, 15")
    e(f"s_cbranch_scc1 {top}")
    k.cond -= 1
    k.label(done)
    k.stamp(3)
    for q in range(4):
        for i in range(4):
            e(f"v_xor_b32 v{G+4*q+i}, v{G+4*q+i}, v{G+16+i}")
        e(f"v_xor_b32 v{4+q}, {q*16}, v27")
        k.ds(f"ds_write_b128 v{4+q}, {vr(G+4*q,4)} offset:{q*1024}")
    k.barrier()
    tk = {}

    def qread(ks):
        for hh in range(2):
            tk[ks] = k.ds(f"ds_read_b128 {vr(QT+8*(ks&3)+4*hh,4)}, v{44+(ks&3)} offset:{hh*16384+(ks>>2)*256}")

    for ks in range(3):
        qread(ks)
    for ks in range(16):
        if ks + 3 < 16:
            qread(ks + 3)
        if ks & 1 == 0 and 8 + ks // 2 > gq:
            cproc(8 + ks // 2)
        k.lgwait(tk[ks])
        for hh in range(2):
            for rnd in range(2):
                d = vr(SR + 8 * hh + 4 * rnd, 4)
                e(f"v_mfma_f32_16x16x32_bf16 {d}, {vr(CF[16*rnd+ks],4)}, {vr(QT+8*(ks&3)+4*hh,4)}, {'0' if ks == 0 else d}")
        if ks < 2 * (gq - 7) and ks & 1:
            pump(st["n"] + 1)
    c.kload(0, 0, 0, 2)
    k.stamp(4)
    for hh in range(2):
        k.chain("v_max3_f32", "v_max_f32", 4 + hh, range(SR + 8 * hh, SR + 8 * hh + 8))
    k.xrow("v_max_f32", [4, 5], [6, 7])
    k.barrier()
    k.exec_set(0xffff, 0)
    for hh in range(2):
        k.ds(f"ds_write_b32 v36, v{4+hh} offset:{hh*512}")
    k.exec_all()
    c.kload(0, 0, 2, 4)
    k.barrier()
    for hh in range(2):
        for q in range(2):
            k.ds(f"ds_read_b128 {vr(64+8*hh+4*q,4)}, v35 offset:{hh*512+q*16}")
    for q in range(2):
        k.ds(f"ds_read_b128 {vr(80+4*q,4)}, v37 offset:{q*16}")
    k.lgwait()
    for i, dst in enumerate((4, 5, 26)):
        k.chain("v_max3_f32", "v_max_f32", dst, range(64 + 8 * i, 72 + 8 * i))
        e(f"v_mul_f32 v{dst}, s{S_SC}, v{dst}")
    for i in range(16):
        e(f"v_fma_f32 v{SR+i}, v{SR+i}, s{S_SC}, -v{4+(i>>3)}")
    for i in range(16):
        e(f"v_exp_f32 v{SR+i}, v{SR+i}")
    for hh in range(2):
        k.chain(None, "v_add_f32", 6 + hh, range(SR + 8 * hh, SR + 8 * hh + 8))
    for i in range(8):
        e(f"v_cvt_pk_bf16_f32 v{SR+i}, v{SR+2*i}, v{SR+2*i+1}")
    for hh in range(2):
        for rnd in range(2):
            k.ds(f"ds_write_b64 v38, {vr(SR+4*hh+2*rnd,2)} offset:{hh*8192+rnd*256}")
    k.xrow("v_add_f32", [6, 7], [8, 9])
    k.exec_set(0xffff, 0)
    for hh in range(2):
        k.ds(f"ds_write_b32 v36, v{6+hh} offset:{ST2-ST+hh*512}")
    k.exec_all()
    if AT == 2:
        c.kload(1, 0)
    k.barrier()
    FR = 48

    def go(point):
        if o.get("go", 0) != point:
            return

        def st_():
            k.addr(S_A, S_WS, None, WS_GO)
            e("v_lshlrev_b32 v4, 7, v0")
            k.exec_set(0xffffffff, 0)
            k.vm(f"global_store_dword v4, v{V_T}, {sr(S_A)} sc1")
            k.exec_all()

        k.sexpr(S_TMP, [(sA, 0, None, 3), (3, 0, None, 0)])
        k.when(f"s_cmp_eq_u32 s{S_TMP}, {o.get('go_wg', 63) * 8 + 6}", st_)

    go(1)

    def pvpart(rnd, u0, u1):
        tk = {}

        def rd(u):
            f = FR + 12 * (u % 3)
            if u == 4:
                for r in range(16, 20):
                    e(f"v_add_u32 v{r}, 0x10000, v{r}")
            e(f"v_xor_b32 v21, {u*32}, v20")
            k.ds(f"ds_read_b128 {vr(f+8,4)}, v21 offset:{rnd*256}")
            for mt in range(2):
                for ee in range(2):
                    tk[u] = k.ds(f"ds_read_b64_tr_b16 {vr(f+4*mt+2*ee,2)}, v{16+2*mt+ee} offset:{(u&3)*16384}")

        rd(u0); rd(u0 + 1)
        for u in range(u0, u1):
            if u + 2 < u1:
                rd(u + 2)
            k.lgwait(tk[u])
            f = FR + 12 * (u % 3)
            for mt in range(2):
                d = vr(ACC + 16 * mt, 16)
                e(f"v_mfma_f32_32x32x16_bf16 {d}, {vr(f+4*mt,4)}, {vr(f+8,4)}, {'0' if (rnd == 0 and u == 0) else d}")
        if u1 == 8 and rnd == 0:
            for r in range(16, 20):
                e(f"v_subrev_u32 v{r}, 0x10000, v{r}")

    def cw1():
        for ks in range(16, 32):
            cwrite(ks)

    if o.get("a_ovl", 0):
        pvpart(0, 0, 4)
        k.barrier()
        k.when("s_cmp_lt_u32 s3, 4", cw1)
        pvpart(0, 4, 8)
        k.stamp(5)
        c.qaddr()
        qtok = c.qissue()
        if o.get("a_ve", 1):
            c.vload(0, 0)
        k.barrier()
        k.when("s_cmp_ge_u32 s3, 4", cw1)
        pvpart(1, 0, 4)
        k.barrier()
        k.stamp(6)
        pvpart(1, 4, 8)
    else:
        pvpart(0, 0, 8)
        k.stamp(5)
        k.barrier()
        c.qaddr()
        qtok = c.qissue()
        cw1()
        if o.get("a_ve", 1):
            c.vload(0, 0)
        k.barrier()
        k.stamp(6)
        go(2)
        pvpart(1, 0, 8)
    k.stamp(10)
    for q in range(2):
        k.ds(f"ds_read_b128 {vr(64+4*q,4)}, v37 offset:{ST2-ST+q*16}")
    for r in range(12, 16):
        e(f"v_mov_b32 v{r}, 0")
    e(f"v_mov_b32 v11, {CNT}")
    k.lgwait()
    k.chain(None, "v_add_f32", 9, range(64, 72))
    e("v_rcp_f32 v10, v9")
    e("v_log_f32 v9, v9")
    e("v_add_f32 v26, v26, v9")
    e("s_barrier")
    k.ds("ds_write_b128 v11, v[12:15]")
    for g in range(8):
        for i in range(4):
            e(f"v_mul_f32 v{ACC+4*g+i}, v10, v{ACC+4*g+i}")
        e(f"v_cvt_pk_bf16_f32 v{ACC+4*g}, v{ACC+4*g}, v{ACC+4*g+1}")
        e(f"v_cvt_pk_bf16_f32 v{ACC+4*g+1}, v{ACC+4*g+2}, v{ACC+4*g+3}")
        e(f"v_xor_b32 v{40+g}, {g*16}, v39")
        k.ds(f"ds_write_b64 v{40+g}, {vr(ACC+4*g,2)}")
    k.barrier()
    tk = []
    for q in range(4):
        e(f"v_xor_b32 v{16+q}, {q*16}, v27")
        tk.append(k.ds(f"ds_read_b128 {vr(192+4*q,4)}, v{16+q} offset:{q*1024}"))
    for q in range(4):
        k.lgwait(tk[q])
        stok = k.vm(f"global_store_dwordx4 v33, {vr(192+4*q,4)}, {sr(SL)} sc1")
        if q < 3:
            k.adv(SL, 65536)
    go(3)
    if AT == 2 and o.get("a_v1", 0):
        c.vload(1, 0)
    k.stamp(11)
    c.qpiece(qtok)
    c.qread()
    e("v_lshlrev_b32 v40, 9, v0")
    e(f"v_mov_b32 v27, v{V_T}")
    k.lgwait()
    for t in range(AT):
        c.qk(t)
    c.softmax()
    k.vmwait(stok)
    e("s_barrier")

    def flag():
        k.exec_set(0xffffffff, 0)
        k.vm(f"global_store_dwordx2 v40, v[26:27], {sr(SFL)} sc1")
        k.exec_all()

    k.when(f"s_cmp_eq_u32 s3, {PUBW}", flag)
    if not o.get("a_ve", 1):
        c.vload(0, 0)
    if AT == 2 and not o.get("a_v1", 0):
        c.vload(1, 0)
    k.stamp(7)
    c.factor(208)
    c.pv(0, AT, first=True)
    c.finish(208, 8)


def role_T(k):
    e, o = k.e, k.o
    D = o.get("depth_t", 3)
    R = [32 + 32 * i for i in range(7)]
    CNT, WSC, CS, P1B = 16384, 16640, 21504, 8192
    sStr, sW = S_P + 2, S_P + 3
    SF, SO = 86, 88
    k.c("================ role T")
    k.label("L_roleT")
    k.remap = {11: 2, 12: 3}
    tok = {}

    def pre():
        e(f"v_lshlrev_b32 v{R[4]}, 13, v{V_J}")
        e(f"v_lshl_add_u32 v{R[4]}, v{V_N}, 4, v{R[4]}")
        for r in range(4):
            e(f"v_mov_b32 v{R[4]+4+r}, 0")
        e(f"v_mov_b32 v{R[4]+1}, {CNT}")
        k.ds(f"ds_write_b128 v{R[4]+1}, {vr(R[4]+4,4)}")
        k.ds(f"ds_write_b128 v{R[4]+1}, {vr(R[4]+4,4)} offset:{CNTB-CNT}")

    k.role7 = True
    k.p1_multi([0, 192], pre, R[1], [0, P1B])
    k.role7 = False
    e(f"v_mov_b32 v29, v{R[4]}")
    k.sexpr(S_TMP, [(3, 0, 3, 20), (2, 0, None, 8)])
    k.addr(S_A, S_WUV, S_TMP)
    k.sexpr(S_TMP, [(2, 0, None, 17), (3, 2, None, 16), (3, 0, 3, 8)])
    k.addr(S_C, S_WOA, S_TMP)
    e(f"v_lshlrev_b32 v28, 16, v{V_J}")
    e(f"v_lshl_add_u32 v28, v{V_N}, 4, v28")
    k.sexpr(S_TMP, [(3, 0, 3, 15), (3, 2, None, 14)], WOL)
    e("v_lshlrev_b32 v31, 4, v0")
    e(f"v_add_u32 v30, s{S_TMP}, v31")
    k.sexpr(S_P, [(3, 0, None, 10)], WSC)
    DA_, DB_ = o.get("depth_ta", 3), o.get("depth_tb", 3)

    def wperm(g):
        k.vmwait(tok["w", g])
        for i in range(8):
            k.frag(R[g] + 4 * i, R[g + 1], i, 8)

    def operm(g):
        k.vmwait(tok["o", g])
        for i in range(8):
            x = 8 + 4 * (i & 3)
            k.frag(x, R[5 + g], i, 8)
            k.ds(f"ds_write_b128 v30, {vr(x,4)} offset:{g*8192+i*1024}")

    for n in range(16):
        k.throttle(D)
        tok["o", n >> 3] = k.ld4(R[5] + 4 * n, 29, S_C, (n & 3) * 1024)
        if n & 3 == 3:
            k.adv(S_C, 4096 if n & 4 == 0 else 4096 * 7)
        if n == 11:
            operm(0)
    e("s_cmp_ge_u32 s3, 4")
    e("s_cbranch_scc1 L_ldB")
    base = k.vm_n
    for n in range(32):
        k.throttle(DA_ if n < o.get("ta_sw", 16) else o.get("depth_ta2", 6))
        tok["w", n >> 3] = k.ld4(R[1] + 4 * n, 28, S_A)
        k.adv(S_A, 8192 if n & 7 < 7 else 8192 * 25)
        if n == 3:
            operm(1)
            k.arrive(CNT)
        if n & 7 == 3 and n > 8:
            wperm((n >> 3) - 1)
    wperm(3)
    e("s_branch L_ldok")
    k.label("L_ldB")
    k.vm_n = base
    TT = o.get("t_t", 2)
    c = Chunk(k, TT, 0, KR=[32, 48, 64, 80], VR=[96, 112, 128, 144], QF=160, SR=176, ACC=192, X=224, VA=24, CNT=CNTB,
              sK=S_A, sV=S_D, sQ=S_B, w0=4, lds=(TBW, OB, 0))
    e(f"s_lshr_b32 s{c.sPair}, s2, 1")
    k.sexpr(c.sChunk, [(2, 0, 1, 0)], 14)
    k.sexpr(c.sTile, [(2, 0, 1, 2), (3, 0, 3, 0)])
    e(f"s_mul_i32 s{c.sTile}, s{c.sTile}, {TT}")
    e(f"s_add_u32 s{c.sTile}, s{c.sTile}, {512 - 32 * o.get('a_t', 1) - 8 * TT}")
    c.setup()
    c.qaddr()
    DC = o.get("depth_tc", 3)
    c.kload(0, DC)
    operm(1)
    k.arrive(CNT)
    qtok = c.qissue()
    for t in range(1, TT):
        c.kload(t, DC)
    c.vload(0, DC)
    c.qpiece(qtok)
    c.vload(1, DC)
    c.qread()
    k.lgwait()
    for t in range(TT):
        c.qk(t)
    if TT > 2:
        c.vload(2, DC)
    c.softmax()
    if TT > 3:
        c.vload(3, DC)
    c.pv(0, 2, first=True)
    c.factor(32)
    if TT > 2:
        c.pv(2, TT - 2)
    k.remap = {8: 7, 9: 8}
    c.finish(32, 8)
    k.remap = {11: 2, 12: 3}
    k.label("L_ldok")
    e(f"v_bfe_u32 v26, v{V_N}, 2, 1")
    e("v_lshlrev_b32 v25, 8, v26")
    e(f"v_lshl_add_u32 v25, v{V_J}, 4, v25")
    e("v_lshlrev_b32 v24, 3, v0")
    e(f"s_lshr_b32 s{S_P+1}, s3, 2")
    k.sexpr(S_TMP, [(S_P + 1, 0, None, 17), (3, 0, 3, 15), (2, 0, None, 7)])
    k.addr(S_C, S_WS, S_TMP, WS_OUTP)
    e(f"v_lshrrev_b32 v4, 1, v{V_N}")
    e("v_lshlrev_b32 v4, 12, v4")
    e(f"v_and_b32 v5, 1, v{V_N}")
    e("v_lshl_add_u32 v4, v5, 5, v4")
    e(f"v_and_b32 v5, 1, v{V_J}")
    e("v_lshl_add_u32 v4, v5, 6, v4")
    e(f"v_lshrrev_b32 v5, 1, v{V_J}")
    e("v_lshl_add_u32 v23, v5, 4, v4")
    e(f"s_mov_b32 s{S_D}, 0")
    e(f"s_mov_b32 s{S_D+1}, -1")
    k.sexpr(S_TMP, [(S_P + 1, 0, None, 17), (2, 0, None, 12)])
    k.addr(SF, S_WS, S_TMP, WS_OUTP)
    k.sexpr(S_TMP, [(S_P + 1, 0, None, 10), (2, 0, None, 5)])
    k.addr(SO, S_OUT, S_TMP)
    e("v_bfe_u32 v4, v0, 2, 1")
    e("v_lshlrev_b32 v4, 11, v4")
    e("v_and_b32 v5, 3, v0")
    e("v_lshl_add_u32 v27, v5, 3, v4")
    e("v_bfe_u32 v4, v0, 4, 1")
    e("v_lshl_add_u32 v27, v4, 2, v27")
    e("v_lshrrev_b32 v4, 5, v0")
    e("v_lshl_add_u32 v27, v4, 1, v27")
    if o.get("touch", 0) & 1:
        k.sexpr(S_TMP, [(3, 0, 3, 10)])
        e(f"v_add_u32 v4, s{S_TMP}, v31")
        k.ld4(12, 4, SF, 0, "sc1")
    k.stamp(4)
    X = R[4]
    PA = [R[6] + 8 * kg for kg in range(4)]
    PD = [R[5] + 16 + 4 * i for i in range(4)] + [R[6] + 4 + 8 * i for i in range(4)]

    def proj():
        for kg in range(4):
            for i in range(8):
                d = vr(PD[i], 4)
                e(f"v_mfma_f32_16x16x32_bf16 {d}, {vr(PA[kg],4)}, {vr(R[kg]+4*i,4)}, {'0' if kg == 0 else d}")

    def publish():
        for i in range(4):
            e(f"v_cndmask_b32 v{8+i}, v{PD[i]}, v{PD[4+i]}, {sr(S_D)}")
        k.tag4(8)
        k.vm(f"global_store_dwordx4 v23, v[8:11], {sr(S_C)} sc1")

    e("s_cmp_ge_u32 s3, 4")
    e("s_cbranch_scc1 L_tailB")
    base = k.vm_n
    e(f"s_lshl_b32 s{S_TMP}, s2, 9")
    k.addr(S_A, S_WS, S_TMP, WS_LSEA)
    k.sexpr(S_TMP, [(2, 0, None, 16), (3, 0, None, 8)])
    LB = [98, 100, sW, S_B]
    k.addr(LB[0], S_WS, S_TMP, WS_LATP)
    for i in range(1, 4):
        k.addr(LB[i], LB[0], None, (i >> 1) * 32768 + (i & 1) * 4096)
    sIss, sBlk = 92, 94
    top, done = k.newlabel("L_lat"), k.newlabel("L_latok")
    e(f"s_mov_b64 {sr(sIss)}, 0")
    e(f"v_lshlrev_b32 v21, 3, v{V_J}")
    e(f"s_mov_b32 s{S_SPIN}, {SPIN_MAX}")
    sN = 91
    k.await_cnt(CNT, 8)
    if o.get("go", 0):
        e(f"s_lshl_b32 s{S_TMP}, s2, 7")
        k.addr(S_P + 5, S_WS, S_TMP, WS_GO)
        e("v_mov_b32 v4, 0")

        def gopoll():
            k.poll(lambda: k.vm(f"global_load_dword v9, v4, {sr(S_P + 5)} sc1"), lambda: e(f"v_cmp_ne_u32 {sr(S_BAD)}, v9, v{V_T}"))
            k.arrive(CNT + 12)

        k.when("s_cmp_eq_u32 s3, 0", gopoll)
        k.await_cnt(CNT + 12, 1)
    e(f"s_mov_b32 s{S_SPIN}, {SPIN_MAX}")
    k.cond += 1
    k.vm(f"global_load_dwordx2 v[8:9], v24, {sr(S_A)} sc1")
    e(f"s_mov_b32 s{sN}, 0")
    k.label(top)
    e(f"s_sub_u32 s{S_SPIN}, s{S_SPIN}, 1")
    e(f"s_cbranch_scc1 {done}")
    if o.get("dbg_sleep"):
        e(f"s_sleep {o['dbg_sleep']}")
    got = k.newlabel("L_lw")
    for n in (8, 4, 2, 1):
        e(f"s_waitcnt vmcnt({n})")
        e(f"s_cmp_ge_u32 s{sN}, {n}")
        e(f"s_cbranch_scc1 {got}")
    e("s_waitcnt vmcnt(0)")
    k.label(got)
    e(f"v_cmp_ne_u32 {sr(S_BAD)}, v9, v{V_T}")
    e("v_mov_b32 v12, v8")
    e(f"s_mov_b32 s{sN}, 0")
    k.vm(f"global_load_dwordx2 v[8:9], v24, {sr(S_A)} sc1")
    e(f"s_nor_b64 {sr(sBlk)}, {sr(S_BAD)}, {sr(sIss)}")
    e(f"s_cbranch_scc0 {top}")
    e(f"s_or_b64 {sr(sIss)}, {sr(sIss)}, {sr(sBlk)}")
    for b_ in range(2):
        skb = k.newlabel("L_lskb")
        e(f"s_cmp_eq_u32 s{sBlk+b_}, 0")
        e(f"s_cbranch_scc1 {skb}")
        e(f"v_lshrrev_b32 v10, v21, s{sBlk+b_}")
        for t in range(8):
            sk = k.newlabel("L_lsk")
            e(f"v_and_b32 v11, {1 << t}, v10")
            e(f"v_cmp_ne_u32 vcc, 0, v11")
            e(f"s_and_saveexec_b64 {sr(S_TMP)}, vcc")
            e(f"s_cbranch_execz {sk}")
            k.ld4(R[5] + 32 * b_ + 4 * t, 29, LB[2 * b_ + (t >> 2)], (t & 3) * 1024, ['sc1', 'sc1 nt', 'sc0 sc1 nt'][o.get('lat_ld', 1)])
            e(f"s_add_u32 s{sN}, s{sN}, 1")
            k.label(sk)
            k.exec_all()
        k.label(skb)
    e(f"s_cmp_lg_u64 {sr(sIss)}, -1")
    e(f"s_cbranch_scc1 {top}")
    k.cond -= 1
    k.label(done)
    k.stamp(5)
    if o.get("prio", 0):
        e("s_setprio 2")

    def red32(op, r, tmp):
        for sh in (8, 4, 2, 1):
            e(f"{op}_dpp v{r}, v{r}, v{r} row_ror:{sh} row_mask:0xf bank_mask:0xf")
        k.xrow(op, [r], [tmp], (16,))

    e("v_mov_b32 v10, v12")
    red32("v_max_f32", 10, 11)
    e("v_sub_f32 v12, v12, v10")
    e("v_exp_f32 v12, v12")
    e("v_lshrrev_b32 v4, 5, v0")
    e("v_mov_b32 v10, v12")
    red32("v_add_f32", 10, 11)
    e("v_rcp_f32 v10, v10")
    e("v_lshlrev_b32 v4, 7, v4")
    e("v_mul_f32 v12, v12, v10")
    e("v_cvt_pk_bf16_f32 v13, v12, v12")
    e("v_and_b32 v10, 0xffff0000, v13")
    e("v_sub_f32 v12, v12, v10")
    e("v_cvt_pk_bf16_f32 v10, v12, v12")
    e("v_and_b32 v5, 31, v0")
    e("v_lshl_add_u32 v4, v5, 1, v4")
    e(f"v_add_u32 v4, s{S_P}, v4")
    k.ds("ds_write_b16 v4, v13")
    k.ds("ds_write_b16 v4, v10 offset:64")
    e(f"v_and_b32 v4, 1, v{V_N}")
    e("v_lshlrev_b32 v4, 6, v4")
    e(f"v_lshl_add_u32 v4, v{V_J}, 4, v4")
    e(f"v_add_u32 v4, s{S_P}, v4")
    k.lgwait()
    k.ds(f"ds_read_b128 {vr(R[4]+24,4)}, v4")
    k.ds("ds_read_b128 v[12:15], v4 offset:128")
    e(f"v_lshlrev_b32 v4, 4, v{V_N}")
    e(f"v_add_u32 v4, s{S_P}, v4")
    e(f"v_add_u32 v5, s{S_P}, v25")
    k.lgwait()
    e("s_waitcnt vmcnt(0)")
    k.stamp(6)
    for i in range(4):
        e(f"v_mov_b32 v{8+i}, v{R[4]+24+i}")
    for b_ in range(2):
        for i in range(8):
            x = 16
            k.frag(x, R[5 + b_], i, 8)
            e(f"v_mfma_f32_16x16x32_bf16 {vr(X+4*i,4)}, {vr(8+4*b_,4)}, {vr(x,4)}, 0")
        for i in range(8):
            e(f"v_add_f32 v{X+4*i}, v{X+4*i}, v{X+4*i+1}")
        for i in range(4):
            e(f"v_cvt_pk_bf16_f32 v{R[5+b_]+i}, v{X+8*i}, v{X+8*i+4}")
        k.exec_set(0xffff, 0)
        k.ds(f"ds_write_b128 v4, {vr(R[5+b_],4)} offset:{256+b_*256}")
        k.exec_all()
    k.lgwait()
    AF = R[5]
    for kg in range(4):
        k.ds(f"ds_read_b128 {vr(AF+4*kg,4)}, v5 offset:{256+kg*64}")
    k.sexpr(S_TMP, [(3, 0, None, 10)], CS)
    e(f"v_lshlrev_b32 v4, 5, v{V_N}")
    e(f"v_lshl_add_u32 v4, v{V_J}, 9, v4")
    e(f"v_add_u32 v4, s{S_TMP}, v4")
    k.lgwait()
    for kg in range(4):
        for i in range(8):
            d = vr(X + 4 * i, 4)
            e(f"v_mfma_f32_16x16x32_bf16 {d}, {vr(AF+4*kg,4)}, {vr(R[kg]+4*i,4)}, {'0' if kg == 0 else d}")
    k.sexpr(S_TMP, [(3, 0, None, 15)], WOL)
    e(f"v_add_u32 v30, s{S_TMP}, v31")
    k.exec_set(0xffffffff, 0)
    for i in range(0, 8, 2):
        k.ds(f"ds_write2_b32 v4, v{X+4*i}, v{X+4*i+4} offset0:{i} offset1:{i+1}")
    k.arrive(CNT + 4)
    for f in range(32):
        k.ds(f"ds_read_b128 {vr(R[0]+4*f,4)}, v30 offset:{f*1024}")
    e(f"v_add_u32 v4, {CS}, v31")
    k.stamp(12)
    k.await_cnt(CNT + 4, 4)
    k.stamp(11)
    for w in range(4):
        k.ds(f"ds_read_b128 {vr(X+4*w,4)}, v4 offset:{w*1024}")
    e(f"v_add_u32 v4, s{S_P}, v24")
    k.lgwait()
    k.tree_add4(X, 4)
    e(f"v_cvt_pk_bf16_f32 v8, v{X}, v{X+1}")
    e(f"v_cvt_pk_bf16_f32 v9, v{X+2}, v{X+3}")
    k.ds("ds_write_b64 v4, v[8:9]")
    k.lgwait()
    for kg in range(4):
        k.ds(f"ds_read_b128 {vr(PA[kg],4)}, v5 offset:{kg*64}")
    k.lgwait()
    proj()
    e("s_branch L_proj")
    k.c("================ GQA tail")
    k.label("L_tailB")
    k.vm_n = base
    Y = R[4]

    def issue_o(i):
        for c in range(4):
            k.ld4(Y + 16 * i + 4 * c, 21 - (c >> 1), S_B, (c & 1) * 512, "sc1")

    def check_o(i):
        k.chkn([Y + 16 * i + 4 * c for c in range(4)], 6, 7)

    def comb(i):
        k.untag(Y + 16 * i, 16)
        k.lgwait()
        for r in range(4):
            e(f"v_mul_f32 v{8+r}, v12, v{Y+16*i+r}")
        for c in range(1, 4):
            for r in range(4):
                e(f"v_fmac_f32 v{8+r}, v{12+c}, v{Y+16*i+4*c+r}")

    e(f"s_lshl_b32 s{S_TMP}, s2, 9")
    k.addr(S_A, S_WS, S_TMP, WS_LSEB)
    e("v_lshrrev_b32 v4, 5, v0")
    e("v_lshlrev_b32 v5, 8, v4")
    e(f"v_min_u32 v6, {NCB-1}, v{V_N}")
    e("v_lshl_add_u32 v22, v6, 4, v5")
    e(f"v_cmp_gt_u32 {sr(98)}, {NCB}, v{V_N}")
    e(f"s_mul_i32 s{S_TMP}, s2, {2*NCB*512}")
    k.sexpr(S_P + 2, [(3, 0, 3, 11)])
    e(f"s_add_u32 s{S_TMP}, s{S_TMP}, s{S_P+2}")
    k.addr(S_B, S_WS, S_TMP, WS_OP)
    e(f"v_mul_u32_u24 v4, {NCB*512}, v4")
    e("v_and_b32 v5, 31, v0")
    e("v_lshl_add_u32 v21, v5, 4, v4")
    e("v_add_u32 v20, 0x400, v21")
    k.sexpr(S_TMP, [(3, 0, 3, 8)], TBW)
    e(f"v_lshlrev_b32 v4, 2, v0")
    e(f"v_add_u32 v19, s{S_TMP}, v4")
    e("v_lshrrev_b32 v4, 5, v0")
    e("v_lshlrev_b32 v4, 7, v4")
    k.sexpr(S_P + 2, [(3, 0, 3, 4), (S_TMP, 0, None, 0)])
    e(f"v_add_u32 v18, s{S_P+2}, v4")
    k.sexpr(S_TMP, [(3, 0, 3, 9)], OB)
    e(f"v_add_u32 v17, s{S_TMP}, v24")
    e(f"v_and_b32 v4, 3, v{V_N}")
    e("v_lshl_add_u32 v4, v4, 9, v25")
    e(f"v_add_u32 v16, {OB}, v4")
    if o.get("touch", 0) & 2:
        issue_o(0)
    k.poll_pipe(o.get("np_l", 1), 1, lambda i: k.ld4(Y + 48 + 4 * i, 22, S_A, 0, "sc1"), lambda i: k.chk_full(Y + 48 + 4 * i, 6, 7),
                lambda i: e(f"v_and_b32 v8, s{S_X2}, v{Y+48+4*i}"))
    e("v_mov_b32 v9, 0xff800000")
    e(f"v_cndmask_b32 v8, v9, v8, {sr(98)}")
    e("v_mov_b32 v10, v8")
    for sh in (8, 4, 2, 1):
        e(f"v_max_f32_dpp v10, v10, v10 row_ror:{sh} row_mask:0xf bank_mask:0xf")
    e("v_sub_f32 v8, v8, v10")
    e("v_exp_f32 v8, v8")
    e("v_mov_b32 v10, v8")
    for sh in (8, 4, 2, 1):
        e(f"v_add_f32_dpp v10, v10, v10 row_ror:{sh} row_mask:0xf bank_mask:0xf")
    e("v_rcp_f32 v10, v10")
    e("v_mul_f32 v8, v8, v10")
    k.ds("ds_write_b32 v19, v8")
    k.lgwait()
    k.ds("ds_read_b128 v[12:15], v18")
    k.stamp(7)

    k.poll_pipe(o.get("np_o", 1), 4, issue_o, check_o, comb)
    k.stamp(8)
    e("v_cvt_pk_bf16_f32 v8, v8, v9")
    e("v_cvt_pk_bf16_f32 v9, v10, v11")
    k.ds("ds_write_b64 v17, v[8:9]")
    k.arrive(CNTB)
    k.await_cnt(CNTB, 4)
    k.stamp(11)
    if o.get("prio", 0):
        e("s_setprio 3")
    for kg in range(4):
        k.ds(f"ds_read_b128 {vr(PA[kg],4)}, v16 offset:{kg*64}")
    k.lgwait()

    def rowsum(i):
        e(f"v_add_f32 v{PD[i]}, v{PD[i]}, v{PD[i]+1}")
        e(f"v_add_f32 v{PD[i]+2}, v{PD[i]+2}, v{PD[i]+3}")
        e(f"v_add_f32 v{PD[i]}, v{PD[i]}, v{PD[i]+2}")

    for i in range(8):
        for kg in range(4):
            d = vr(PD[i], 4)
            e(f"v_mfma_f32_16x16x32_bf16 {d}, {vr(PA[kg],4)}, {vr(R[kg]+4*i,4)}, {'0' if kg == 0 else d}")
            if i >= 2 and kg == 1:
                rowsum(i - 2)
    rowsum(6)
    rowsum(7)
    k.c("================ publish the head's partial output, final sum over heads")
    k.label("L_proj")
    publish()
    k.stamp(9)
    e("s_and_b32 s62, s3, 3")
    e("s_cbranch_scc1 L_fin")
    F = R[0]

    def issue(i):
        for q in range(4):
            k.ld4(F + 16 * i + 4 * q, 31, SF, q * 1024, "sc1")

    def check(i):
        k.chkn([F + 16 * i + 4 * q for q in range(4)], 6, 7)

    def fin(i):
        k.untag(F + 16 * i, 16)
        for r in range(8):
            e(f"v_add_f32 v{12+r}, v{F+16*i+r}, v{F+16*i+8+r}")

    lab, lab2 = k.newlabel("L_fa"), k.newlabel("L_fb")
    e("s_cmp_eq_u32 s3, 0")
    e(f"s_cbranch_scc1 {lab}")
    k.poll_pipe(o.get("np_f", 1), 4, issue, check, fin)
    e(f"s_branch {lab2}")
    k.label(lab)
    k.poll_pipe(1, 4, issue, check, fin)
    k.label(lab2)
    k.stamp(10)
    k.tree_add4(12, 2)
    e("v_permlane32_swap_b32 v12, v13")
    e("v_permlane32_swap_b32 v14, v15")
    e("v_add_f32 v12, v12, v13")
    e("v_add_f32 v14, v14, v15")
    e("v_permlane16_swap_b32 v12, v14")
    e("v_add_f32 v12, v12, v14")
    e("v_add_f32_dpp v12, v12, v12 row_ror:8 row_mask:0xf bank_mask:0xf")
    e("v_cvt_pk_bf16_f32 v12, v12, v12")
    k.exec_set(0x00ff00ff, 0x00ff00ff)
    k.vm(f"global_store_short v27, v12, {sr(SO)}")
    e(f"s_or_b32 s{S_TMP}, s2, s3")
    e(f"s_cmp_lg_u32 s{S_TMP}, 0")
    e("s_cbranch_scc1 L_fin")
    k.exec_set(1, 0)
    e("v_mov_b32 v4, 0")
    k.vm(f"global_store_dword v4, v{V_T}, {sr(S_WS)}")
    e("s_branch L_fin")


def finish(k):
    e = k.e
    k.label("L_fin")
    if k.o.get("stamps"):
        k.exec_all()
        k.stamp(15)
        e(f"s_memtime {sr(S_STAMP + 28)}")
        k.sexpr(S_TMP, [(S_E, 0, None, 7)])
        e(f"s_load_dwordx2 {sr(S_WS)}, s[0:1], 104")
        e("s_waitcnt lgkmcnt(0)")
        k.addr(S_A, S_WS, S_TMP, WS_STAMP)
        e("s_waitcnt lgkmcnt(0)")
        e("v_mov_b32 v4, 0")
        k.exec_set(1, 0)
        for i in range(8):
            for q in range(4):
                e(f"v_mov_b32 v{8+q}, s{S_STAMP+4*i+q}")
            e(f"global_store_dwordx4 v4, v[8:11], {sr(S_A)} offset:{i*16}")
    k.label("L_end")
    e("s_endpgm")


def tile_table(o):
    late, par, b2 = o.get("adj_late", 0), o.get("adj_par", 0), o.get("adj_b2", -2 if o.get("t_one", 0) else 0)
    tot = 512 - 32 * o.get("a_t", 1) - 8 * o.get("t_t", 2)
    kind = lambda i: (i >= 128, (i & 7) >= 4, (i >> 3) & 1 if i < 128 else 0)
    members = [[] for _ in range(16)]
    seen = {}
    for i in range(NB):
        n = seen.get(kind(i), 0)
        seen[kind(i)] = n + 1
        members[n % 16].append(i)
    out = [0] * NB
    n2 = o.get("n2", 32)
    for p, m in enumerate(members):
        w = []
        for i in m:
            isb2, isl, odd = kind(i)
            ae, ao = o.get("adj_e", 0), o.get("adj_o", 0)
            w.append(n2 if isb2 else (tot - 2 * n2) / 8 + ((-ao if odd else -ae) if isl else (ae + ao) / 2))
        n = [int(v // 1) for v in w]
        for j in sorted(range(10), key=lambda j: n[j] - w[j])[:tot - sum(n)]:
            n[j] += 1
        assert sum(n) == tot
        st = 0
        for ch, (i, v) in enumerate(zip(m, n)):
            lo = 24 if i >= 128 else 40
            assert lo <= v <= (32 if i >= 128 else 56)
            out[i] = st | min(v - lo, 8) << 16 | max(v - lo - 8, 0) << 20 | p << 24 | ch << 28
            st += v
    return out


def generate(**opt):
    k = K(opt)
    head = [l.rstrip("\n") for l in open(REF) if l.startswith(";") and "@launch" not in l and "Override" not in l and "grid=ceil" not in l]
    L = k.L
    L += head
    L += ABOUT.split("\n")
    L.append("; @launch grid=(256,1,1) block=(512,1,1) lds=163840")
    L.append('.amdgcn_target "amdgcn-amd-amdhsa--gfx950"')
    L += [".text", f".globl {NAME}_kernel", ".p2align 8", f".type {NAME}_kernel,@function", f"{NAME}_kernel:"]
    if opt.get("stamps"):
        for r in range(S_STAMP, S_STAMP + 32):
            k.e(f"s_mov_b32 s{r}, 0")
    k.prologue()
    k.e(f"s_cmp_ge_u32 s2, {NT+NA}")
    k.e("s_cbranch_scc1 L_roleB")
    k.e(f"s_cmp_ge_u32 s2, {NT}")
    k.e("s_cbranch_scc1 L_roleA")
    base = k.vm_n
    role_T(k)
    k.vm_n = base
    k.remap = {}
    role_A(k)
    k.vm_n = base
    role_B(k)
    finish(k)
    L.append(".p2align 2")
    L.append(".type L_tiles,@object")
    L.append("L_tiles:")
    L += [f".long {w:#x}" for w in tile_table(opt)]
    L += ['.section .rodata,"a"', ".p2align 6", f".amdhsa_kernel {NAME}_kernel",
          "  .amdhsa_next_free_vgpr 256", "  .amdhsa_next_free_sgpr 102", "  .amdhsa_accum_offset 256",
          "  .amdhsa_group_segment_fixed_size 0", "  .amdhsa_kernarg_size 112", "  .amdhsa_user_sgpr_count 2",
          "  .amdhsa_user_sgpr_kernarg_segment_ptr 1", "  .amdhsa_system_sgpr_workgroup_id_x 1", ".end_amdhsa_kernel"]
    return k.text()


if __name__ == "__main__":
    opt = {}
    for a in sys.argv[2:]:
        kk, v = a.split("=")
        opt[kk] = int(v)
    open(sys.argv[1], "w").write(generate(**opt))
```

```python
import sys, struct
from asmlib import Gen, vr, sr

NAME = "concat_heads__compressed_kv_cla__gqa_block_cached__decode"
REF = "cdna_kernels/" + NAME + ".s.ref"

NT, NA, NB = 32, 64, 160
NCB = 14
WS_QP = 0x010000
WS_QA = 0x060000
WS_LSEA = 0x090000
WS_LSEB = 0x0A0000
WS_OP = 0x0B0000
WS_OUTP = 0x140000
WS_LATP = 0x200000
WS_STAMP = 128 << 20
SCALE = (128 ** -0.5) * 1.4426950408889634


def f2u(x):
    return struct.unpack("<I", struct.pack("<f", x))[0]


S_AX, S_CKV, S_WQA, S_WUK, S_WUV, S_WOA, S_BX, S_K, S_V, S_WQB, S_WOB, S_OUT, S_DBG, S_WS = range(4, 32, 2)
S_E, S_T = 32, 33
S_SEL = 34
S_LO, S_HI = 38, 39
S_A, S_B, S_C, S_D = 40, 42, 44, 46
S_X0, S_X1, S_X2 = 48, 49, 50
S_SC = 51
S_SPIN = 52
S_P = 53
S_BAD = 60
S_TMP = 62
S_STAMP = 64
S_EVEN = 96
S_SL = 100
V_L, V_N, V_J, V_T = 0, 1, 2, 3
SPIN_MAX = 1 << 18
PUBW = 7


class K(Gen):
    def __init__(self, opt):
        super().__init__()
        self.o = opt
        self.remap = {}

    def stamp(self, k):
        if self.o.get("stamps"):
            self.e(f"s_memrealtime {sr(S_STAMP + 2 * self.remap.get(k, k))}")

    def addr(self, dst, base, off_s=None, off_i=0):
        if off_s is not None:
            self.e(f"s_add_u32 s{dst}, s{base}, s{off_s}")
            self.e(f"s_addc_u32 s{dst+1}, s{base+1}, 0")
            base = dst
        if off_i or off_s is None:
            self.e(f"s_add_u32 s{dst}, s{base}, {off_i}")
            self.e(f"s_addc_u32 s{dst+1}, s{base+1}, 0")

    def adv(self, a, n):
        self.e(f"s_add_u32 s{a}, s{a}, {n}")
        self.e(f"s_addc_u32 s{a+1}, s{a+1}, 0")

    def sexpr(self, dst, terms, const=0):
        first = True
        for reg, shr, mask, shl in terms:
            t = dst if first else S_TMP + 1
            src = reg
            if shr:
                self.e(f"s_lshr_b32 s{t}, s{src}, {shr}"); src = t
            if mask is not None:
                self.e(f"s_and_b32 s{t}, s{src}, {mask}"); src = t
            if shl or src != t:
                self.e(f"s_lshl_b32 s{t}, s{src}, {shl}")
            if not first:
                self.e(f"s_add_u32 s{dst}, s{dst}, s{t}")
            first = False
        if const:
            self.e(f"s_add_u32 s{dst}, s{dst}, {const}")

    def ld4(self, dst, voff, sbase, off=0, fl="nt"):
        return self.vm(f"global_load_dwordx4 {vr(dst,4)}, v{voff}, {sr(sbase)} offset:{off} {fl}")

    def throttle(self, d):
        if d:
            self.e(f"s_waitcnt vmcnt({d-1})")

    def tag4(self, r):
        for k in range(4):
            self.e(f"v_perm_b32 v{r+k}, v{r+k}, v{V_T}, s{S_SEL+k}")

    def chkn(self, regs, acc, tmp):
        if self.o.get("nodep"):
            self.e(f"s_mov_b64 {sr(S_BAD)}, 0")
            return
        for i, r in enumerate(regs):
            self.e(f"v_perm_b32 v{tmp}, v{r+3}, v{r}, s{S_X0}")
            if len(regs) == 1:
                self.e(f"v_cmp_ne_u32 {sr(S_BAD)}, s{S_X1}, v{tmp}")
                return
            if i == 0:
                self.e(f"v_xor_b32 v{acc}, s{S_X1}, v{tmp}")
            else:
                self.e(f"v_xad_u32 v{acc}, v{tmp}, s{S_X1}, v{acc}")
        self.e(f"v_cmp_ne_u32 {sr(S_BAD)}, 0, v{acc}")

    def chk4(self, r, tmp, first):
        self.chkn([r], tmp, tmp)

    def chk_full(self, r, a, b):
        if self.o.get("nodep"):
            self.e(f"s_mov_b64 {sr(S_BAD)}, 0")
            return
        self.e(f"v_perm_b32 v{a}, v{r+1}, v{r}, s{S_X0}")
        self.e(f"v_perm_b32 v{b}, v{r+3}, v{r+2}, s{S_X0}")
        self.e(f"v_lshl_or_b32 v{a}, v{b}, 16, v{a}")
        self.e(f"v_cmp_ne_u32 {sr(S_BAD)}, v{a}, v{V_T}")

    def poll(self, issue, check, pre_issued=None, light=None):
        top, done = self.newlabel("L_poll"), self.newlabel("L_got")
        self.e(f"s_mov_b32 s{S_SPIN}, {SPIN_MAX}")
        if pre_issued is not None:
            self.vmwait(pre_issued)
            check()
            self.e(f"s_cmp_eq_u64 {sr(S_BAD)}, 0")
            self.e(f"s_cbranch_scc1 {done}")
        self.label(top)
        self.cond += 1
        self.e(f"s_sub_u32 s{S_SPIN}, s{S_SPIN}, 1")
        self.e(f"s_cbranch_scc1 {done}")
        if light:
            light[0]()
            self.e("s_waitcnt vmcnt(0)")
            light[1]()
            self.e(f"s_cmp_eq_u64 {sr(S_BAD)}, 0")
            self.e(f"s_cbranch_scc0 {top}")
        issue()
        self.e("s_waitcnt vmcnt(0)")
        check()
        self.cond -= 1
        self.e(f"s_cmp_eq_u64 {sr(S_BAD)}, 0")
        self.e(f"s_cbranch_scc0 {top}")
        self.label(done)

    def poll_pipe(self, nset, nld, issue, check, finish):
        top, done = self.newlabel("L_pp"), self.newlabel("L_ppok")
        oks = [self.newlabel("L_ppv") for _ in range(nset)]
        self.cond += 1
        self.e(f"s_mov_b32 s{S_SPIN}, {SPIN_MAX}")
        for i in range(nset - 1):
            issue(i)
        self.label(top)
        if self.o.get("dbg_sleep2") and nld == 1:
            self.e(f"s_sleep {self.o['dbg_sleep2']}")
        for i in range(nset):
            issue((i + nset - 1) % nset)
            self.e(f"s_waitcnt vmcnt({nld * (nset - 1)})")
            check(i)
            self.e(f"s_cmp_eq_u64 {sr(S_BAD)}, 0")
            self.e(f"s_cbranch_scc1 {oks[i]}")
        self.e(f"s_sub_u32 s{S_SPIN}, s{S_SPIN}, 1")
        self.e(f"s_cbranch_scc0 {top}")
        for i in reversed(range(nset)):
            self.label(oks[i])
            finish(i)
            if i:
                self.e(f"s_branch {done}")
        self.label(done)
        self.cond -= 1

    def when(self, cmp, fn):
        lab = self.newlabel("L_skip")
        self.e(cmp)
        self.e(f"s_cbranch_scc0 {lab}")
        self.cond += 1
        fn()
        self.cond -= 1
        self.label(lab)

    def arrive(self, cnt):
        self.e("v_mov_b32 v6, 1")
        self.e(f"v_mov_b32 v7, {cnt}")
        self.exec_set(1, 0)
        self.ds("ds_add_u32 v7, v6")
        self.exec_all()

    def await_cnt(self, cnt, n):
        top, done = self.newlabel("L_cnt"), self.newlabel("L_cntok")
        e = self.e
        e(f"v_mov_b32 v7, {cnt}")
        e(f"s_mov_b32 s{S_SPIN}, {SPIN_MAX*16}")
        self.label(top)
        if self.o.get("dbg_sleep3"):
            e(f"s_sleep {self.o['dbg_sleep3']}")
        e("ds_read_b32 v6, v7")
        e(f"s_sub_u32 s{S_SPIN}, s{S_SPIN}, 1")
        e(f"s_cbranch_scc1 {done}")
        e("s_waitcnt lgkmcnt(0)")
        e(f"v_readfirstlane_b32 s{S_TMP}, v6")
        e(f"s_cmp_lt_u32 s{S_TMP}, {n}")
        e(f"s_cbranch_scc1 {top}")
        self.label(done)

    def xrow(self, op, regs, tmps, which=(16, 32)):
        for w in which:
            for r, t in zip(regs, tmps):
                self.e(f"v_mov_b32 v{t}, v{r}")
            for r, t in zip(regs, tmps):
                self.e(f"v_permlane{w}_swap_b32 v{t}, v{r}")
            for r, t in zip(regs, tmps):
                self.e(f"{op} v{r}, v{r}, v{t}")

    def frag(self, dst, raw, i, nld):
        for p in range(nld // 2):
            self.e(f"v_perm_b32 v{dst+p}, v{raw + 4*(2*p+1) + (i >> 1)}, v{raw + 4*(2*p) + (i >> 1)}, s{S_HI if i & 1 else S_LO}")

    def swap_pairs(self, pairs):
        dpp = "quad_perm:[1,0,3,2] row_mask:0xf bank_mask:0xf"
        self.e(f"s_mov_b64 vcc, {sr(S_EVEN)}")
        for d, a, b in pairs:
            for k in range(4):
                self.e(f"v_cndmask_b32_dpp v{d+k}, v{b+k}, v{a+k}, vcc {dpp}")
                self.e(f"v_xor_b32 v{a+k}, v{a+k}, v{d+k}")
            for k in range(4):
                self.e(f"v_xor_b32_dpp v{b+k}, v{a+k}, v{b+k} {dpp}")

    def tree_add4(self, r, n):
        st = n // 2
        while st:
            for w in range(st):
                for k in range(4):
                    self.e(f"v_add_f32 v{r+4*w+k}, v{r+4*w+k}, v{r+4*(w+st)+k}")
            st //= 2

    def chain(self, op3, op2, dst, regs):
        regs = list(regs)
        if len(regs) >= 3 and op3:
            self.e(f"{op3} v{dst}, v{regs[0]}, v{regs[1]}, v{regs[2]}")
            rest = regs[3:]
            while len(rest) >= 2:
                self.e(f"{op3} v{dst}, v{dst}, v{rest[0]}, v{rest[1]}")
                rest = rest[2:]
        else:
            self.e(f"{op2} v{dst}, v{regs[0]}, v{regs[1]}")
            rest = regs[2:]
        for r in rest:
            self.e(f"{op2} v{dst}, v{dst}, v{r}")

    def exec_set(self, lo, hi):
        self.e(f"s_mov_b32 exec_lo, {lo:#x}")
        self.e(f"s_mov_b32 exec_hi, {hi:#x}")

    def exec_all(self):
        self.e("s_mov_b64 exec, -1")

    def prologue(self):
        e = self.e
        e("s_cmp_ge_u32 s2, 256")
        e("s_cbranch_scc1 L_end")
        self.stamp(0)
        if self.o.get("stamps"):
            pass
        e("s_load_dwordx16 s[4:19], s[0:1], 0")
        e("s_load_dwordx8 s[20:27], s[0:1], 64")
        e("s_load_dwordx4 s[28:31], s[0:1], 96")
        e("v_lshrrev_b32 v4, 6, v0")
        e("v_and_b32 v0, 63, v0")
        e("v_readfirstlane_b32 s3, v4")
        e(f"v_and_b32 v{V_N}, 15, v0")
        e(f"v_lshrrev_b32 v{V_J}, 4, v0")

    def consts(self):
        e = self.e
        if self.o.get("wsoff"):
            self.adv(S_WS, self.o["wsoff"] << 20)
        e(f"s_load_dword s{S_E}, {sr(S_WS)}, 0")
        if self.o.get("cpf"):
            def pf():
                lab = self.newlabel("L_cp")
                e(f"s_getpc_b64 {sr(S_BAD)}")
                self.label(lab)
                e(f"s_sub_u32 s{S_BAD}, s{S_BAD}, {lab}-{NAME}_kernel")
                e(f"s_subb_u32 s{S_BAD+1}, s{S_BAD+1}, 0")
                self.sexpr(S_TMP, [(2, 3, None, 11)])
                e(f"s_min_u32 s{S_TMP}, s{S_TMP}, L_tiles-{NAME}_kernel-2048")
                self.addr(S_BAD, S_BAD, S_TMP)
                e("v_lshlrev_b32 v247, 5, v0")
                self.vm(f"global_load_dword v246, v247, {sr(S_BAD)}")
            self.when("s_cmp_eq_u32 s3, 1", pf)
        for k in range(4):
            e(f"s_mov_b32 s{S_SEL+k}, {0x07060500 + k:#x}")
        e(f"s_mov_b32 s{S_LO}, 0x05040100")
        e(f"s_mov_b32 s{S_HI}, 0x07060302")
        e(f"s_mov_b32 s{S_X0}, 0x0c0c0400")
        e(f"s_mov_b32 s{S_SC}, {f2u(SCALE):#x}")
        e(f"s_mov_b32 s{S_EVEN}, 0x55555555")
        e(f"s_mov_b32 s{S_EVEN+1}, 0x55555555")

    def bitmasks(self, r):
        e = self.e
        e("v_and_b32 v4, 3, v0")
        e("v_lshlrev_b32 v4, 3, v4")
        e(f"v_lshrrev_b32 v4, v4, v{V_T}")
        for q in range(4):
            e(f"v_bfe_u32 v5, v4, {2*q+1}, 1")
            e(f"v_bfe_u32 v{r+q}, v4, {2*q}, 1")
            e(f"v_lshl_or_b32 v{r+q}, v5, 16, v{r+q}")

    def settag(self):
        self.e(f"s_add_u32 s{S_T}, s{S_E}, 0x01010101")
        self.e(f"v_mov_b32 v{V_T}, s{S_T}")
        self.e(f"s_lshr_b32 s{S_X1}, s{S_T}, 16")
        self.e(f"s_and_b32 s{S_X1}, s{S_X1}, 0xff00")
        self.e(f"s_and_b32 s{S_X2}, s{S_T}, 0xff")
        self.e(f"s_or_b32 s{S_X1}, s{S_X1}, s{S_X2}")

    def p1_issue(self, sSl, sW, sX, xr, wr, first=True):
        e = self.e
        if first:
            e(f"v_lshlrev_b32 v4, 15, v{V_J}")
            e(f"v_lshl_add_u32 v4, v{V_N}, 4, v4")
            e(f"v_bfe_u32 v5, v{V_N}, 2, 1")
            e("v_lshlrev_b32 v5, 10, v5")
            e(f"v_lshl_add_u32 v5, v{V_J}, 3, v5")
        self.sexpr(S_TMP, [(sSl, 0, 3, 7), (3, 0, None, 4)])
        self.sexpr(S_A, [(S_TMP, 0, None, 13), (sSl, 2, 31, 8)])
        e(f"s_lshl_b32 s{S_TMP}, s{S_TMP}, 1")
        if first:
            e("s_waitcnt lgkmcnt(0)")
        sW(); sX()
        self.vm(f"global_load_dwordx2 {vr(xr, 2)}, v5, {sr(S_B)}")
        for t in range(4):
            tok = self.ld4(wr + 4 * t, 4, S_A)
            if t < 3:
                self.adv(S_A, 8192)
        if first:
            e("s_barrier")
        return tok

    def p1_plain(self, sSl, W, X, xr, wr, first=True):
        def sW():
            self.e(f"s_add_u32 s{S_A}, s{W}, s{S_A}")
            self.e(f"s_addc_u32 s{S_A+1}, s{W+1}, 0")
        return self.p1_issue(sSl, sW, lambda: self.addr(S_B, X, S_TMP), xr, wr, first)

    def p1_compute(self, sSl, tok, xr, wr, d0, X, lds=0, first=True):
        e = self.e
        e(f"v_lshlrev_b32 v4, 5, v{V_N}")
        e(f"v_lshl_add_u32 v4, v{V_J}, 9, v4")
        self.sexpr(S_TMP, [(3, 0, None, 10)], lds)
        e(f"v_add_u32 v4, s{S_TMP}, v4")
        self.vmwait(tok)
        for i in range(8):
            t = X + 2 * (i & 3)
            self.frag(t, wr, i, 4)
            e(f"v_mfma_f32_16x16x16_bf16 {vr(d0+4*i,4)}, {vr(xr,2)}, {vr(t,2)}, 0")
        self.exec_set(0xffffffff, 0)
        for i in range(0, 8, 2):
            self.ds(f"ds_write2_b32 v4, v{d0+4*i}, v{d0+4*i+4} offset0:{i} offset1:{i+1}")
        self.exec_all()
        e("s_waitcnt lgkmcnt(0)")
        if first:
            self.settag()
        e("s_barrier")

        def pub():
            e("v_lshlrev_b32 v4, 4, v0")
            for w in range(8):
                self.ds(f"ds_read_b128 {vr(d0+4*w,4)}, v4 offset:{lds+w*1024}")
            e(f"s_lshl_b32 s{S_TMP}, s{sSl}, 10")
            self.addr(S_B, S_WS, S_TMP, WS_QP)
            e("s_waitcnt lgkmcnt(0)")
            self.tree_add4(d0, 8)
            self.tag4(d0)
            self.vm(f"global_store_dwordx4 v4, {vr(d0,4)}, {sr(S_B)} sc1")

        self.when(f"s_cmp_eq_u32 s3, {PUBW if first else 0}", pub)
        if first:
            self.stamp(1)

    def p1_multi(self, offs, pre, d0, lds):
        e = self.e
        sl, raw, tok = [S_SL, S_SL + 1, 99], [16, 32, 100], []
        for i, off in enumerate(offs):
            e(f"s_add_u32 s{sl[i]}, s2, {off}")
            tok.append(self.p1_plain(sl[i], S_WQB if i else S_WQA, S_BX if i else S_AX, 8 + 2 * i, raw[i], first=not i))
        self.consts()
        pre()
        for i in range(len(offs)):
            self.p1_compute(sl[i], tok[i], 8 + 2 * i, raw[i], d0, 48, lds[i], first=not i)


class Chunk:
    QS, ST, OS = 8192, 9216, 10240

    def __init__(self, k, nb, extra, KR, VR, QF, SR, ACC, X, VA, CNT, sK, sV, sQ, QG=8):
        self.k, self.nb, self.extra, self.QG = k, nb, extra, QG
        self.KR, self.VR, self.QF, self.SR, self.ACC, self.X = KR, VR, QF, SR, ACC, X
        self.vK, self.vV, self.vQ, self.vF = VA, VA + 1, VA + 2, VA + 3
        self.CNT, self.sK, self.sV, self.sQ = CNT, sK, sV, sQ
        self.sPair, self.sChunk, self.sTile, self.sNx = S_P, S_P + 1, S_P + 2, [S_P + 3, S_P + 5]
        self.ktok, self.vtok = {}, {}

    def ifx(self, i, fn):
        self.k.when(f"s_cmp_lt_u32 s3, s{self.sNx[i]}", fn)

    def setup(self):
        k = self.k; e = k.e
        k.sexpr(S_TMP, [(self.sPair, 0, None, 21), (self.sTile, 0, None, 12)])
        k.addr(self.sK, S_K, S_TMP)
        k.addr(self.sV, S_V, S_TMP)
        a, b = self.vQ, self.vF
        e(f"v_bfe_u32 v{a}, v0, 1, 1")
        e(f"v_lshlrev_b32 v{a}, 11, v{a}")
        e(f"v_bfe_u32 v{b}, v0, 2, 2")
        e(f"v_lshl_add_u32 v{a}, v{b}, 8, v{a}")
        e(f"v_lshl_add_u32 v{a}, v{V_J}, 5, v{a}")
        e(f"v_and_b32 v{b}, 1, v0")
        e(f"v_lshl_add_u32 v{self.vK}, v{b}, 4, v{a}")
        e(f"v_lshlrev_b32 v{self.vV}, 4, v0")
        e(f"v_lshlrev_b32 v{self.vQ}, 10, v{V_J}")
        e(f"v_lshl_add_u32 v{self.vQ}, v{V_N}, 4, v{self.vQ}")

    def qaddr(self):
        k = self.k
        k.sexpr(S_TMP, [(self.sPair, 0, 7, 14), (3, 1, None, 12), (self.sPair, 3, None, 9), (3, 0, 1, 8)])
        k.addr(self.sQ, S_WS, S_TMP, WS_QP + 128 * 1024)

    def kload(self, t, d=0, lo=0, hi=4):
        for ks in range(lo, hi):
            self.k.throttle(d)
            r = (ks >> 1) + 2 * (ks & 1)
            self.ktok[t] = self.k.ld4(self.KR[t] + 4 * r, self.vK, self.sK, (ks >> 1) * 1024 + (ks & 1) * 128)
        if hi == 4:
            self.k.adv(self.sK, 4096)

    def vload(self, t, d=0, lo=0, hi=4):
        for i in range(lo, hi):
            self.k.throttle(d)
            self.vtok[t] = self.k.ld4(self.VR[t] + 4 * i, self.vV, self.sV, i * 1024)
        if hi == 4:
            self.k.adv(self.sV, 4096)

    def qissue(self):
        return self.k.ld4(self.QG, self.vQ, self.sQ, 0, "sc1")

    def qpiece(self, tok=None):
        k = self.k; e = k.e
        g = self.QG
        k.poll(self.qissue, lambda: k.chk4(g, 4, True), pre_issued=tok)
        k.xrow("v_add_f32", [g, g + 1, g + 2, g + 3], [12, 13, 14, 15])
        e(f"v_cvt_pk_bf16_f32 v{g}, v{g}, v{g+1}")
        e(f"v_cvt_pk_bf16_f32 v{g+1}, v{g+2}, v{g+3}")
        e(f"s_lshl_b32 s{S_TMP}, s3, 7")
        e(f"v_lshlrev_b32 v4, 3, v{V_N}")
        e(f"v_add_u32 v4, s{S_TMP}, v4")
        k.exec_set(0xffff, 0)
        k.ds(f"ds_write_b64 v4, {vr(g,2)} offset:{self.QS}")
        k.arrive(self.CNT)

    def qread(self):
        k = self.k; e = k.e
        k.await_cnt(self.CNT, 8)
        e(f"v_lshrrev_b32 v4, 2, v{V_N}")
        e("v_lshlrev_b32 v4, 8, v4")
        e(f"v_lshl_add_u32 v4, v{V_J}, 5, v4")
        for ks in range(4):
            k.ds(f"ds_read_b128 {vr(self.QF+4*ks,4)}, v4 offset:{self.QS+(ks>>1)*128+(ks&1)*16}")
        for r in range(4 * self.extra):
            e(f"v_mov_b32 v{self.SR+4*self.nb+r}, 0xff800000")

    def qk(self, t):
        k = self.k
        k.vmwait(self.ktok[t])
        k0, x = self.KR[t], self.X + 8 * (t & 1)
        k.swap_pairs([(x, k0, k0 + 4), (x + 4, k0 + 8, k0 + 12)])
        d = vr(self.SR + 4 * t, 4)
        for ks, f in enumerate((x, k0 + 4, x + 4, k0 + 12)):
            k.e(f"v_mfma_f32_16x16x32_bf16 {d}, {vr(f,4)}, {vr(self.QF+4*ks,4)}, {'0' if ks == 0 else d}")

    def softmax(self):
        k = self.k; e = k.e
        SR = self.SR
        n = 4 * (self.nb + self.extra)
        k.chain("v_max3_f32", "v_max_f32", 4, range(SR, SR + n))
        k.xrow("v_max_f32", [4], [5])
        e(f"v_mul_f32 v4, s{S_SC}, v4")
        for i in range(n):
            e(f"v_fma_f32 v{SR+i}, v{SR+i}, s{S_SC}, -v4")
        for i in range(n):
            e(f"v_exp_f32 v{SR+i}, v{SR+i}")
        k.chain(None, "v_add_f32", 5, range(SR, SR + n))
        for i in range(n // 2):
            e(f"v_cvt_pk_bf16_f32 v{SR+i}, v{SR+2*i}, v{SR+2*i+1}")
        k.xrow("v_add_f32", [5], [6])
        e(f"s_lshl_b32 s{S_TMP}, s3, 5")
        e(f"v_lshlrev_b32 v6, 1, v{V_N}")
        e(f"v_add_u32 v6, s{S_TMP}, v6")
        k.exec_set(0x1111, 0)
        k.ds(f"ds_write_b64 v6, v[4:5] offset:{self.ST}")
        k.arrive(self.CNT + 4)

    def pv(self, t, n, first=False):
        k = self.k
        k.vmwait(self.vtok[t + n - 1])
        for i in range(8):
            x = self.X + 4 * (i & 3)
            k.frag(x, self.VR[t], i, 4 * n)
            d = vr(self.ACC + 4 * i, 4)
            op = "v_mfma_f32_16x16x32_bf16" if n == 2 else "v_mfma_f32_16x16x16_bf16"
            k.e(f"{op} {d}, {vr(self.SR+2*t,2*n)}, {vr(x,2*n)}, {'0' if first else d}")

    def factor(self, T0):
        k = self.k; e = k.e
        k.await_cnt(self.CNT + 4, 8)
        e(f"v_lshlrev_b32 v6, 3, v{V_J}")
        for w in range(8):
            k.ds(f"ds_read_b64 {vr(T0+2*w,2)}, v6 offset:{self.ST+w*32}")
        e(f"s_lshl_b32 s{S_TMP}, s3, 5")
        e(f"v_add_u32 v6, s{S_TMP}, v6")
        k.ds(f"ds_read_b64 v[4:5], v6 offset:{self.ST}")
        k.lgwait()
        k.chain("v_max3_f32", "v_max_f32", 7, range(T0, T0 + 16, 2))
        for w in range(8):
            e(f"v_sub_f32 v{T0+2*w}, v{T0+2*w}, v7")
        e("v_sub_f32 v4, v4, v7")
        for w in range(8):
            e(f"v_exp_f32 v{T0+2*w}, v{T0+2*w}")
        e("v_exp_f32 v4, v4")
        e(f"v_mul_f32 v5, v{T0}, v{T0+1}")
        for w in range(1, 8):
            e(f"v_fmac_f32 v5, v{T0+2*w}, v{T0+2*w+1}")
        e("v_rcp_f32 v6, v5")
        e("v_log_f32 v5, v5")
        e(f"v_mul_f32 v{self.vF}, v4, v6")

        def lse():
            for i in range(4):
                e(f"v_add_f32 v{8+i}, v5, v7")
            k.tag4(8)
            k.sexpr(S_TMP, [(self.sPair, 0, 7, 11), (self.sPair, 3, None, 8), (self.sChunk, 0, None, 4)])
            k.addr(self.sQ, S_WS, S_TMP, WS_LSEB)
            e(f"v_lshlrev_b32 v4, 9, v{V_J}")
            k.exec_set(0x00010001, 0x00010001)
            k.vm(f"global_store_dwordx4 v4, v[8:11], {sr(self.sQ)} sc1")
            k.exec_all()

        k.when(f"s_cmp_eq_u32 s3, {PUBW}", lse)
        k.sexpr(S_TMP, [(self.sPair, 0, 7, 3), (3, 0, 1, 2), (self.sPair, 3, None, 0)])
        e(f"s_mul_i32 s{S_TMP}, s{S_TMP}, {NCB}")
        e(f"s_add_u32 s{S_TMP}, s{S_TMP}, s{self.sChunk}")
        e(f"s_lshl_b32 s{S_TMP}, s{S_TMP}, 9")
        k.addr(self.sQ, S_WS, S_TMP, WS_OP)
        e("v_lshrrev_b32 v4, 5, v0")
        e(f"v_mul_u32_u24 v4, {2*NCB*512}, v4")
        e("v_and_b32 v5, 31, v0")
        e(f"v_lshl_add_u32 v{self.vQ}, v5, 4, v4")
        e(f"s_lshl_b32 s{S_TMP}, s3, 11")
        e(f"v_lshlrev_b32 v4, 9, v{V_J}")
        e(f"v_lshl_add_u32 v4, v{V_N}, 5, v4")
        e(f"v_add_u32 v{self.vK}, s{S_TMP}, v4")
        k.sexpr(S_TMP, [(3, 0, 1, 10)])
        e(f"v_add_u32 v{T0}, s{S_TMP}, v{self.vV}")
        self.vR = T0

    def finish(self, T0, st):
        k = self.k; e = k.e
        k.stamp(st)
        T0 += 4
        for i in range(8):
            e(f"v_mul_f32 v{T0+i}, v{self.vF}, v{self.ACC+4*i}")
        k.ds(f"ds_write_b128 v{self.vK}, {vr(T0,4)} offset:{self.OS}")
        k.ds(f"ds_write_b128 v{self.vK}, {vr(T0+4,4)} offset:{self.OS+16}")
        k.barrier()
        e("s_cmp_lt_u32 s3, 6")
        e("s_cbranch_scc1 L_fin")
        for w in range(8):
            k.ds(f"ds_read_b128 {vr(T0+4*w,4)}, v{self.vR} offset:{self.OS+w*2048}")
        k.lgwait()
        k.tree_add4(T0, 8)
        k.tag4(T0)
        k.vm(f"global_store_dwordx4 v{self.vQ}, {vr(T0,4)}, {sr(self.sQ)} sc1")
        k.stamp(st + 1)
        e("s_branch L_fin")


def role_B(k):
    e, o = k.e, k.o
    D1, D, DV, SW = o.get("depth_b1", 2), o.get("depth_b", 6), o.get("depth_v", 8), o.get("b_sw", 2)
    KR = [160 + 16 * t for t in range(6)] + [144]
    VR = [16, 32, KR[0], KR[1], KR[2], KR[3], KR[4]]
    CNT, QS2, QAS, UK = 9728, 9856, 40960, 144
    c = Chunk(k, 5, 2, KR, VR, QF=128, SR=100, ACC=64, X=48, VA=96, CNT=CNT, sK=S_C, sV=S_D, sQ=S_A)
    sI = S_P + 4
    dep = lambda t: D1 if t < SW else D
    npre, bpre = o.get("p2_at", 2), o.get("b_pre", 1)

    def kstream(lo, hi, thr):
        for n in range(lo, hi):
            c.kload(n >> 2, dep(n >> 2) if thr else 0, n & 3, (n & 3) + 1)

    def params():
        e("s_waitcnt lgkmcnt(0)")
        e(f"s_bfe_u32 s{c.sNx[0]}, s{c.sTile}, 0x40010")
        e(f"s_bfe_u32 s{c.sNx[1]}, s{c.sTile}, 0x40014")
        e(f"s_bfe_u32 s{c.sPair}, s{c.sTile}, 0x40018")
        e(f"s_lshr_b32 s{c.sChunk}, s{c.sTile}, 28")
        e(f"s_and_b32 s{c.sTile}, s{c.sTile}, 0xffff")
        e(f"s_mul_i32 s{S_TMP}, s3, 5")
        e(f"s_add_u32 s{c.sTile}, s{c.sTile}, s{S_TMP}")
        for i in range(2):
            e(f"s_min_u32 s{S_TMP}, s3, s{c.sNx[i]}")
            e(f"s_add_u32 s{c.sTile}, s{c.sTile}, s{S_TMP}")
        c.setup()
        for r in range(124, 128):
            e(f"v_mov_b32 v{r}, 0")
        e(f"v_mov_b32 v123, {CNT}")
        k.ds("ds_write_b128 v123, v[124:127]")

    k.label("L_roleB")
    e(f"s_sub_u32 s{sI}, s2, {NT+NA}")
    e(f"s_getpc_b64 {sr(S_C)}")
    k.label("L_pc")
    e(f"s_lshl_b32 s{S_TMP}, s{sI}, 2")
    e(f"s_add_u32 s{S_C}, s{S_C}, L_tiles-L_pc")
    e(f"s_addc_u32 s{S_C+1}, s{S_C+1}, 0")
    e(f"s_load_dword s{c.sTile}, {sr(S_C)}, s{S_TMP}")
    e("s_cmp_ge_u32 s2, 224")
    e("s_cbranch_scc1 L_roleB2")
    base = k.vm_n
    e(f"s_add_u32 s{S_SL}, s{sI}, 64")

    def selW():
        e(f"s_cmp_lt_u32 s{sI}, 64")
        e(f"s_cselect_b32 s{S_C}, s{S_WQA}, s{S_WQB}")
        e(f"s_cselect_b32 s{S_C+1}, s{S_WQA+1}, s{S_WQB+1}")
        e(f"s_cselect_b32 s{S_B}, s{S_AX}, s{S_BX}")
        e(f"s_cselect_b32 s{S_B+1}, s{S_AX+1}, s{S_BX+1}")
        e(f"s_add_u32 s{S_A}, s{S_C}, s{S_A}")
        e(f"s_addc_u32 s{S_A+1}, s{S_C+1}, 0")

    tok = k.p1_issue(S_SL, selW, lambda: k.addr(S_B, S_B, S_TMP), 8, 16)
    k.sexpr(S_TMP, [(sI, 0, 3, 20), (3, 0, None, 17), (sI, 2, None, 8)])
    k.addr(S_C, S_WUK, S_TMP)
    e("v_bfe_u32 v33, v0, 1, 3")
    e("v_lshlrev_b32 v33, 14, v33")
    e(f"v_lshl_add_u32 v33, v{V_J}, 5, v33")
    e("v_and_b32 v32, 1, v0")
    e("v_lshl_add_u32 v33, v32, 4, v33")
    e("v_add_u32 v32, 0x2000, v33")
    for ks in range(4):
        uktok = k.ld4(UK + 4 * ((ks >> 1) + 2 * (ks & 1)), 33 - (ks >> 1), S_C, (ks & 1) * 128)
    k.consts()
    params()
    kstream(0, bpre, False)
    k.p1_compute(S_SL, tok, 8, 16, c.ACC, 48)
    kstream(bpre, npre, False)
    k.sexpr(S_TMP, [(sI, 2, None, 12), (3, 0, 3, 8)])
    k.addr(S_B, S_WS, S_TMP, WS_QP)

    def p2_piece():
        e(f"s_waitcnt vmcnt({o.get('p2_w', 0)})")
        k.poll(lambda: k.ld4(8, c.vQ, S_B, 0, "sc1"), lambda: k.chk4(8, 4, True))
        k.xrow("v_add_f32", [8, 9, 10, 11], [12, 13, 14, 15])
        e("v_cvt_pk_bf16_f32 v8, v8, v9")
        e("v_cvt_pk_bf16_f32 v9, v10, v11")
        k.sexpr(S_TMP, [(3, 0, 3, 7)])
        e(f"v_lshlrev_b32 v4, 3, v{V_N}")
        e(f"v_add_u32 v4, s{S_TMP}, v4")
        k.exec_set(0xffff, 0)
        k.ds(f"ds_write_b64 v4, v[8:9] offset:{QS2}")
        k.arrive(CNT + 8)

    k.vmwait(uktok)
    k.swap_pairs([(48, UK, UK + 4), (52, UK + 8, UK + 12)])
    k.when("s_cmp_ge_u32 s3, 4", p2_piece)
    k.stamp(7)
    k.sexpr(S_TMP, [(sI, 2, None, 10), (sI, 0, 3, 8)])
    k.addr(S_B, S_WS, S_TMP, WS_QA)
    k.bitmasks(12)
    e("v_mov_b32 v16, 0xfffefffe")
    e(f"v_lshlrev_b32 v17, 15, v{V_J}")
    e(f"v_lshl_add_u32 v17, v{V_N}, 4, v17")
    e(f"v_lshlrev_b32 v5, 8, v{V_N}")
    e(f"v_lshl_add_u32 v5, v{V_J}, 3, v5")
    e(f"s_lshl_b32 s{S_TMP}, s3, 5")
    e(f"v_add_u32 v5, s{S_TMP}, v5")
    e(f"v_and_b32 v4, 1, v{V_N}")
    e("v_lshlrev_b32 v4, 8, v4")
    e(f"v_lshl_add_u32 v4, v{V_J}, 5, v4")
    k.await_cnt(CNT + 8, 4)
    for ks in range(4):
        k.ds(f"ds_read_b128 {vr(c.QF+4*ks,4)}, v4 offset:{QS2+(ks>>1)*128+(ks&1)*16}")
    k.lgwait()
    for ks, f in enumerate((48, UK + 4, 52, UK + 12)):
        e(f"v_mfma_f32_16x16x32_bf16 v[8:11], {vr(f,4)}, {vr(c.QF+4*ks,4)}, {'0' if ks == 0 else 'v[8:11]'}")
    e("v_cvt_pk_bf16_f32 v8, v8, v9")
    e("v_cvt_pk_bf16_f32 v9, v10, v11")
    k.exec_set(0x00030003, 0x00030003)
    k.ds(f"ds_write_b64 v5, v[8:9] offset:{QAS}")
    k.arrive(CNT + 12)

    def qa_pub():
        k.await_cnt(CNT + 12, 8)
        k.ds(f"ds_read_b128 v[8:11], v{c.vV} offset:{QAS}")
        k.lgwait()
        for q in range(4):
            e(f"v_and_or_b32 v{8+q}, v{8+q}, v16, v{12+q}")
        k.exec_set(0xffffffff, 0)
        k.vm(f"global_store_dwordx4 v17, v[8:11], {sr(S_B)} sc1")
        k.exec_all()

    k.when(f"s_cmp_eq_u32 s3, {o.get('qaw', 3)}", qa_pub)
    k.stamp(8)
    e("s_branch L_roleB3")
    k.label("L_roleB2")
    k.vm_n = base
    T1 = o.get("t_one", 0)
    k.p1_multi([-192, 0] + [-32] * T1, lambda: (params(), kstream(0, bpre, False)), c.ACC, [0, 32768, 49152])
    kstream(bpre, npre, True)
    k.label("L_roleB3")
    c.qaddr()
    qat = o.get("b_qat", 2)
    for t in range(5):
        if t == qat:
            qtok = c.qissue()
        kstream(max(4 * t, npre), max(4 * t + 4, npre), True)
        if t == o.get("b_qchk", 4):
            k.stamp(2)
            c.qpiece(qtok)
            k.stamp(3)
    c.ifx(0, lambda: c.kload(5, D))
    c.ifx(1, lambda: c.kload(6, D))
    c.qread()
    c.vload(0, DV)
    k.lgwait()
    c.qk(0); c.qk(1)
    c.vload(1, DV)
    c.qk(2); c.qk(3)
    c.vload(2, DV)
    c.qk(4)
    c.ifx(0, lambda: c.qk(5))
    c.ifx(1, lambda: c.qk(6))
    c.vload(3, DV)
    k.stamp(4)
    c.softmax()
    c.vload(4, DV)
    c.pv(0, 2, first=True)
    c.ifx(0, lambda: c.vload(5, DV))
    c.factor(16)
    c.ifx(1, lambda: c.vload(6, DV))
    c.pv(2, 2)
    c.pv(4, 1)
    c.ifx(0, lambda: c.pv(5, 1))
    c.ifx(1, lambda: c.pv(6, 1))
    c.finish(16, 5)


def role_A(k):
    e, o = k.e, k.o
    C0, G, QT, SR, ACC = 128, 64, 64, 48, 96
    Q = 131072
    PB, ST, ST2, CNT = Q, Q + 16384, Q + 17408, 9728
    sB, sCh, sA = S_P + 4, S_P + 5, S_P + 6
    AT = o.get("a_t", 1)
    c = Chunk(k, AT, 0, KR=[128, 144][:AT], VR=[160, 176][:AT], QF=64, SR=48, ACC=96, X=80, VA=28, CNT=CNT, sK=S_C, sV=S_D, sQ=S_B, QG=22)
    k.label("L_roleA")
    e(f"s_sub_u32 s{sA}, s2, {NT}")
    k.sexpr(S_TMP, [(sA, 0, None, 18), (3, 0, None, 14)])
    e("v_bfe_u32 v32, v0, 1, 3")
    e("v_lshlrev_b32 v32, 11, v32")
    e(f"v_lshl_add_u32 v32, v{V_J}, 5, v32")
    e("v_and_b32 v33, 1, v0")
    e("v_lshl_add_u32 v32, v33, 4, v32")
    e("s_waitcnt lgkmcnt(0)")
    SCK = 98
    k.addr(SCK, S_CKV, S_TMP)
    DA = o.get("depth_a", 5)
    coff = lambda ks: (ks & 1) * 1024 + (ks >> 1) * 128
    CF = []
    for p in range(16):
        CF += [C0 + 8 * p - 8 if p else 124, C0 + 8 * p + 4]
    ctok = {}
    st = {"n": 0}
    sVal = 92

    def pump(upto):
        while st["n"] < min(upto, 32):
            n = st["n"]
            if n == 16:
                k.adv(SCK, 131072)
            m = (n & ~3) | ((n & 1) << 1) | ((n >> 1) & 1)
            ctok[m] = k.ld4(C0 + 4 * m, 32, SCK, coff(m & 15))
            st["n"] += 1

    pump(DA)
    k.consts()
    e(f"s_lshr_b32 s{sB}, s{sA}, 5")
    e(f"s_and_b32 s{sCh}, s{sA}, 31")
    e(f"v_bfe_u32 v4, v{V_N}, 1, 2")
    e(f"v_and_b32 v5, 3, v{V_N}")
    e("v_lshl_add_u32 v4, v5, 2, v4")
    e(f"v_lshlrev_b32 v5, 1, v{V_J}")
    e("v_xor_b32 v4, v4, v5")
    e(f"s_lshl_b32 s{S_TMP}, s3, 14")
    e(f"v_lshlrev_b32 v5, 10, v{V_N}")
    e(f"v_add_u32 v5, s{S_TMP}, v5")
    e("v_lshl_add_u32 v40, v4, 4, v5")
    kx = lambda q: (q >> 1) * 128 + (q & 1) * 16
    for q in range(1, 4):
        e(f"v_xor_b32 v{40+q}, {kx(q)}, v40")
    k.sexpr(S_TMP, [(sB, 0, None, 15), (3, 0, None, 12)])
    k.addr(S_A, S_WS, S_TMP, WS_QA)
    e("v_lshlrev_b32 v33, 4, v0")
    e(f"v_lshlrev_b32 v4, 1, v{V_J}")
    e(f"v_xor_b32 v4, v4, v{V_N}")
    e(f"v_lshlrev_b32 v5, 10, v{V_N}")
    e(f"v_add_u32 v5, {Q}, v5")
    e("v_lshl_add_u32 v44, v4, 4, v5")
    for q in range(1, 4):
        e(f"v_xor_b32 v{44+q}, {kx(q)}, v44")
    e(f"v_lshlrev_b32 v4, 5, v{V_N}")
    e(f"v_add_u32 v35, {ST}, v4")
    e(f"s_lshl_b32 s{S_TMP}, s3, 2")
    e(f"v_add_u32 v36, s{S_TMP}, v35")
    e("v_and_b32 v6, 31, v0")
    e("v_lshlrev_b32 v4, 5, v6")
    e(f"v_add_u32 v37, {ST}, v4")
    e(f"v_lshrrev_b32 v7, 1, v{V_J}")
    e(f"s_lshl_b32 s{S_TMP}, s3, 1")
    e(f"v_add_u32 v7, s{S_TMP}, v7")
    e(f"v_xor_b32 v7, v7, v{V_N}")
    e("v_lshlrev_b32 v7, 4, v7")
    e(f"v_lshl_add_u32 v7, v{V_N}, 9, v7")
    e(f"v_and_b32 v8, 1, v{V_J}")
    e("v_lshl_add_u32 v7, v8, 3, v7")
    e(f"v_add_u32 v38, {PB}, v7")
    e("v_lshrrev_b32 v4, 5, v0")
    e(f"v_xor_b32 v7, v4, v{V_N}")
    e("v_lshlrev_b32 v7, 4, v7")
    e("v_lshl_add_u32 v7, v6, 9, v7")
    e(f"v_add_u32 v20, {PB}, v7")
    k.sexpr(S_TMP, [(3, 0, 1, 3)])
    e(f"v_xor_b32 v7, s{S_TMP}, v{V_N}")
    e("v_lshlrev_b32 v7, 4, v7")
    e("v_lshl_add_u32 v7, v6, 10, v7")
    e("v_lshl_add_u32 v7, v4, 3, v7")
    k.sexpr(S_TMP, [(3, 1, None, 8)], Q)
    e(f"v_add_u32 v39, s{S_TMP}, v7")
    k.sexpr(S_TMP, [(3, 0, 3, 2)])
    e(f"v_xor_b32 v7, s{S_TMP}, v0")
    e("v_lshlrev_b32 v7, 4, v7")
    k.sexpr(S_TMP, [(3, 0, None, 12)], Q)
    e(f"v_add_u32 v27, s{S_TMP}, v7")
    e("v_bfe_u32 v5, v0, 2, 2")
    e("v_lshl_add_u32 v6, v4, 3, v5")
    e("v_lshlrev_b32 v6, 10, v6")
    e("v_and_b32 v7, 1, v0")
    e("v_lshl_add_u32 v6, v7, 3, v6")
    k.sexpr(S_TMP, [(3, 1, None, 8)])
    e(f"v_add_u32 v6, s{S_TMP}, v6")
    e("v_bfe_u32 v7, v0, 4, 1")
    e("v_bfe_u32 v8, v0, 1, 1")
    e("v_lshl_add_u32 v7, v7, 1, v8")
    k.sexpr(S_TMP, [(3, 0, 1, 3)])
    e(f"v_add_u32 v7, s{S_TMP}, v7")
    e("v_lshrrev_b32 v8, 1, v5")
    e("v_lshlrev_b32 v5, 2, v5")
    e("v_xor_b32 v7, v7, v5")
    e("v_xor_b32 v7, v7, v8")
    for mt in range(2):
        for ee in range(2):
            r = 16 + 2 * mt + ee
            e(f"v_xor_b32 v{r}, {4*mt + 2*ee}, v7")
            e(f"v_lshl_add_u32 v{r}, v{r}, 4, v6")
            if ee:
                e(f"v_add_u32 v{r}, 4096, v{r}")
    e(f"s_lshr_b32 s{c.sPair}, s{sA}, 2")
    k.sexpr(c.sChunk, [(sA, 0, 3, 0)], 10)
    k.sexpr(c.sTile, [(sA, 0, 3, 2 + AT), (3, 0, None, AT - 1)], 512 - 32 * AT)
    c.setup()
    SL, SFL = 94, 100
    k.sexpr(S_TMP, [(3, 0, None, 18), (sB, 0, None, 15), (sCh, 0, None, 10)])
    k.addr(SL, S_WS, S_TMP, WS_LATP)
    k.sexpr(S_TMP, [(sA, 0, None, 3)])
    k.addr(SFL, S_WS, S_TMP, WS_LSEA)
    e("s_waitcnt lgkmcnt(0)")
    k.settag()
    k.bitmasks(G + 16)

    def cwrite(ks):
        k.ds(f"ds_write_b128 v{40+(ks&3)}, {vr(CF[ks],4)} offset:{((ks&15)>>2)*256}")

    def qload(q):
        return k.ld4(G + 4 * q, 33, S_A, q * 1024, "sc1")

    gat, gq = o.get("a_gat", 10), o.get("a_gq", 12)

    def cproc(p):
        pump(2 * p + 2 + DA)
        if p == gat:
            for q in range(4):
                st["g"] = qload(q)
        k.vmwait(ctok[2 * p + 1])
        k.swap_pairs([(CF[2 * p], C0 + 8 * p, C0 + 8 * p + 4)])
        if p < 8:
            cwrite(2 * p); cwrite(2 * p + 1)

    for p in range(gq + 1):
        cproc(p)
    pump(2 * gq + 4 + DA)
    k.stamp(2)
    top, chk, done = k.newlabel("L_qa"), k.newlabel("L_qachk"), k.newlabel("L_qaok")
    e(f"s_mov_b32 s{sVal}, 0")
    e(f"s_mov_b32 s{S_SPIN}, {SPIN_MAX}")
    k.vmwait(st["g"])
    e(f"s_branch {chk}")
    k.label(top)
    k.cond += 1
    e(f"s_sub_u32 s{S_SPIN}, s{S_SPIN}, 1")
    e(f"s_cbranch_scc1 {done}")
    for q in range(4):
        lab = k.newlabel("L_qsk")
        e(f"s_bitcmp1_b32 s{sVal}, {q}")
        e(f"s_cbranch_scc1 {lab}")
        qload(q)
        k.label(lab)
    e("s_waitcnt vmcnt(0)")
    k.label(chk)
    for q in range(4):
        for i in range(4):
            e(f"v_xor_b32 v{4+i}, v{G+4*q+i}, v{G+16+i}")
        e("v_or3_b32 v4, v4, v5, v6")
        e("v_or_b32 v4, v4, v7")
        e("v_and_b32 v4, 0x10001, v4")
        e(f"v_cmp_ne_u32 {sr(S_BAD)}, 0, v4")
        e(f"s_cmp_eq_u64 {sr(S_BAD)}, 0")
        e(f"s_cselect_b32 s{S_TMP}, {1 << q}, 0")
        e(f"s_or_b32 s{sVal}, s{sVal}, s{S_TMP}")
    e(f"s_cmp_lg_u32 s{sVal}, 15")
    e(f"s_cbranch_scc1 {top}")
    k.cond -= 1
    k.label(done)
    k.stamp(3)
    for q in range(4):
        e(f"v_xor_b32 v{4+q}, {q*16}, v27")
        k.ds(f"ds_write_b128 v{4+q}, {vr(G+4*q,4)} offset:{q*1024}")
    k.barrier()
    tk = {}

    def qread(ks):
        for hh in range(2):
            tk[ks] = k.ds(f"ds_read_b128 {vr(QT+8*(ks&3)+4*hh,4)}, v{44+(ks&3)} offset:{hh*16384+(ks>>2)*256}")

    for ks in range(3):
        qread(ks)
    for ks in range(16):
        if ks + 3 < 16:
            qread(ks + 3)
        if ks & 1 == 0 and 8 + ks // 2 > gq:
            cproc(8 + ks // 2)
        k.lgwait(tk[ks])
        for hh in range(2):
            for rnd in range(2):
                d = vr(SR + 8 * hh + 4 * rnd, 4)
                e(f"v_mfma_f32_16x16x32_bf16 {d}, {vr(CF[16*rnd+ks],4)}, {vr(QT+8*(ks&3)+4*hh,4)}, {'0' if ks == 0 else d}")
        if ks < 2 * (gq - 7) and ks & 1:
            pump(st["n"] + 1)
    c.kload(0, 0, 0, 2)
    k.stamp(4)
    for hh in range(2):
        k.chain("v_max3_f32", "v_max_f32", 4 + hh, range(SR + 8 * hh, SR + 8 * hh + 8))
    k.xrow("v_max_f32", [4, 5], [6, 7])
    k.barrier()
    k.exec_set(0xffff, 0)
    for hh in range(2):
        k.ds(f"ds_write_b32 v36, v{4+hh} offset:{hh*512}")
    k.exec_all()
    c.kload(0, 0, 2, 4)
    k.barrier()
    for hh in range(2):
        for q in range(2):
            k.ds(f"ds_read_b128 {vr(64+8*hh+4*q,4)}, v35 offset:{hh*512+q*16}")
    for q in range(2):
        k.ds(f"ds_read_b128 {vr(80+4*q,4)}, v37 offset:{q*16}")
    k.lgwait()
    for i, dst in enumerate((4, 5, 26)):
        k.chain("v_max3_f32", "v_max_f32", dst, range(64 + 8 * i, 72 + 8 * i))
        e(f"v_mul_f32 v{dst}, s{S_SC}, v{dst}")
    for i in range(16):
        e(f"v_fma_f32 v{SR+i}, v{SR+i}, s{S_SC}, -v{4+(i>>3)}")
    for i in range(16):
        e(f"v_exp_f32 v{SR+i}, v{SR+i}")
    for hh in range(2):
        k.chain(None, "v_add_f32", 6 + hh, range(SR + 8 * hh, SR + 8 * hh + 8))
    for i in range(8):
        e(f"v_cvt_pk_bf16_f32 v{SR+i}, v{SR+2*i}, v{SR+2*i+1}")
    for hh in range(2):
        for rnd in range(2):
            k.ds(f"ds_write_b64 v38, {vr(SR+4*hh+2*rnd,2)} offset:{hh*8192+rnd*256}")
    k.xrow("v_add_f32", [6, 7], [8, 9])
    k.exec_set(0xffff, 0)
    for hh in range(2):
        k.ds(f"ds_write_b32 v36, v{6+hh} offset:{ST2-ST+hh*512}")
    k.exec_all()
    if AT == 2:
        c.kload(1, 0)
    k.barrier()
    FR = 48

    def pvpart(rnd, u0, u1):
        tk = {}

        def rd(u):
            f = FR + 12 * (u % 3)
            if u == 4:
                for r in range(16, 20):
                    e(f"v_add_u32 v{r}, 0x10000, v{r}")
            e(f"v_xor_b32 v21, {u*32}, v20")
            k.ds(f"ds_read_b128 {vr(f+8,4)}, v21 offset:{rnd*256}")
            for mt in range(2):
                for ee in range(2):
                    tk[u] = k.ds(f"ds_read_b64_tr_b16 {vr(f+4*mt+2*ee,2)}, v{16+2*mt+ee} offset:{(u&3)*16384}")

        rd(u0); rd(u0 + 1)
        for u in range(u0, u1):
            if u + 2 < u1:
                rd(u + 2)
            k.lgwait(tk[u])
            f = FR + 12 * (u % 3)
            for mt in range(2):
                d = vr(ACC + 16 * mt, 16)
                e(f"v_mfma_f32_32x32x16_bf16 {d}, {vr(f+4*mt,4)}, {vr(f+8,4)}, {'0' if (rnd == 0 and u == 0) else d}")
        if u1 == 8 and rnd == 0:
            for r in range(16, 20):
                e(f"v_subrev_u32 v{r}, 0x10000, v{r}")

    def cw1():
        for ks in range(16, 32):
            cwrite(ks)

    if o.get("a_ovl", 0):
        pvpart(0, 0, 4)
        k.barrier()
        k.when("s_cmp_lt_u32 s3, 4", cw1)
        pvpart(0, 4, 8)
        k.stamp(5)
        c.qaddr()
        qtok = c.qissue()
        if o.get("a_ve", 1):
            c.vload(0, 0)
        k.barrier()
        k.when("s_cmp_ge_u32 s3, 4", cw1)
        pvpart(1, 0, 4)
        k.barrier()
        k.stamp(6)
        pvpart(1, 4, 8)
    else:
        pvpart(0, 0, 8)
        k.stamp(5)
        k.barrier()
        c.qaddr()
        qtok = c.qissue()
        cw1()
        if o.get("a_ve", 1):
            c.vload(0, 0)
        k.barrier()
        k.stamp(6)
        pvpart(1, 0, 8)
    k.stamp(10)
    for q in range(2):
        k.ds(f"ds_read_b128 {vr(64+4*q,4)}, v37 offset:{ST2-ST+q*16}")
    for r in range(12, 16):
        e(f"v_mov_b32 v{r}, 0")
    e(f"v_mov_b32 v11, {CNT}")
    k.lgwait()
    k.chain(None, "v_add_f32", 9, range(64, 72))
    e("v_rcp_f32 v10, v9")
    e("v_log_f32 v9, v9")
    e("v_add_f32 v26, v26, v9")
    e("s_barrier")
    k.ds("ds_write_b128 v11, v[12:15]")
    for g in range(8):
        for i in range(4):
            e(f"v_mul_f32 v{ACC+4*g+i}, v10, v{ACC+4*g+i}")
        e(f"v_cvt_pk_bf16_f32 v{ACC+4*g}, v{ACC+4*g}, v{ACC+4*g+1}")
        e(f"v_cvt_pk_bf16_f32 v{ACC+4*g+1}, v{ACC+4*g+2}, v{ACC+4*g+3}")
        e(f"v_xor_b32 v{40+g}, {g*16}, v39")
        k.ds(f"ds_write_b64 v{40+g}, {vr(ACC+4*g,2)}")
    k.barrier()
    tk = []
    for q in range(4):
        e(f"v_xor_b32 v{16+q}, {q*16}, v27")
        tk.append(k.ds(f"ds_read_b128 {vr(192+4*q,4)}, v{16+q} offset:{q*1024}"))
    for q in range(4):
        k.lgwait(tk[q])
        stok = k.vm(f"global_store_dwordx4 v33, {vr(192+4*q,4)}, {sr(SL)} sc1")
        if q < 3:
            k.adv(SL, 65536)
    if AT == 2 and o.get("a_v1", 0):
        c.vload(1, 0)
    k.stamp(11)
    c.qpiece(qtok)
    c.qread()
    e("v_lshlrev_b32 v40, 9, v0")
    e(f"v_mov_b32 v27, v{V_T}")
    k.lgwait()
    for t in range(AT):
        c.qk(t)
    c.softmax()
    k.vmwait(stok)
    e("s_barrier")

    def flag():
        k.exec_set(0xffffffff, 0)
        k.vm(f"global_store_dwordx2 v40, v[26:27], {sr(SFL)} sc1")
        k.exec_all()

    k.when(f"s_cmp_eq_u32 s3, {PUBW}", flag)
    if not o.get("a_ve", 1):
        c.vload(0, 0)
    if AT == 2 and not o.get("a_v1", 0):
        c.vload(1, 0)
    k.stamp(7)
    c.factor(208)
    c.pv(0, AT, first=True)
    c.finish(208, 8)


def role_T(k):
    e, o = k.e, k.o
    D = o.get("depth_t", 3)
    R = [32 + 32 * i for i in range(7)]
    WOL, CNT, WSC, CS, OB, P1B = 32768, 16384, 16640, 21504, 25600, 8192
    sStr, sW = S_P + 2, S_P + 3
    SF, SO = 86, 88
    k.label("L_roleT")
    k.remap = {11: 2, 12: 3}
    tok = {}

    def oload(n):
        tok["o", n >> 3] = k.ld4(R[5] + 4 * n, 29, S_C, (n & 3) * 1024)
        if n & 3 == 3:
            k.adv(S_C, 4096 if n & 4 == 0 else 4096 * 7)

    def pre():
        k.sexpr(S_TMP, [(2, 0, None, 17), (3, 2, None, 16), (3, 0, 3, 8)])
        k.addr(S_C, S_WOA, S_TMP)
        e(f"v_lshlrev_b32 v{R[4]}, 13, v{V_J}")
        e(f"v_lshl_add_u32 v{R[4]}, v{V_N}, 4, v{R[4]}")
        for r in range(4):
            e(f"v_mov_b32 v{R[4]+4+r}, 0")
        e(f"v_mov_b32 v{R[4]+1}, {CNT}")
        k.ds(f"ds_write_b128 v{R[4]+1}, {vr(R[4]+4,4)}")

    k.p1_multi([0] if o.get("t_one", 0) else [0, 192], pre, R[1], [0, P1B])
    e(f"v_mov_b32 v29, v{R[4]}")
    for n in range(D):
        oload(n)
    k.sexpr(S_TMP, [(3, 0, 3, 20), (2, 0, None, 8)])
    k.addr(S_A, S_WUV, S_TMP)
    k.sexpr(S_TMP, [(2, 0, None, 17), (3, 0, 3, 8)])
    k.addr(S_B, S_WOB, S_TMP)
    e("s_cmp_lt_u32 s3, 4")
    e(f"s_cselect_b32 s{sW}, s{S_A}, s{S_B}")
    e(f"s_cselect_b32 s{sW+1}, s{S_A+1}, s{S_B+1}")
    e(f"s_cselect_b32 s{sStr}, 13, 10")
    e(f"s_lshl_b32 s{sStr}, 1, s{sStr}")
    e(f"s_lshl_b32 s{S_TMP}, s{sStr}, 3")
    e(f"v_mul_lo_u32 v28, s{S_TMP}, v{V_J}")
    e(f"v_lshl_add_u32 v28, v{V_N}, 4, v28")
    e(f"s_mul_i32 s{S_P+1}, s{sStr}, 25")
    k.sexpr(S_TMP, [(3, 0, 3, 15), (3, 2, None, 14)], WOL)
    e("v_lshlrev_b32 v31, 4, v0")
    e(f"v_add_u32 v30, s{S_TMP}, v31")
    k.sexpr(S_P, [(3, 0, None, 10)], WSC)

    def wload(n, d):
        k.throttle(d)
        tok["w", n >> 3] = k.ld4(R[1] + 4 * n, 28, sW)
        st = S_P + 1 if n & 7 == 7 else sStr
        e(f"s_add_u32 s{sW}, s{sW}, s{st}")
        e(f"s_addc_u32 s{sW+1}, s{sW+1}, 0")

    def operm(g):
        k.vmwait(tok["o", g])
        for i in range(8):
            x = 8 + 4 * (i & 3)
            k.frag(x, R[5 + g], i, 8)
            k.ds(f"ds_write_b128 v30, {vr(x,4)} offset:{g*8192+i*1024}")

    def wperm(g):
        k.vmwait(tok["w", g])
        for i in range(8):
            k.frag(R[g] + 4 * i, R[g + 1], i, 8)

    for n in range(D, 16):
        k.throttle(D)
        oload(n)
        if n == 11:
            operm(0)
    DA_, DB_ = o.get("depth_ta", 3), o.get("depth_tb", 3)
    for n in range(32):
        if DB_ < DA_:
            lab = k.newlabel("L_td")
            e("s_cmp_lt_u32 s3, 4")
            e(f"s_cbranch_scc1 {lab}")
            k.throttle(DB_)
            k.label(lab)
        wload(n, DA_)
        if n == 3:
            operm(1)
            k.arrive(CNT)
        if n & 7 == 3 and n > 8:
            wperm((n >> 3) - 1)
    e(f"v_bfe_u32 v26, v{V_N}, 2, 1")
    e("v_lshlrev_b32 v25, 8, v26")
    e(f"v_lshl_add_u32 v25, v{V_J}, 4, v25")
    e("v_lshlrev_b32 v24, 3, v0")
    e(f"s_lshr_b32 s{S_P+1}, s3, 2")
    k.sexpr(S_TMP, [(S_P + 1, 0, None, 17), (3, 0, 3, 15), (2, 0, None, 7)])
    k.addr(S_C, S_WS, S_TMP, WS_OUTP)
    e(f"v_lshrrev_b32 v4, 1, v{V_N}")
    e("v_lshlrev_b32 v4, 12, v4")
    e(f"v_and_b32 v5, 1, v{V_N}")
    e("v_lshl_add_u32 v4, v5, 5, v4")
    e(f"v_and_b32 v5, 1, v{V_J}")
    e("v_lshl_add_u32 v4, v5, 6, v4")
    e(f"v_lshrrev_b32 v5, 1, v{V_J}")
    e("v_lshl_add_u32 v23, v5, 4, v4")
    e(f"s_mov_b32 s{S_D}, 0")
    e(f"s_mov_b32 s{S_D+1}, -1")
    k.sexpr(S_TMP, [(S_P + 1, 0, None, 17), (2, 0, None, 12)])
    k.addr(SF, S_WS, S_TMP, WS_OUTP)
    k.sexpr(S_TMP, [(S_P + 1, 0, None, 10), (2, 0, None, 5)])
    k.addr(SO, S_OUT, S_TMP)
    e("v_bfe_u32 v4, v0, 2, 1")
    e("v_lshlrev_b32 v4, 11, v4")
    e("v_and_b32 v5, 3, v0")
    e("v_lshl_add_u32 v27, v5, 3, v4")
    e("v_bfe_u32 v4, v0, 4, 1")
    e("v_lshl_add_u32 v27, v4, 2, v27")
    e("v_lshrrev_b32 v4, 5, v0")
    e("v_lshl_add_u32 v27, v4, 1, v27")
    if o.get("touch", 0) & 1:
        k.sexpr(S_TMP, [(3, 0, 3, 10)])
        e(f"v_add_u32 v4, s{S_TMP}, v31")
        k.ld4(12, 4, SF, 0, "sc1")
    wperm(3)
    k.stamp(4)
    X = R[4]
    PA = [R[6] + 8 * kg for kg in range(4)]
    PD = [R[5] + 16 + 4 * i for i in range(4)] + [R[6] + 4 + 8 * i for i in range(4)]

    def proj():
        for kg in range(4):
            for i in range(8):
                d = vr(PD[i], 4)
                e(f"v_mfma_f32_16x16x32_bf16 {d}, {vr(PA[kg],4)}, {vr(R[kg]+4*i,4)}, {'0' if kg == 0 else d}")

    def publish():
        for i in range(4):
            e(f"v_cndmask_b32 v{8+i}, v{PD[i]}, v{PD[4+i]}, {sr(S_D)}")
        k.tag4(8)
        k.vm(f"global_store_dwordx4 v23, v[8:11], {sr(S_C)} sc1")

    e("s_cmp_ge_u32 s3, 4")
    e("s_cbranch_scc1 L_tailB")
    base = k.vm_n
    e(f"s_lshl_b32 s{S_TMP}, s2, 9")
    k.addr(S_A, S_WS, S_TMP, WS_LSEA)
    k.sexpr(S_TMP, [(2, 0, None, 16), (3, 0, None, 8)])
    LB = [98, 100, sW, S_B]
    k.addr(LB[0], S_WS, S_TMP, WS_LATP)
    for i in range(1, 4):
        k.addr(LB[i], LB[0], None, (i >> 1) * 32768 + (i & 1) * 4096)
    sIss, sBlk = 92, 94
    top, done = k.newlabel("L_lat"), k.newlabel("L_latok")
    e(f"s_mov_b64 {sr(sIss)}, 0")
    e(f"v_lshlrev_b32 v21, 3, v{V_J}")
    e(f"s_mov_b32 s{S_SPIN}, {SPIN_MAX}")
    sN = 91
    k.cond += 1
    k.vm(f"global_load_dwordx2 v[8:9], v24, {sr(S_A)} sc1")
    e(f"s_mov_b32 s{sN}, 0")
    k.label(top)
    e(f"s_sub_u32 s{S_SPIN}, s{S_SPIN}, 1")
    e(f"s_cbranch_scc1 {done}")
    if o.get("dbg_sleep"):
        e(f"s_sleep {o['dbg_sleep']}")
    got = k.newlabel("L_lw")
    for n in (8, 4, 2, 1):
        e(f"s_waitcnt vmcnt({n})")
        e(f"s_cmp_ge_u32 s{sN}, {n}")
        e(f"s_cbranch_scc1 {got}")
    e("s_waitcnt vmcnt(0)")
    k.label(got)
    e(f"v_cmp_ne_u32 {sr(S_BAD)}, v9, v{V_T}")
    e("v_mov_b32 v12, v8")
    e(f"s_mov_b32 s{sN}, 0")
    k.vm(f"global_load_dwordx2 v[8:9], v24, {sr(S_A)} sc1")
    e(f"s_nor_b64 {sr(sBlk)}, {sr(S_BAD)}, {sr(sIss)}")
    e(f"s_cbranch_scc0 {top}")
    e(f"s_or_b64 {sr(sIss)}, {sr(sIss)}, {sr(sBlk)}")
    for b_ in range(2):
        skb = k.newlabel("L_lskb")
        e(f"s_cmp_eq_u32 s{sBlk+b_}, 0")
        e(f"s_cbranch_scc1 {skb}")
        e(f"v_lshrrev_b32 v10, v21, s{sBlk+b_}")
        for t in range(8):
            sk = k.newlabel("L_lsk")
            e(f"v_and_b32 v11, {1 << t}, v10")
            e(f"v_cmp_ne_u32 vcc, 0, v11")
            e(f"s_and_saveexec_b64 {sr(S_TMP)}, vcc")
            e(f"s_cbranch_execz {sk}")
            k.ld4(R[5] + 32 * b_ + 4 * t, 29, LB[2 * b_ + (t >> 2)], (t & 3) * 1024, ['sc1', 'sc1 nt', 'sc0 sc1 nt'][o.get('lat_ld', 1)])
            e(f"s_add_u32 s{sN}, s{sN}, 1")
            k.label(sk)
            k.exec_all()
        k.label(skb)
    e(f"s_cmp_lg_u64 {sr(sIss)}, -1")
    e(f"s_cbranch_scc1 {top}")
    k.cond -= 1
    k.label(done)
    k.stamp(5)
    if o.get("prio", 1):
        e("s_setprio 2")

    def red32(op, r, tmp):
        for sh in (8, 4, 2, 1):
            e(f"{op}_dpp v{r}, v{r}, v{r} row_ror:{sh} row_mask:0xf bank_mask:0xf")
        k.xrow(op, [r], [tmp], (16,))

    e("v_mov_b32 v10, v12")
    red32("v_max_f32", 10, 11)
    e("v_sub_f32 v12, v12, v10")
    e("v_exp_f32 v12, v12")
    e("v_lshrrev_b32 v4, 5, v0")
    e("v_mov_b32 v10, v12")
    red32("v_add_f32", 10, 11)
    e("v_rcp_f32 v10, v10")
    e("v_lshlrev_b32 v4, 7, v4")
    e("v_mul_f32 v12, v12, v10")
    e("v_cvt_pk_bf16_f32 v13, v12, v12")
    e("v_and_b32 v10, 0xffff0000, v13")
    e("v_sub_f32 v12, v12, v10")
    e("v_cvt_pk_bf16_f32 v10, v12, v12")
    e("v_and_b32 v5, 31, v0")
    e("v_lshl_add_u32 v4, v5, 1, v4")
    e(f"v_add_u32 v4, s{S_P}, v4")
    k.ds("ds_write_b16 v4, v13")
    k.ds("ds_write_b16 v4, v10 offset:64")
    e(f"v_and_b32 v4, 1, v{V_N}")
    e("v_lshlrev_b32 v4, 6, v4")
    e(f"v_lshl_add_u32 v4, v{V_J}, 4, v4")
    e(f"v_add_u32 v4, s{S_P}, v4")
    k.lgwait()
    k.ds(f"ds_read_b128 {vr(R[4]+24,4)}, v4")
    k.ds("ds_read_b128 v[12:15], v4 offset:128")
    e(f"v_lshlrev_b32 v4, 4, v{V_N}")
    e(f"v_add_u32 v4, s{S_P}, v4")
    e(f"v_add_u32 v5, s{S_P}, v25")
    k.await_cnt(CNT, 8)
    e("s_waitcnt vmcnt(0)")
    k.stamp(6)
    for i in range(4):
        e(f"v_mov_b32 v{8+i}, v{R[4]+24+i}")
    for b_ in range(2):
        for i in range(8):
            x = 16
            k.frag(x, R[5 + b_], i, 8)
            e(f"v_mfma_f32_16x16x32_bf16 {vr(X+4*i,4)}, {vr(8+4*b_,4)}, {vr(x,4)}, 0")
        for i in range(8):
            e(f"v_add_f32 v{X+4*i}, v{X+4*i}, v{X+4*i+1}")
        for i in range(4):
            e(f"v_cvt_pk_bf16_f32 v{R[5+b_]+i}, v{X+8*i}, v{X+8*i+4}")
        k.exec_set(0xffff, 0)
        k.ds(f"ds_write_b128 v4, {vr(R[5+b_],4)} offset:{256+b_*256}")
        k.exec_all()
    k.lgwait()
    AF = R[5]
    for kg in range(4):
        k.ds(f"ds_read_b128 {vr(AF+4*kg,4)}, v5 offset:{256+kg*64}")
    k.sexpr(S_TMP, [(3, 0, None, 10)], CS)
    e(f"v_lshlrev_b32 v4, 5, v{V_N}")
    e(f"v_lshl_add_u32 v4, v{V_J}, 9, v4")
    e(f"v_add_u32 v4, s{S_TMP}, v4")
    k.lgwait()
    for kg in range(4):
        for i in range(8):
            d = vr(X + 4 * i, 4)
            e(f"v_mfma_f32_16x16x32_bf16 {d}, {vr(AF+4*kg,4)}, {vr(R[kg]+4*i,4)}, {'0' if kg == 0 else d}")
    k.sexpr(S_TMP, [(3, 0, None, 15)], WOL)
    e(f"v_add_u32 v30, s{S_TMP}, v31")
    k.exec_set(0xffffffff, 0)
    for i in range(0, 8, 2):
        k.ds(f"ds_write2_b32 v4, v{X+4*i}, v{X+4*i+4} offset0:{i} offset1:{i+1}")
    k.arrive(CNT + 4)
    for f in range(32):
        k.ds(f"ds_read_b128 {vr(R[0]+4*f,4)}, v30 offset:{f*1024}")
    e(f"v_add_u32 v4, {CS}, v31")
    k.stamp(12)
    k.await_cnt(CNT + 4, 4)
    k.stamp(11)
    for w in range(4):
        k.ds(f"ds_read_b128 {vr(X+4*w,4)}, v4 offset:{w*1024}")
    e(f"v_add_u32 v4, s{S_P}, v24")
    k.lgwait()
    k.tree_add4(X, 4)
    e(f"v_cvt_pk_bf16_f32 v8, v{X}, v{X+1}")
    e(f"v_cvt_pk_bf16_f32 v9, v{X+2}, v{X+3}")
    k.ds("ds_write_b64 v4, v[8:9]")
    k.lgwait()
    for kg in range(4):
        k.ds(f"ds_read_b128 {vr(PA[kg],4)}, v5 offset:{kg*64}")
    k.lgwait()
    proj()
    e("s_branch L_proj")
    k.label("L_tailB")
    k.vm_n = base
    Y = R[4]

    def issue_o(i):
        for c in range(4):
            k.ld4(Y + 16 * i + 4 * c, 21 - (c >> 1), S_B, (c & 1) * 512, "sc1")

    def check_o(i):
        k.chkn([Y + 16 * i + 4 * c for c in range(4)], 6, 7)

    def comb(i):
        k.lgwait()
        for r in range(4):
            e(f"v_mul_f32 v{8+r}, v12, v{Y+16*i+r}")
        for c in range(1, 4):
            for r in range(4):
                e(f"v_fmac_f32 v{8+r}, v{12+c}, v{Y+16*i+4*c+r}")

    e(f"s_lshl_b32 s{S_TMP}, s2, 9")
    k.addr(S_A, S_WS, S_TMP, WS_LSEB)
    e("v_lshrrev_b32 v4, 5, v0")
    e("v_lshlrev_b32 v5, 8, v4")
    e(f"v_min_u32 v6, {NCB-1}, v{V_N}")
    e("v_lshl_add_u32 v22, v6, 4, v5")
    e(f"v_cmp_gt_u32 {sr(98)}, {NCB}, v{V_N}")
    e(f"s_mul_i32 s{S_TMP}, s2, {2*NCB*512}")
    k.sexpr(S_P + 2, [(3, 0, 3, 11)])
    e(f"s_add_u32 s{S_TMP}, s{S_TMP}, s{S_P+2}")
    k.addr(S_B, S_WS, S_TMP, WS_OP)
    e(f"v_mul_u32_u24 v4, {NCB*512}, v4")
    e("v_and_b32 v5, 31, v0")
    e("v_lshl_add_u32 v21, v5, 4, v4")
    e("s_cmp_eq_u32 s3, 7")
    e(f"s_cselect_b32 s{S_TMP}, 0, 0x400")
    e(f"v_add_u32 v20, s{S_TMP}, v21")
    k.sexpr(S_TMP, [(3, 0, 3, 10)], WSC + 768)
    e(f"v_lshlrev_b32 v4, 2, v0")
    e(f"v_add_u32 v19, s{S_TMP}, v4")
    e("v_lshrrev_b32 v4, 5, v0")
    e("v_lshlrev_b32 v4, 7, v4")
    k.sexpr(S_P + 2, [(3, 0, 3, 4), (S_TMP, 0, None, 0)])
    e(f"v_add_u32 v18, s{S_P+2}, v4")
    k.sexpr(S_TMP, [(3, 0, 3, 9)], OB)
    e(f"v_add_u32 v17, s{S_TMP}, v24")
    e(f"v_and_b32 v4, 3, v{V_N}")
    e("v_lshl_add_u32 v4, v4, 9, v25")
    e(f"v_add_u32 v16, {OB}, v4")
    if o.get("touch", 0) & 2:
        issue_o(0)
    k.poll_pipe(o.get("np_l", 2), 1, lambda i: k.ld4(Y + 48 + 4 * i, 22, S_A, 0, "sc1"), lambda i: k.chk_full(Y + 48 + 4 * i, 6, 7),
                lambda i: e(f"v_mov_b32 v8, v{Y+48+4*i}"))
    e("v_mov_b32 v9, 0xff800000")
    e(f"v_cndmask_b32 v8, v9, v8, {sr(98)}")
    e("v_mov_b32 v10, v8")
    for sh in (8, 4, 2, 1):
        e(f"v_max_f32_dpp v10, v10, v10 row_ror:{sh} row_mask:0xf bank_mask:0xf")
    e("v_sub_f32 v8, v8, v10")
    e("v_exp_f32 v8, v8")
    e("v_mov_b32 v10, v8")
    for sh in (8, 4, 2, 1):
        e(f"v_add_f32_dpp v10, v10, v10 row_ror:{sh} row_mask:0xf bank_mask:0xf")
    e("v_rcp_f32 v10, v10")
    e("v_mul_f32 v8, v8, v10")
    k.ds("ds_write_b32 v19, v8")
    k.lgwait()
    k.ds("ds_read_b128 v[12:15], v18")
    k.stamp(7)

    k.poll_pipe(o.get("np_o", 2), 4, issue_o, check_o, comb)
    k.stamp(8)
    e("v_cvt_pk_bf16_f32 v8, v8, v9")
    e("v_cvt_pk_bf16_f32 v9, v10, v11")
    k.ds("ds_write_b64 v17, v[8:9]")
    k.arrive(CNT + 8)
    k.await_cnt(CNT + 8, 4)
    k.stamp(11)
    if o.get("prio", 1):
        e("s_setprio 3")
    for kg in range(4):
        k.ds(f"ds_read_b128 {vr(PA[kg],4)}, v16 offset:{kg*64}")
    k.lgwait()

    def rowsum(i):
        e(f"v_add_f32 v{PD[i]}, v{PD[i]}, v{PD[i]+1}")
        e(f"v_add_f32 v{PD[i]+2}, v{PD[i]+2}, v{PD[i]+3}")
        e(f"v_add_f32 v{PD[i]}, v{PD[i]}, v{PD[i]+2}")

    for i in range(8):
        for kg in range(4):
            d = vr(PD[i], 4)
            e(f"v_mfma_f32_16x16x32_bf16 {d}, {vr(PA[kg],4)}, {vr(R[kg]+4*i,4)}, {'0' if kg == 0 else d}")
            if i >= 2 and kg == 1:
                rowsum(i - 2)
    rowsum(6)
    rowsum(7)
    k.label("L_proj")
    publish()
    k.stamp(9)
    e("s_and_b32 s62, s3, 3")
    e("s_cbranch_scc1 L_fin")
    F = R[0]

    def issue(i):
        for q in range(4):
            k.ld4(F + 16 * i + 4 * q, 31, SF, q * 1024, "sc1")

    def check(i):
        k.chkn([F + 16 * i + 4 * q for q in range(4)], 6, 7)

    def fin(i):
        for r in range(8):
            e(f"v_add_f32 v{12+r}, v{F+16*i+r}, v{F+16*i+8+r}")

    lab, lab2 = k.newlabel("L_fa"), k.newlabel("L_fb")
    e("s_cmp_eq_u32 s3, 0")
    e(f"s_cbranch_scc1 {lab}")
    k.poll_pipe(o.get("np_f", 2), 4, issue, check, fin)
    e(f"s_branch {lab2}")
    k.label(lab)
    k.poll_pipe(1, 4, issue, check, fin)
    k.label(lab2)
    k.stamp(10)
    k.tree_add4(12, 2)
    e("v_permlane32_swap_b32 v12, v13")
    e("v_permlane32_swap_b32 v14, v15")
    e("v_add_f32 v12, v12, v13")
    e("v_add_f32 v14, v14, v15")
    e("v_permlane16_swap_b32 v12, v14")
    e("v_add_f32 v12, v12, v14")
    e("v_add_f32_dpp v12, v12, v12 row_ror:8 row_mask:0xf bank_mask:0xf")
    e("v_cvt_pk_bf16_f32 v12, v12, v12")
    k.exec_set(0x00ff00ff, 0x00ff00ff)
    k.vm(f"global_store_short v27, v12, {sr(SO)}")
    e(f"s_or_b32 s{S_TMP}, s2, s3")
    e(f"s_cmp_lg_u32 s{S_TMP}, 0")
    e("s_cbranch_scc1 L_fin")
    k.exec_set(1, 0)
    e("v_mov_b32 v4, 0")
    k.vm(f"global_store_dword v4, v{V_T}, {sr(S_WS)}")
    e("s_branch L_fin")


def finish(k):
    e = k.e
    k.label("L_fin")
    if k.o.get("stamps"):
        k.exec_all()
        k.stamp(15)
        e(f"s_memtime {sr(S_STAMP + 28)}")
        k.sexpr(S_TMP, [(2, 0, None, 10), (3, 0, None, 7)])
        e(f"s_load_dwordx2 {sr(S_WS)}, s[0:1], 104")
        e("s_waitcnt lgkmcnt(0)")
        k.addr(S_A, S_WS, S_TMP, WS_STAMP)
        e("s_waitcnt lgkmcnt(0)")
        e("v_mov_b32 v4, 0")
        k.exec_set(1, 0)
        for i in range(8):
            for q in range(4):
                e(f"v_mov_b32 v{8+q}, s{S_STAMP+4*i+q}")
            e(f"global_store_dwordx4 v4, v[8:11], {sr(S_A)} offset:{i*16}")
    k.label("L_end")
    e("s_endpgm")


def tile_table(o):
    late, par, b2 = o.get("adj_late", 0), o.get("adj_par", 0), o.get("adj_b2", -2 if o.get("t_one", 0) else 0)
    tot = 512 - 32 * o.get("a_t", 1)
    kind = lambda i: (i >= 128, (i & 7) >= 4, (i >> 3) & 1 if i < 128 else 0)
    members = [[] for _ in range(16)]
    seen = {}
    for i in range(NB):
        n = seen.get(kind(i), 0)
        seen[kind(i)] = n + 1
        members[n % 16].append(i)
    out = [0] * NB
    for p, m in enumerate(members):
        assert len(m) == 10
        w = []
        for i in m:
            isb2, isl, odd = kind(i)
            a = -late if isl else late
            if isl and not isb2:
                a += par if odd else -par
            w.append(tot / 10 + a + (b2 if isb2 else -b2 / 4))
        n = [int(v // 1) for v in w]
        for j in sorted(range(10), key=lambda j: n[j] - w[j])[:tot - sum(n)]:
            n[j] += 1
        assert sum(n) == tot
        st = 0
        for ch, (i, v) in enumerate(zip(m, n)):
            assert 40 <= v <= 56
            out[i] = st | min(v - 40, 8) << 16 | max(v - 48, 0) << 20 | p << 24 | ch << 28
            st += v
    return out


def generate(**opt):
    k = K(opt)
    head = [l.rstrip("\n") for l in open(REF) if l.startswith(";") and "@launch" not in l and "Override" not in l and "grid=ceil" not in l]
    L = k.L
    L += head
    L.append("; @launch grid=(256,1,1) block=(512,1,1) lds=163840")
    L.append('.amdgcn_target "amdgcn-amd-amdhsa--gfx950"')
    L += [".text", f".globl {NAME}_kernel", ".p2align 8", f".type {NAME}_kernel,@function", f"{NAME}_kernel:"]
    if opt.get("stamps"):
        for r in range(S_STAMP, S_STAMP + 32):
            k.e(f"s_mov_b32 s{r}, 0")
    k.prologue()
    k.e(f"s_cmp_ge_u32 s2, {NT+NA}")
    k.e("s_cbranch_scc1 L_roleB")
    k.e(f"s_cmp_ge_u32 s2, {NT}")
    k.e("s_cbranch_scc1 L_roleA")
    base = k.vm_n
    role_T(k)
    k.vm_n = base
    k.remap = {}
    role_A(k)
    k.vm_n = base
    role_B(k)
    finish(k)
    L.append(".p2align 2")
    L.append(".type L_tiles,@object")
    L.append("L_tiles:")
    L += [f".long {w:#x}" for w in tile_table(opt)]
    L += ['.section .rodata,"a"', ".p2align 6", f".amdhsa_kernel {NAME}_kernel",
          "  .amdhsa_next_free_vgpr 256", "  .amdhsa_next_free_sgpr 102", "  .amdhsa_accum_offset 256",
          "  .amdhsa_group_segment_fixed_size 0", "  .amdhsa_kernarg_size 112", "  .amdhsa_user_sgpr_count 2",
          "  .amdhsa_user_sgpr_kernarg_segment_ptr 1", "  .amdhsa_system_sgpr_workgroup_id_x 1", ".end_amdhsa_kernel"]
    return k.text()


if __name__ == "__main__":
    opt = {}
    for a in sys.argv[2:]:
        kk, v = a.split("=")
        opt[kk] = int(v)
    open(sys.argv[1], "w").write(generate(**opt))
```

```python
import sys, struct
from asmlib import Gen, vr, sr

NAME = "concat_heads__compressed_kv_cla__gqa_block_cached__decode"
REF = "cdna_kernels/" + NAME + ".s.ref"

NT, NA, NB = 32, 64, 160
WOL, TBW, OB, CNTB = 32768, 26624, 27648, 29696
NCB = 16
WS_QP = 0x010000
WS_QA = 0x060000
WS_LSEA = 0x090000
WS_GO = 0x098000
WS_XID = 0x09C000
WS_LSEB = 0x0A0000
WS_OP = 0x0B0000
WS_OUTP = 0x140000
WS_LATP = 0x200000
WS_STAMP = 128 << 20
SCALE = (128 ** -0.5) * 1.4426950408889634

ABOUT = """;
; Hand-offs between workgroups go through d_ws; every piece carries this launch's tag (previous tag + 0x01010101,
;"""


def f2u(x):
    return struct.unpack("<I", struct.pack("<f", x))[0]


S_AX, S_CKV, S_WQA, S_WUK, S_WUV, S_WOA, S_BX, S_K, S_V, S_WQB, S_WOB, S_OUT, S_DBG, S_WS = range(4, 32, 2)
S_E, S_T = 32, 33
S_SEL = 34
S_LO, S_HI = 38, 39
S_A, S_B, S_C, S_D = 40, 42, 44, 46
S_X0, S_X1, S_X2 = 48, 49, 50
S_SC = 51
S_SPIN = 52
S_P = 53
S_BAD = 60
S_TMP = 62
S_STAMP = 64
S_EVEN = 96
S_SL = 100
S_LOC = 90
V_L, V_N, V_J, V_T = 0, 1, 2, 3
SPIN_MAX = 1 << 18
PUBW = 7


class K(Gen):
    def __init__(self, opt):
        super().__init__()
        self.o = opt
        self.remap = {}
        self.role7 = False

    def stamp(self, k):
        if self.o.get("stamps"):
            self.e(f"s_memrealtime {sr(S_STAMP + 2 * self.remap.get(k, k))}")

    def addr(self, dst, base, off_s=None, off_i=0):
        if off_s is not None:
            self.e(f"s_add_u32 s{dst}, s{base}, s{off_s}")
            self.e(f"s_addc_u32 s{dst+1}, s{base+1}, 0")
            base = dst
        if off_i or off_s is None:
            self.e(f"s_add_u32 s{dst}, s{base}, {off_i}")
            self.e(f"s_addc_u32 s{dst+1}, s{base+1}, 0")

    def adv(self, a, n):
        self.e(f"s_add_u32 s{a}, s{a}, {n}")
        self.e(f"s_addc_u32 s{a+1}, s{a+1}, 0")

    def sexpr(self, dst, terms, const=0):
        first = True
        for reg, shr, mask, shl in terms:
            t = dst if first else S_TMP + 1
            src = reg
            if shr:
                self.e(f"s_lshr_b32 s{t}, s{src}, {shr}"); src = t
            if mask is not None:
                self.e(f"s_and_b32 s{t}, s{src}, {mask}"); src = t
            if shl or src != t:
                self.e(f"s_lshl_b32 s{t}, s{src}, {shl}")
            if not first:
                self.e(f"s_add_u32 s{dst}, s{dst}, s{t}")
            first = False
        if const:
            self.e(f"s_add_u32 s{dst}, s{dst}, {const}")

    def ld4(self, dst, voff, sbase, off=0, fl="nt"):
        return self.vm(f"global_load_dwordx4 {vr(dst,4)}, v{voff}, {sr(sbase)} offset:{off} {fl}")

    def throttle(self, d):
        if d:
            self.e(f"s_waitcnt vmcnt({d-1})")

    def tag4(self, r):
        for k in range(4):
            self.e(f"v_perm_b32 v{r+k}, v{r+k}, v{V_T}, s{S_SEL+k}")

    def untag(self, r, n=4):
        for i in range(n):
            self.e(f"v_and_b32 v{r+i}, s{S_X2}, v{r+i}")

    def chkn(self, regs, acc, tmp):
        if self.o.get("nodep"):
            self.e(f"s_mov_b64 {sr(S_BAD)}, 0")
            return
        for i, r in enumerate(regs):
            self.e(f"v_perm_b32 v{tmp}, v{r+3}, v{r}, s{S_X0}")
            if len(regs) == 1:
                self.e(f"v_cmp_ne_u32 {sr(S_BAD)}, s{S_X1}, v{tmp}")
                return
            if i == 0:
                self.e(f"v_xor_b32 v{acc}, s{S_X1}, v{tmp}")
            else:
                self.e(f"v_xad_u32 v{acc}, v{tmp}, s{S_X1}, v{acc}")
        self.e(f"v_cmp_ne_u32 {sr(S_BAD)}, 0, v{acc}")

    def chk4(self, r, tmp, first):
        self.chkn([r], tmp, tmp)

    def chk_full(self, r, a, b):
        if self.o.get("nodep"):
            self.e(f"s_mov_b64 {sr(S_BAD)}, 0")
            return
        self.e(f"v_perm_b32 v{a}, v{r+1}, v{r}, s{S_X0}")
        self.e(f"v_perm_b32 v{b}, v{r+3}, v{r+2}, s{S_X0}")
        self.e(f"v_lshl_or_b32 v{a}, v{b}, 16, v{a}")
        self.e(f"v_cmp_ne_u32 {sr(S_BAD)}, v{a}, v{V_T}")

    def poll(self, issue, check, pre_issued=None, light=None):
        top, done = self.newlabel("L_poll"), self.newlabel("L_got")
        self.e(f"s_mov_b32 s{S_SPIN}, {SPIN_MAX}")
        if pre_issued is not None:
            self.vmwait(pre_issued)
            check()
            self.e(f"s_cmp_eq_u64 {sr(S_BAD)}, 0")
            self.e(f"s_cbranch_scc1 {done}")
        self.label(top)
        self.cond += 1
        self.e(f"s_sub_u32 s{S_SPIN}, s{S_SPIN}, 1")
        self.e(f"s_cbranch_scc1 {done}")
        if light:
            light[0]()
            self.e("s_waitcnt vmcnt(0)")
            light[1]()
            self.e(f"s_cmp_eq_u64 {sr(S_BAD)}, 0")
            self.e(f"s_cbranch_scc0 {top}")
        issue()
        self.e("s_waitcnt vmcnt(0)")
        check()
        self.cond -= 1
        self.e(f"s_cmp_eq_u64 {sr(S_BAD)}, 0")
        self.e(f"s_cbranch_scc0 {top}")
        self.label(done)

    def poll_pipe(self, nset, nld, issue, check, finish):
        top, done = self.newlabel("L_pp"), self.newlabel("L_ppok")
        oks = [self.newlabel("L_ppv") for _ in range(nset)]
        self.cond += 1
        self.e(f"s_mov_b32 s{S_SPIN}, {SPIN_MAX}")
        for i in range(nset - 1):
            issue(i)
        self.label(top)
        if self.o.get("dbg_sleep2") and nld == 1:
            self.e(f"s_sleep {self.o['dbg_sleep2']}")
        for i in range(nset):
            issue((i + nset - 1) % nset)
            self.e(f"s_waitcnt vmcnt({nld * (nset - 1)})")
            check(i)
            self.e(f"s_cmp_eq_u64 {sr(S_BAD)}, 0")
            self.e(f"s_cbranch_scc1 {oks[i]}")
        self.e(f"s_sub_u32 s{S_SPIN}, s{S_SPIN}, 1")
        self.e(f"s_cbranch_scc0 {top}")
        for i in reversed(range(nset)):
            self.label(oks[i])
            finish(i)
            if i:
                self.e(f"s_branch {done}")
        self.label(done)
        self.cond -= 1

    def when(self, cmp, fn):
        lab = self.newlabel("L_skip")
        self.e(cmp)
        self.e(f"s_cbranch_scc0 {lab}")
        self.cond += 1
        fn()
        self.cond -= 1
        self.label(lab)

    def arrive(self, cnt):
        self.e("v_mov_b32 v6, 1")
        self.e(f"v_mov_b32 v7, {cnt}")
        self.exec_set(1, 0)
        self.ds("ds_add_u32 v7, v6")
        self.exec_all()

    def await_cnt(self, cnt, n):
        top, done = self.newlabel("L_cnt"), self.newlabel("L_cntok")
        e = self.e
        e(f"v_mov_b32 v7, {cnt}")
        e(f"s_mov_b32 s{S_SPIN}, {SPIN_MAX*16}")
        self.label(top)
        if self.o.get("dbg_sleep3"):
            e(f"s_sleep {self.o['dbg_sleep3']}")
        e("ds_read_b32 v6, v7")
        e(f"s_sub_u32 s{S_SPIN}, s{S_SPIN}, 1")
        e(f"s_cbranch_scc1 {done}")
        e("s_waitcnt lgkmcnt(0)")
        e(f"v_readfirstlane_b32 s{S_TMP}, v6")
        e(f"s_cmp_lt_u32 s{S_TMP}, {n}")
        e(f"s_cbranch_scc1 {top}")
        self.label(done)

    def xrow(self, op, regs, tmps, which=(16, 32)):
        for w in which:
            for r, t in zip(regs, tmps):
                self.e(f"v_mov_b32 v{t}, v{r}")
            for r, t in zip(regs, tmps):
                self.e(f"v_permlane{w}_swap_b32 v{t}, v{r}")
            for r, t in zip(regs, tmps):
                self.e(f"{op} v{r}, v{r}, v{t}")

    def frag(self, dst, raw, i, nld):
        for p in range(nld // 2):
            self.e(f"v_perm_b32 v{dst+p}, v{raw + 4*(2*p+1) + (i >> 1)}, v{raw + 4*(2*p) + (i >> 1)}, s{S_HI if i & 1 else S_LO}")

    def swap_pairs(self, pairs):
        dpp = "quad_perm:[1,0,3,2] row_mask:0xf bank_mask:0xf"
        self.e(f"s_mov_b64 vcc, {sr(S_EVEN)}")
        for d, a, b in pairs:
            for k in range(4):
                self.e(f"v_cndmask_b32_dpp v{d+k}, v{b+k}, v{a+k}, vcc {dpp}")
                self.e(f"v_xor_b32 v{a+k}, v{a+k}, v{d+k}")
            for k in range(4):
                self.e(f"v_xor_b32_dpp v{b+k}, v{a+k}, v{b+k} {dpp}")

    def tree_add4(self, r, n):
        st = n // 2
        while st:
            for w in range(st):
                for k in range(4):
                    self.e(f"v_add_f32 v{r+4*w+k}, v{r+4*w+k}, v{r+4*(w+st)+k}")
            st //= 2

    def chain(self, op3, op2, dst, regs):
        regs = list(regs)
        if len(regs) >= 3 and op3:
            self.e(f"{op3} v{dst}, v{regs[0]}, v{regs[1]}, v{regs[2]}")
            rest = regs[3:]
            while len(rest) >= 2:
                self.e(f"{op3} v{dst}, v{dst}, v{rest[0]}, v{rest[1]}")
                rest = rest[2:]
        else:
            self.e(f"{op2} v{dst}, v{regs[0]}, v{regs[1]}")
            rest = regs[2:]
        for r in rest:
            self.e(f"{op2} v{dst}, v{dst}, v{r}")

    def exec_set(self, lo, hi):
        self.e(f"s_mov_b32 exec_lo, {lo:#x}")
        self.e(f"s_mov_b32 exec_hi, {hi:#x}")

    def exec_all(self):
        self.e("s_mov_b64 exec, -1")

    def prologue(self):
        e = self.e
        e("s_cmp_ge_u32 s2, 256")
        e("s_cbranch_scc1 L_end")
        self.stamp(0)
        if self.o.get("stamps"):
            pass
        e("s_load_dwordx16 s[4:19], s[0:1], 0")
        e("s_load_dwordx8 s[20:27], s[0:1], 64")
        e("s_load_dwordx4 s[28:31], s[0:1], 96")
        e("v_lshrrev_b32 v4, 6, v0")
        e("v_and_b32 v0, 63, v0")
        e("v_readfirstlane_b32 s3, v4")
        e(f"v_and_b32 v{V_N}, 15, v0")
        e(f"v_lshrrev_b32 v{V_J}, 4, v0")

    def consts(self):
        e = self.e
        if self.o.get("wsoff"):
            self.adv(S_WS, self.o["wsoff"] << 20)
        e(f"s_load_dword s{S_E}, {sr(S_WS)}, 0")
        if self.o.get("cpf"):
            def pf():
                lab = self.newlabel("L_cp")
                e(f"s_getpc_b64 {sr(S_BAD)}")
                self.label(lab)
                e(f"s_sub_u32 s{S_BAD}, s{S_BAD}, {lab}-{NAME}_kernel")
                e(f"s_subb_u32 s{S_BAD+1}, s{S_BAD+1}, 0")
                self.sexpr(S_TMP, [(2, 3, None, 11)])
                e(f"s_min_u32 s{S_TMP}, s{S_TMP}, L_tiles-{NAME}_kernel-2048")
                self.addr(S_BAD, S_BAD, S_TMP)
                e("v_lshlrev_b32 v247, 5, v0")
                self.vm(f"global_load_dword v246, v247, {sr(S_BAD)}")
            self.when("s_cmp_eq_u32 s3, 1", pf)
        for k in range(4):
            e(f"s_mov_b32 s{S_SEL+k}, {0x07060500 + k:#x}")
        e(f"s_mov_b32 s{S_LO}, 0x05040100")
        e(f"s_mov_b32 s{S_HI}, 0x07060302")
        e(f"s_mov_b32 s{S_X0}, 0x0c0c0400")
        e(f"s_mov_b32 s{S_SC}, {f2u(SCALE):#x}")
        e(f"s_mov_b32 s{S_EVEN}, 0x55555555")
        e(f"s_mov_b32 s{S_EVEN+1}, 0x55555555")
        self.xid_publish(246)
        if self.o.get("stamps"):
            e(f"s_lshl_b32 s{S_DBG}, s2, 3")
            e(f"s_add_u32 s{S_DBG}, s{S_DBG}, s3")

    def bitmasks(self, r):
        e = self.e
        e("v_and_b32 v4, 3, v0")
        e("v_lshlrev_b32 v4, 3, v4")
        e(f"v_lshrrev_b32 v4, v4, v{V_T}")
        for q in range(4):
            e(f"v_bfe_u32 v5, v4, {2*q+1}, 1")
            e(f"v_bfe_u32 v{r+q}, v4, {2*q}, 1")
            e(f"v_lshl_or_b32 v{r+q}, v5, 16, v{r+q}")

    def xword(self, dst, tag):
        self.e(f"s_getreg_b32 s{S_TMP}, hwreg(HW_REG_XCC_ID)")
        self.e(f"s_and_b32 s{S_TMP}, s{S_TMP}, 15")
        self.e(f"s_and_b32 s{dst}, s{tag}, -16")
        self.e(f"s_or_b32 s{dst}, s{dst}, s{S_TMP}")

    def xid_publish(self, r):
        def go():
            e = self.e
            self.sexpr(S_TMP, [(2, 0, 7, 7), (2, 3, None, 2)])
            self.addr(S_BAD, S_WS, S_TMP, WS_XID)
            e("s_waitcnt lgkmcnt(0)")
            e(f"s_add_u32 s{S_LOC}, s{S_E}, 0x01010101")
            self.xword(S_LOC, S_LOC)
            e(f"v_mov_b32 v{r}, 0")
            e(f"v_mov_b32 v{r+1}, s{S_LOC}")
            self.exec_set(1, 0)
            self.vm(f"global_store_dword v{r}, v{r+1}, {sr(S_BAD)}" + (" sc1" if self.o.get("xsc", 0) else ""))
            self.exec_all()
        if self.o.get("xid", 1):
            self.when(f"s_cmp_eq_u32 s3, {self.o.get('xw', 1)}", go)
        self.e(f"s_mov_b32 s{S_LOC}, {self.o.get('force', 0)}")

    def xid_load(self, r, sG):
        self.sexpr(S_TMP, [(sG, 0, 7, 7)])
        self.addr(S_BAD, S_WS, S_TMP, WS_XID)
        self.e(f"v_and_b32 v{r}, 31, v0")
        self.e(f"v_lshlrev_b32 v{r}, 2, v{r}")
        return self.vm(f"global_load_dword v{r}, v{r}, {sr(S_BAD)} sc1")

    def xid_eval(self, r):
        if not self.o.get("loc", 1) or not self.o.get("xid", 1):
            return
        self.e(f"v_cmp_ne_u32 {sr(S_BAD)}, s{S_T}, v{r}")
        self.e(f"s_cmp_eq_u64 {sr(S_BAD)}, 0")
        self.e(f"s_cselect_b32 s{S_LOC}, 1, 0")

    def st_group(self, t):
        l1, l2 = self.newlabel("L_sl"), self.newlabel("L_sd")
        self.e(f"s_cmp_lg_u32 s{S_LOC}, 0")
        self.e(f"s_cbranch_scc1 {l1}")
        tok = self.vm(t + " sc1")
        self.e(f"s_branch {l2}")
        self.label(l1)
        self.e(t)
        self.label(l2)
        return tok

    def settag(self):
        self.e(f"s_add_u32 s{S_T}, s{S_E}, 0x01010101")
        self.e(f"v_mov_b32 v{V_T}, s{S_T}")
        self.e(f"s_lshr_b32 s{S_X1}, s{S_T}, 16")
        self.e(f"s_and_b32 s{S_X1}, s{S_X1}, 0xff00")
        self.e(f"s_and_b32 s{S_X2}, s{S_T}, 0xff")
        self.e(f"s_or_b32 s{S_X1}, s{S_X1}, s{S_X2}")
        self.e(f"s_mov_b32 s{S_X2}, 0xffffff00")
        self.xword(S_T, S_T)

    def p1_issue(self, sSl, sW, sX, xr, wr, first=True):
        e = self.e
        if first:
            e(f"v_lshlrev_b32 v4, 15, v{V_J}")
            e(f"v_lshl_add_u32 v4, v{V_N}, 4, v4")
            e(f"v_bfe_u32 v5, v{V_N}, 2, 1")
            e("v_lshlrev_b32 v5, 10, v5")
            e(f"v_lshl_add_u32 v5, v{V_J}, 3, v5")
        self.sexpr(S_TMP, [(sSl, 0, 3, 7), (3, 0, None, 4)])
        self.sexpr(S_A, [(S_TMP, 0, None, 13), (sSl, 2, 31, 8)])
        e(f"s_lshl_b32 s{S_TMP}, s{S_TMP}, 1")
        if first:
            e("s_waitcnt lgkmcnt(0)")
        sW(); sX()
        self.vm(f"global_load_dwordx2 {vr(xr, 2)}, v5, {sr(S_B)}")
        for t in range(4):
            tok = self.ld4(wr + 4 * t, 4, S_A)
            if t < 3:
                self.adv(S_A, 8192)
        if first:
            e("s_barrier")
        return tok

    def p1_plain(self, sSl, W, X, xr, wr, first=True):
        def sW():
            self.e(f"s_add_u32 s{S_A}, s{W}, s{S_A}")
            self.e(f"s_addc_u32 s{S_A+1}, s{W+1}, 0")
        return self.p1_issue(sSl, sW, lambda: self.addr(S_B, X, S_TMP), xr, wr, first)

    def p1_compute(self, sSl, tok, xr, wr, d0, X, lds=0, first=True):
        e = self.e
        e(f"v_lshlrev_b32 v4, 5, v{V_N}")
        e(f"v_lshl_add_u32 v4, v{V_J}, 9, v4")
        self.sexpr(S_TMP, [(3, 0, None, 10)], lds)
        e(f"v_add_u32 v4, s{S_TMP}, v4")
        if first and self.o.get("xid", 1) and self.o.get("xp1", 1):
            self.sexpr(S_LOC, [(sSl, 4, None, 0)])
            self.when(f"s_cmp_eq_u32 s3, {PUBW}", lambda: self.xid_load(245, S_LOC))
            e(f"s_mov_b32 s{S_LOC}, 0")
        self.vmwait(tok)
        for i in range(8):
            t = X + 2 * (i & 3)
            self.frag(t, wr, i, 4)
            e(f"v_mfma_f32_16x16x16_bf16 {vr(d0+4*i,4)}, {vr(xr,2)}, {vr(t,2)}, 0")
        self.exec_set(0xffffffff, 0)
        for i in range(0, 8, 2):
            self.ds(f"ds_write2_b32 v4, v{d0+4*i}, v{d0+4*i+4} offset0:{i} offset1:{i+1}")
        self.exec_all()
        e("s_waitcnt lgkmcnt(0)")
        if first:
            self.settag()
        e("s_barrier")

        def pub():
            e("v_lshlrev_b32 v4, 4, v0")
            for w in range(8):
                self.ds(f"ds_read_b128 {vr(d0+4*w,4)}, v4 offset:{lds+w*1024}")
            e(f"s_lshl_b32 s{S_TMP}, s{sSl}, 10")
            self.addr(S_B, S_WS, S_TMP, WS_QP)
            e("s_waitcnt lgkmcnt(0)")
            self.tree_add4(d0, 8)
            self.tag4(d0)
            if first and self.o.get("xid", 1) and self.o.get("xp1", 1):
                e("s_waitcnt vmcnt(0)")
                self.xid_eval(245)
            self.st_group(f"global_store_dwordx4 v4, {vr(d0,4)}, {sr(S_B)}")

        self.when(f"s_cmp_eq_u32 s3, {PUBW}", pub)
        if first:
            self.stamp(1)

    def p1_multi(self, offs, pre, d0, lds):
        e = self.e
        sl, raw, tok = [S_SL, S_SL + 1], [16, 32], []
        self.sexpr(S_SL + 1, [(2, 0, 7, 4), (2, 3, 3, 0)])
        e(f"s_add_u32 s{S_SL}, s{S_SL+1}, {offs[0]}")
        e(f"s_add_u32 s{S_SL+1}, s{S_SL+1}, {offs[1]}")
        for i in range(2):
            tok.append(self.p1_plain(sl[i], S_WQB if i else S_WQA, S_BX if i else S_AX, 8 + 2 * i, raw[i], first=not i))
        self.consts()
        self.sexpr(S_TMP, [(2, 0, 7, 2), (2, 3, 3, 0)])
        e(f"s_mov_b32 s2, s{S_TMP}")
        pre()
        for i in range(2):
            self.p1_compute(sl[i], tok[i], 8 + 2 * i, raw[i], d0, 48, lds[i], first=not i)


class Chunk:
    QS, ST, OS = 8192, 9216, 10240

    def __init__(self, k, nb, extra, KR, VR, QF, SR, ACC, X, VA, CNT, sK, sV, sQ, QG=8, w0=0, lds=None, XR=12):
        self.k, self.nb, self.extra, self.QG, self.w0 = k, nb, extra, QG, w0
        self.XR = XR
        if lds:
            self.QS, self.ST, self.OS = lds
        self.KR, self.VR, self.QF, self.SR, self.ACC, self.X = KR, VR, QF, SR, ACC, X
        self.vK, self.vV, self.vQ, self.vF = VA, VA + 1, VA + 2, VA + 3
        self.CNT, self.sK, self.sV, self.sQ = CNT, sK, sV, sQ
        self.sPair, self.sChunk, self.sTile, self.sNx = S_P, S_P + 1, S_P + 2, [S_P + 3, S_P + 5]
        self.ktok, self.vtok = {}, {}

    def ifx(self, i, fn):
        self.k.when(f"s_cmp_lt_u32 s3, s{self.sNx[i]}", fn)

    def setup(self):
        k = self.k; e = k.e
        k.sexpr(S_TMP, [(self.sPair, 0, None, 21), (self.sTile, 0, None, 12)])
        k.addr(self.sK, S_K, S_TMP)
        k.addr(self.sV, S_V, S_TMP)
        a, b = self.vQ, self.vF
        e(f"v_bfe_u32 v{a}, v0, 1, 1")
        e(f"v_lshlrev_b32 v{a}, 11, v{a}")
        e(f"v_bfe_u32 v{b}, v0, 2, 2")
        e(f"v_lshl_add_u32 v{a}, v{b}, 8, v{a}")
        e(f"v_lshl_add_u32 v{a}, v{V_J}, 5, v{a}")
        e(f"v_and_b32 v{b}, 1, v0")
        e(f"v_lshl_add_u32 v{self.vK}, v{b}, 4, v{a}")
        e(f"v_lshlrev_b32 v{self.vV}, 4, v0")
        e(f"v_lshlrev_b32 v{self.vQ}, 10, v{V_J}")
        e(f"v_lshl_add_u32 v{self.vQ}, v{V_N}, 4, v{self.vQ}")

    def qaddr(self):
        k = self.k
        if self.w0 == 0:
            k.sexpr(S_TMP, [(self.sPair, 0, 7, 14), (3, 1, None, 12), (self.sPair, 3, None, 9), (3, 0, 1, 8)])
        else:
            k.sexpr(S_TMP, [(self.sPair, 0, 7, 14), (3, 0, 3, 12), (self.sPair, 3, None, 9)])
        k.addr(self.sQ, S_WS, S_TMP, WS_QP + 128 * 1024)

    def kload(self, t, d=0, lo=0, hi=4):
        for ks in range(lo, hi):
            self.k.throttle(d)
            r = (ks >> 1) + 2 * (ks & 1)
            self.ktok[t] = self.k.ld4(self.KR[t] + 4 * r, self.vK, self.sK, (ks >> 1) * 1024 + (ks & 1) * 128)
        if hi == 4:
            self.k.adv(self.sK, 4096)

    def vload(self, t, d=0, lo=0, hi=4):
        for i in range(lo, hi):
            self.k.throttle(d)
            self.vtok[t] = self.k.ld4(self.VR[t] + 4 * i, self.vV, self.sV, i * 1024)
        if hi == 4:
            self.k.adv(self.sV, 4096)

    def qissue(self, first=False):
        if first and self.k.o.get("xid", 1):
            self.k.when("s_cmp_ge_u32 s3, 6", lambda: self.k.xid_load(self.XR, self.sPair))
        for i in range(2 if self.w0 else 1):
            t = self.k.ld4(self.QG + 4 * i, self.vQ, self.sQ, i * 256, "sc1")
        return t

    def qpiece(self, tok=None):
        k = self.k; e = k.e
        g, n = self.QG, 2 if self.w0 else 1
        k.poll(self.qissue, lambda: k.chkn([g + 4 * i for i in range(n)], 4, 5), pre_issued=tok)
        k.when("s_cmp_ge_u32 s3, 6", lambda: k.xid_eval(self.XR))
        k.untag(g, 4 * n)
        for i in range(n):
            r = g + 4 * i
            k.xrow("v_add_f32", [r, r + 1, r + 2, r + 3], [self.X + j for j in range(4)])
            e(f"v_cvt_pk_bf16_f32 v{r}, v{r}, v{r+1}")
            e(f"v_cvt_pk_bf16_f32 v{r+1}, v{r+2}, v{r+3}")
        k.sexpr(S_TMP, [(3, 0, 3 if self.w0 else None, 6 + n)])
        e(f"v_lshlrev_b32 v4, 3, v{V_N}")
        e(f"v_add_u32 v4, s{S_TMP}, v4")
        k.exec_set(0xffff, 0)
        for i in range(n):
            k.ds(f"ds_write_b64 v4, {vr(g+4*i,2)} offset:{self.QS+i*128}")
        k.arrive(self.CNT)

    def qread(self):
        k = self.k; e = k.e
        k.await_cnt(self.CNT, 8 - self.w0)
        e(f"v_lshrrev_b32 v4, 2, v{V_N}")
        e("v_lshlrev_b32 v4, 8, v4")
        e(f"v_lshl_add_u32 v4, v{V_J}, 5, v4")
        for ks in range(4):
            k.ds(f"ds_read_b128 {vr(self.QF+4*ks,4)}, v4 offset:{self.QS+(ks>>1)*128+(ks&1)*16}")
        for r in range(4 * self.extra):
            e(f"v_mov_b32 v{self.SR+4*self.nb+r}, 0xff800000")

    def qk(self, t):
        k = self.k
        k.vmwait(self.ktok[t])
        k0, x = self.KR[t], self.X + 8 * (t & 1)
        k.swap_pairs([(x, k0, k0 + 4), (x + 4, k0 + 8, k0 + 12)])
        d = vr(self.SR + 4 * t, 4)
        for ks, f in enumerate((x, k0 + 4, x + 4, k0 + 12)):
            k.e(f"v_mfma_f32_16x16x32_bf16 {d}, {vr(f,4)}, {vr(self.QF+4*ks,4)}, {'0' if ks == 0 else d}")

    def softmax(self):
        k = self.k; e = k.e
        SR = self.SR
        n = 4 * (self.nb + self.extra)
        k.chain("v_max3_f32", "v_max_f32", 4, range(SR, SR + n))
        k.xrow("v_max_f32", [4], [5])
        e(f"v_mul_f32 v4, s{S_SC}, v4")
        for i in range(n):
            e(f"v_fma_f32 v{SR+i}, v{SR+i}, s{S_SC}, -v4")
        for i in range(n):
            e(f"v_exp_f32 v{SR+i}, v{SR+i}")
        k.chain(None, "v_add_f32", 5, range(SR, SR + n))
        for i in range(n // 2):
            e(f"v_cvt_pk_bf16_f32 v{SR+i}, v{SR+2*i}, v{SR+2*i+1}")
        k.xrow("v_add_f32", [5], [6])
        e(f"s_lshl_b32 s{S_TMP}, s3, 5")
        e(f"v_lshlrev_b32 v6, 1, v{V_N}")
        e(f"v_add_u32 v6, s{S_TMP}, v6")
        k.exec_set(0x1111, 0)
        k.ds(f"ds_write_b64 v6, v[4:5] offset:{self.ST}")
        k.arrive(self.CNT + 4)

    def pv(self, t, n, first=False):
        k = self.k
        k.vmwait(self.vtok[t + n - 1])
        for i in range(8):
            x = self.X + 4 * (i & 3)
            k.frag(x, self.VR[t], i, 4 * n)
            d = vr(self.ACC + 4 * i, 4)
            op = "v_mfma_f32_16x16x32_bf16" if n == 2 else "v_mfma_f32_16x16x16_bf16"
            k.e(f"{op} {d}, {vr(self.SR+2*t,2*n)}, {vr(x,2*n)}, {'0' if first else d}")

    def factor(self, T0):
        k = self.k; e = k.e
        nw = 8 - self.w0
        k.await_cnt(self.CNT + 4, nw)
        e(f"v_lshlrev_b32 v6, 3, v{V_J}")
        for w in range(nw):
            k.ds(f"ds_read_b64 {vr(T0+2*w,2)}, v6 offset:{self.ST+(self.w0+w)*32}")
        e(f"s_lshl_b32 s{S_TMP}, s3, 5")
        e(f"v_add_u32 v6, s{S_TMP}, v6")
        k.ds(f"ds_read_b64 v[4:5], v6 offset:{self.ST}")
        k.lgwait()
        k.chain("v_max3_f32", "v_max_f32", 7, range(T0, T0 + 2 * nw, 2))
        for w in range(nw):
            e(f"v_sub_f32 v{T0+2*w}, v{T0+2*w}, v7")
        e("v_sub_f32 v4, v4, v7")
        for w in range(nw):
            e(f"v_exp_f32 v{T0+2*w}, v{T0+2*w}")
        e("v_exp_f32 v4, v4")
        e(f"v_mul_f32 v5, v{T0}, v{T0+1}")
        for w in range(1, nw):
            e(f"v_fmac_f32 v5, v{T0+2*w}, v{T0+2*w+1}")
        e("v_rcp_f32 v6, v5")
        e("v_log_f32 v5, v5")
        e(f"v_mul_f32 v{self.vF}, v4, v6")

        def lse():
            for i in range(4):
                e(f"v_add_f32 v{8+i}, v5, v7")
            k.tag4(8)
            k.sexpr(S_TMP, [(self.sPair, 0, 7, 11), (self.sPair, 3, None, 8), (self.sChunk, 0, None, 4)])
            k.addr(self.sQ, S_WS, S_TMP, WS_LSEB)
            e(f"v_lshlrev_b32 v4, 9, v{V_J}")
            k.exec_set(0x00010001, 0x00010001)
            k.st_group(f"global_store_dwordx4 v4, v[8:11], {sr(self.sQ)}")
            k.exec_all()

        k.when(f"s_cmp_eq_u32 s3, {PUBW}", lse)
        k.sexpr(S_TMP, [(self.sPair, 0, 7, 3), (3, 0, 1, 2), (self.sPair, 3, None, 0)])
        e(f"s_mul_i32 s{S_TMP}, s{S_TMP}, {NCB}")
        e(f"s_add_u32 s{S_TMP}, s{S_TMP}, s{self.sChunk}")
        e(f"s_lshl_b32 s{S_TMP}, s{S_TMP}, 9")
        k.addr(self.sQ, S_WS, S_TMP, WS_OP)
        e("v_lshrrev_b32 v4, 5, v0")
        e(f"v_mul_u32_u24 v4, {2*NCB*512}, v4")
        e("v_and_b32 v5, 31, v0")
        e(f"v_lshl_add_u32 v{self.vQ}, v5, 4, v4")
        e(f"s_lshl_b32 s{S_TMP}, s3, 11")
        e(f"v_lshlrev_b32 v4, 9, v{V_J}")
        e(f"v_lshl_add_u32 v4, v{V_N}, 5, v4")
        e(f"v_add_u32 v{self.vK}, s{S_TMP}, v4")
        k.sexpr(S_TMP, [(3, 0, 1, 10)])
        e(f"v_add_u32 v{T0}, s{S_TMP}, v{self.vV}")
        self.vR = T0

    def finish(self, T0, st, cont=False):
        k = self.k; e = k.e
        k.stamp(st)
        T0 += 4
        for i in range(8):
            e(f"v_mul_f32 v{T0+i}, v{self.vF}, v{self.ACC+4*i}")
        k.ds(f"ds_write_b128 v{self.vK}, {vr(T0,4)} offset:{self.OS}")
        k.ds(f"ds_write_b128 v{self.vK}, {vr(T0+4,4)} offset:{self.OS+16}")
        nw = 8 - self.w0
        if self.w0:
            k.arrive(self.CNT + 8)
        else:
            k.barrier()

        def pub():
            if self.w0:
                k.await_cnt(self.CNT + 8, nw)
            for w in range(nw):
                k.ds(f"ds_read_b128 {vr(T0+4*w,4)}, v{self.vR} offset:{self.OS+(self.w0+w)*2048}")
            k.lgwait()
            k.tree_add4(T0, nw)
            k.tag4(T0)
            k.st_group(f"global_store_dwordx4 v{self.vQ}, {vr(T0,4)}, {sr(self.sQ)}")
            k.stamp(st + 1)

        k.when("s_cmp_ge_u32 s3, 6", pub)
        if not cont:
            e("s_branch L_fin")


def role_B(k):
    e, o = k.e, k.o
    D1, D, DV, SW = o.get("depth_b1", 3), o.get("depth_b", 6), o.get("depth_v", 8), o.get("b_sw", 2)
    KR = [160 + 16 * t for t in range(6)] + [144]
    VR = [16, 32, KR[0], KR[1], KR[2], KR[3], KR[4]]
    CNT, QS2, QAS, UK = 9728, 9856, 40960, 144
    c = Chunk(k, 5, 2, KR, VR, QF=128, SR=100, ACC=64, X=48, VA=96, CNT=CNT, sK=S_C, sV=S_D, sQ=S_A)
    sI = S_P + 4
    dep = lambda t: D1 if t < SW else D
    npre, bpre = o.get("p2_at", 2), o.get("b_pre", 1)

    def kstream(lo, hi, thr, c=c):
        for n in range(lo, hi):
            c.kload(n >> 2, dep(n >> 2) if thr else 0, n & 3, (n & 3) + 1)

    def params(c=c):
        e("s_waitcnt lgkmcnt(0)")
        e(f"s_bfe_u32 s{c.sNx[0]}, s{c.sTile}, 0x40010")
        e(f"s_bfe_u32 s{c.sNx[1]}, s{c.sTile}, 0x40014")
        e(f"s_bfe_u32 s{c.sPair}, s{c.sTile}, 0x40018")
        e(f"s_lshr_b32 s{c.sChunk}, s{c.sTile}, 28")
        e(f"s_and_b32 s{c.sTile}, s{c.sTile}, 0xffff")
        e(f"s_mul_i32 s{S_TMP}, s3, {c.nb}")
        e(f"s_add_u32 s{c.sTile}, s{c.sTile}, s{S_TMP}")
        for i in range(2):
            e(f"s_min_u32 s{S_TMP}, s3, s{c.sNx[i]}")
            e(f"s_add_u32 s{c.sTile}, s{c.sTile}, s{S_TMP}")
        c.setup()
        for r in range(124, 128):
            e(f"v_mov_b32 v{r}, 0")
        e(f"v_mov_b32 v123, {CNT}")
        k.ds("ds_write_b128 v123, v[124:127]")

    k.c("================ role B1")
    k.label("L_roleB")
    e(f"s_sub_u32 s{sI}, s2, {NT+NA}")
    e(f"s_getpc_b64 {sr(S_C)}")
    k.label("L_pc")
    e(f"s_lshl_b32 s{S_TMP}, s{sI}, 2")
    e(f"s_add_u32 s{S_C}, s{S_C}, L_tiles-L_pc")
    e(f"s_addc_u32 s{S_C+1}, s{S_C+1}, 0")
    e(f"s_load_dword s{c.sTile}, {sr(S_C)}, s{S_TMP}")
    e("s_cmp_ge_u32 s2, 224")
    e("s_cbranch_scc1 L_roleB2")
    base = k.vm_n
    k.sexpr(S_TMP, [(sI, 0, 7, 4), (sI, 3, None, 0)])
    e(f"s_mov_b32 s{sI}, s{S_TMP}")
    e(f"s_bitcmp1_b32 s{sI}, 3")
    e(f"s_cselect_b32 s{S_SL}, 120, 8")
    e(f"s_add_u32 s{S_SL}, s{S_SL}, s{sI}")

    def selW():
        e(f"s_cmp_lt_u32 s{S_SL}, 128")
        e(f"s_cselect_b32 s{S_C}, s{S_WQA}, s{S_WQB}")
        e(f"s_cselect_b32 s{S_C+1}, s{S_WQA+1}, s{S_WQB+1}")
        e(f"s_cselect_b32 s{S_B}, s{S_AX}, s{S_BX}")
        e(f"s_cselect_b32 s{S_B+1}, s{S_AX+1}, s{S_BX+1}")
        e(f"s_add_u32 s{S_A}, s{S_C}, s{S_A}")
        e(f"s_addc_u32 s{S_A+1}, s{S_C+1}, 0")

    tok = k.p1_issue(S_SL, selW, lambda: k.addr(S_B, S_B, S_TMP), 8, 16)
    k.sexpr(S_TMP, [(sI, 0, 3, 20), (3, 0, None, 17), (sI, 2, None, 8)])
    k.addr(S_C, S_WUK, S_TMP)
    e("v_bfe_u32 v33, v0, 1, 3")
    e("v_lshlrev_b32 v33, 14, v33")
    e(f"v_lshl_add_u32 v33, v{V_J}, 5, v33")
    e("v_and_b32 v32, 1, v0")
    e("v_lshl_add_u32 v33, v32, 4, v33")
    e("v_add_u32 v32, 0x2000, v33")
    for ks in range(4):
        uktok = k.ld4(UK + 4 * ((ks >> 1) + 2 * (ks & 1)), 33 - (ks >> 1), S_C, (ks & 1) * 128)
    k.consts()
    params()
    kstream(0, bpre, False)
    k.p1_compute(S_SL, tok, 8, 16, c.ACC, 48)
    kstream(bpre, npre, False)
    k.sexpr(S_TMP, [(sI, 2, None, 12), (3, 0, 3, 8)])
    k.addr(S_B, S_WS, S_TMP, WS_QP)

    def p2_piece():
        e(f"s_waitcnt vmcnt({o.get('p2_w', 0)})")
        k.poll(lambda: k.ld4(8, c.vQ, S_B, 0, "sc1"), lambda: k.chk4(8, 4, True))
        k.untag(8)
        k.xrow("v_add_f32", [8, 9, 10, 11], [12, 13, 14, 15])
        e("v_cvt_pk_bf16_f32 v8, v8, v9")
        e("v_cvt_pk_bf16_f32 v9, v10, v11")
        k.sexpr(S_TMP, [(3, 0, 3, 7)])
        e(f"v_lshlrev_b32 v4, 3, v{V_N}")
        e(f"v_add_u32 v4, s{S_TMP}, v4")
        k.exec_set(0xffff, 0)
        k.ds(f"ds_write_b64 v4, v[8:9] offset:{QS2}")
        k.arrive(CNT + 8)

    k.vmwait(uktok)
    k.swap_pairs([(48, UK, UK + 4), (52, UK + 8, UK + 12)])
    k.when("s_cmp_ge_u32 s3, 4", p2_piece)
    k.stamp(7)
    k.sexpr(S_TMP, [(sI, 2, None, 10), (sI, 0, 3, 8)])
    k.addr(S_B, S_WS, S_TMP, WS_QA)
    k.bitmasks(12)
    e("v_mov_b32 v16, 0xfffefffe")
    e(f"v_lshlrev_b32 v17, 15, v{V_J}")
    e(f"v_lshl_add_u32 v17, v{V_N}, 4, v17")
    e(f"v_lshlrev_b32 v5, 8, v{V_N}")
    e(f"v_lshl_add_u32 v5, v{V_J}, 3, v5")
    e(f"s_lshl_b32 s{S_TMP}, s3, 5")
    e(f"v_add_u32 v5, s{S_TMP}, v5")
    e(f"v_and_b32 v4, 1, v{V_N}")
    e("v_lshlrev_b32 v4, 8, v4")
    e(f"v_lshl_add_u32 v4, v{V_J}, 5, v4")
    k.await_cnt(CNT + 8, 4)
    for ks in range(4):
        k.ds(f"ds_read_b128 {vr(c.QF+4*ks,4)}, v4 offset:{QS2+(ks>>1)*128+(ks&1)*16}")
    k.lgwait()
    for ks, f in enumerate((48, UK + 4, 52, UK + 12)):
        e(f"v_mfma_f32_16x16x32_bf16 v[8:11], {vr(f,4)}, {vr(c.QF+4*ks,4)}, {'0' if ks == 0 else 'v[8:11]'}")
    for i in range(4):
        e(f"v_add_u32 v{8+i}, 0x10000, v{8+i}")
    e(f"v_perm_b32 v8, v9, v8, s{S_HI}")
    e(f"v_perm_b32 v9, v11, v10, s{S_HI}")
    k.exec_set(0x00030003, 0x00030003)
    k.ds(f"ds_write_b64 v5, v[8:9] offset:{QAS}")
    k.arrive(CNT + 12)

    def qa_pub():
        k.await_cnt(CNT + 12, 8)
        k.ds(f"ds_read_b128 v[8:11], v{c.vV} offset:{QAS}")
        k.lgwait()
        for q in range(4):
            e(f"v_and_or_b32 v{8+q}, v{8+q}, v16, v{12+q}")
        k.exec_set(0xffffffff, 0)
        k.vm(f"global_store_dwordx4 v17, v[8:11], {sr(S_B)} sc1")
        k.exec_all()

    k.when(f"s_cmp_eq_u32 s3, {o.get('qaw', 3)}", qa_pub)
    k.stamp(8)
    c.qaddr()
    qat = o.get("b_qat", 2)
    for t in range(5):
        if t == qat:
            qtok = c.qissue(True)
        kstream(max(4 * t, npre), max(4 * t + 4, npre), True)
        if t == o.get("b_qchk", 4):
            k.stamp(2)
            c.qpiece(qtok)
            k.stamp(3)
    c.ifx(0, lambda: c.kload(5, D))
    c.ifx(1, lambda: c.kload(6, D))
    c.qread()
    c.vload(0, DV)
    k.lgwait()
    c.qk(0); c.qk(1)
    c.vload(1, DV)
    c.qk(2); c.qk(3)
    c.vload(2, DV)
    c.qk(4)
    c.ifx(0, lambda: c.qk(5))
    c.ifx(1, lambda: c.qk(6))
    c.vload(3, DV)
    k.stamp(4)
    c.softmax()
    c.vload(4, DV)
    c.pv(0, 2, first=True)
    c.ifx(0, lambda: c.vload(5, DV))
    c.factor(16)
    c.ifx(1, lambda: c.vload(6, DV))
    c.pv(2, 2)
    c.pv(4, 1)
    c.ifx(0, lambda: c.pv(5, 1))
    c.ifx(1, lambda: c.pv(6, 1))
    c.finish(16, 5)
    k.c("================ role B2")
    k.label("L_roleB2")
    k.vm_n = base
    K2 = [160, 176, 192, 208]
    c = Chunk(k, 3, 1, K2, [16, 32, K2[0], K2[1]], QF=128, SR=100, ACC=64, X=48, VA=96, CNT=CNT, sK=S_C, sV=S_D, sQ=S_A)
    k.p1_multi([4, 140], lambda: (params(c), kstream(0, bpre, False, c)), c.ACC, [0, 16384])
    D2 = o.get("depth_b2", 5)
    SW2 = 98
    k.sexpr(S_TMP, [(2, 0, 31, 17), (3, 2, None, 16), (3, 0, 3, 8)])
    k.addr(SW2, S_WOB, S_TMP)
    e(f"v_lshlrev_b32 v144, 13, v{V_J}")
    e(f"v_lshl_add_u32 v144, v{V_N}, 4, v144")
    k.sexpr(S_TMP, [(3, 0, 3, 15), (3, 2, None, 14)], WOL)
    e(f"v_add_u32 v145, s{S_TMP}, v{c.vV}")
    c.qaddr()
    for n in range(bpre, 12):
        if n == 8:
            qtok = c.qissue(True)
        c.kload(n >> 2, D2, n & 3, (n & 3) + 1)
    c.ifx(0, lambda: c.kload(3, D2))
    c.vload(0, D2)
    c.qpiece(qtok)
    c.vload(1, D2)
    c.qread()
    k.lgwait()
    c.qk(0); c.qk(1); c.qk(2)
    c.ifx(0, lambda: c.qk(3))
    c.vload(2, D2)
    c.ifx(0, lambda: c.vload(3, D2))
    k.stamp(4)
    c.softmax()
    wtok = {}

    def wload(g):
        for t in range(8):
            k.throttle(D2)
            wtok[g] = k.ld4((224, 192)[g] + 4 * t, 144, SW2, (t & 3) * 1024)
            if t & 3 == 3:
                k.adv(SW2, 4096 if t == 3 else 4096 * 7)

    c.pv(0, 2, first=True)
    c.factor(16)
    wload(0)
    c.pv(2, 1)
    c.ifx(0, lambda: c.pv(3, 1))
    c.finish(16, 5, cont=True)
    wload(1)
    for r in range(4, 8):
        e(f"v_mov_b32 v{r}, 0")
    e(f"v_mov_b32 v8, {CNTB}")
    k.ds("ds_write_b128 v8, v[4:7]")
    for g in range(2):
        k.vmwait(wtok[g])
        for i in range(8):
            x = 8 + 4 * (i & 3)
            k.frag(x, (224, 192)[g], i, 8)
            k.ds(f"ds_write_b128 v145, {vr(x,4)} offset:{g*8192+i*1024}")
    k.barrier()
    e("s_cmp_ge_u32 s3, 4")
    e("s_cbranch_scc1 L_fin")
    k.sexpr(S_TMP, [(3, 0, None, 15)], WOL)
    e("v_lshlrev_b32 v31, 4, v0")
    e(f"v_add_u32 v30, s{S_TMP}, v31")
    for f in range(32):
        k.ds(f"ds_read_b128 {vr(32+4*f,4)}, v30 offset:{f*1024}")
    e("s_and_b32 s2, s2, 31")
    e("s_add_u32 s3, s3, 4")
    e("s_branch L_ldok")


def role_A(k):
    e, o = k.e, k.o
    C0, G, QT, SR, ACC = 128, 64, 64, 48, 96
    Q = 131072
    PB, ST, ST2, CNT = Q, Q + 16384, Q + 17408, 9728
    sB, sCh, sA = S_P + 4, S_P + 5, S_P + 6
    AT = o.get("a_t", 1)
    c = Chunk(k, AT, 0, KR=[128, 144][:AT], VR=[160, 176][:AT], QF=64, SR=48, ACC=96, X=80, VA=28, CNT=CNT, sK=S_C, sV=S_D, sQ=S_B, QG=22, XR=32)
    k.c("================ role A")
    k.label("L_roleA")
    e(f"s_sub_u32 s{sA}, s2, {NT}")
    k.sexpr(S_TMP, [(sA, 0, None, 18), (3, 0, None, 14)])
    e("v_bfe_u32 v32, v0, 1, 3")
    e("v_lshlrev_b32 v32, 11, v32")
    e(f"v_lshl_add_u32 v32, v{V_J}, 5, v32")
    e("v_and_b32 v33, 1, v0")
    e("v_lshl_add_u32 v32, v33, 4, v32")
    e("s_waitcnt lgkmcnt(0)")
    SCK = 98
    k.addr(SCK, S_CKV, S_TMP)
    DA = o.get("depth_a", 5)
    coff = lambda ks: (ks & 1) * 1024 + (ks >> 1) * 128
    CF = []
    for p in range(16):
        CF += [C0 + 8 * p - 8 if p else 124, C0 + 8 * p + 4]
    ctok = {}
    st = {"n": 0}
    sVal = 92

    def pump(upto):
        while st["n"] < min(upto, 32):
            n = st["n"]
            if n == 16:
                k.adv(SCK, 131072)
            m = (n & ~3) | ((n & 1) << 1) | ((n >> 1) & 1)
            ctok[m] = k.ld4(C0 + 4 * m, 32, SCK, coff(m & 15))
            st["n"] += 1

    pump(DA)
    k.consts()
    e(f"s_lshr_b32 s{sB}, s{sA}, 5")
    e(f"s_and_b32 s{sCh}, s{sA}, 31")
    e(f"v_bfe_u32 v4, v{V_N}, 1, 2")
    e(f"v_and_b32 v5, 3, v{V_N}")
    e("v_lshl_add_u32 v4, v5, 2, v4")
    e(f"v_lshlrev_b32 v5, 1, v{V_J}")
    e("v_xor_b32 v4, v4, v5")
    e(f"s_lshl_b32 s{S_TMP}, s3, 14")
    e(f"v_lshlrev_b32 v5, 10, v{V_N}")
    e(f"v_add_u32 v5, s{S_TMP}, v5")
    e("v_lshl_add_u32 v40, v4, 4, v5")
    kx = lambda q: (q >> 1) * 128 + (q & 1) * 16
    for q in range(1, 4):
        e(f"v_xor_b32 v{40+q}, {kx(q)}, v40")
    k.sexpr(S_TMP, [(sB, 0, None, 15), (3, 0, None, 12)])
    k.addr(S_A, S_WS, S_TMP, WS_QA)
    e("v_lshlrev_b32 v33, 4, v0")
    e(f"v_lshlrev_b32 v4, 1, v{V_J}")
    e(f"v_xor_b32 v4, v4, v{V_N}")
    e(f"v_lshlrev_b32 v5, 10, v{V_N}")
    e(f"v_add_u32 v5, {Q}, v5")
    e("v_lshl_add_u32 v44, v4, 4, v5")
    for q in range(1, 4):
        e(f"v_xor_b32 v{44+q}, {kx(q)}, v44")
    e(f"v_lshlrev_b32 v4, 5, v{V_N}")
    e(f"v_add_u32 v35, {ST}, v4")
    e(f"s_lshl_b32 s{S_TMP}, s3, 2")
    e(f"v_add_u32 v36, s{S_TMP}, v35")
    e("v_and_b32 v6, 31, v0")
    e("v_lshlrev_b32 v4, 5, v6")
    e(f"v_add_u32 v37, {ST}, v4")
    e(f"v_lshrrev_b32 v7, 1, v{V_J}")
    e(f"s_lshl_b32 s{S_TMP}, s3, 1")
    e(f"v_add_u32 v7, s{S_TMP}, v7")
    e(f"v_xor_b32 v7, v7, v{V_N}")
    e("v_lshlrev_b32 v7, 4, v7")
    e(f"v_lshl_add_u32 v7, v{V_N}, 9, v7")
    e(f"v_and_b32 v8, 1, v{V_J}")
    e("v_lshl_add_u32 v7, v8, 3, v7")
    e(f"v_add_u32 v38, {PB}, v7")
    e("v_lshrrev_b32 v4, 5, v0")
    e(f"v_xor_b32 v7, v4, v{V_N}")
    e("v_lshlrev_b32 v7, 4, v7")
    e("v_lshl_add_u32 v7, v6, 9, v7")
    e(f"v_add_u32 v20, {PB}, v7")
    k.sexpr(S_TMP, [(3, 0, 1, 3)])
    e(f"v_xor_b32 v7, s{S_TMP}, v{V_N}")
    e("v_lshlrev_b32 v7, 4, v7")
    e("v_lshl_add_u32 v7, v6, 10, v7")
    e("v_lshl_add_u32 v7, v4, 3, v7")
    k.sexpr(S_TMP, [(3, 1, None, 8)], Q)
    e(f"v_add_u32 v39, s{S_TMP}, v7")
    k.sexpr(S_TMP, [(3, 0, 3, 2)])
    e(f"v_xor_b32 v7, s{S_TMP}, v0")
    e("v_lshlrev_b32 v7, 4, v7")
    k.sexpr(S_TMP, [(3, 0, None, 12)], Q)
    e(f"v_add_u32 v27, s{S_TMP}, v7")
    e("v_bfe_u32 v5, v0, 2, 2")
    e("v_lshl_add_u32 v6, v4, 3, v5")
    e("v_lshlrev_b32 v6, 10, v6")
    e("v_and_b32 v7, 1, v0")
    e("v_lshl_add_u32 v6, v7, 3, v6")
    k.sexpr(S_TMP, [(3, 1, None, 8)])
    e(f"v_add_u32 v6, s{S_TMP}, v6")
    e("v_bfe_u32 v7, v0, 4, 1")
    e("v_bfe_u32 v8, v0, 1, 1")
    e("v_lshl_add_u32 v7, v7, 1, v8")
    k.sexpr(S_TMP, [(3, 0, 1, 3)])
    e(f"v_add_u32 v7, s{S_TMP}, v7")
    e("v_lshrrev_b32 v8, 1, v5")
    e("v_lshlrev_b32 v5, 2, v5")
    e("v_xor_b32 v7, v7, v5")
    e("v_xor_b32 v7, v7, v8")
    for mt in range(2):
        for ee in range(2):
            r = 16 + 2 * mt + ee
            e(f"v_xor_b32 v{r}, {4*mt + 2*ee}, v7")
            e(f"v_lshl_add_u32 v{r}, v{r}, 4, v6")
            if ee:
                e(f"v_add_u32 v{r}, 4096, v{r}")
    e(f"s_and_b32 s{c.sPair}, s{sA}, 15")
    k.sexpr(c.sChunk, [(sA, 4, None, 0)], 10)
    k.sexpr(c.sTile, [(sA, 4, None, 2 + AT), (3, 0, None, AT - 1)], 512 - 32 * AT)
    c.setup()
    SL, SFL = 94, 100
    k.sexpr(S_TMP, [(3, 0, None, 18), (sB, 0, None, 15), (sCh, 0, None, 10)])
    k.addr(SL, S_WS, S_TMP, WS_LATP)
    k.sexpr(S_TMP, [(sA, 0, None, 8 if o.get("lt", 1) else 3)])
    k.addr(SFL, S_WS, S_TMP, WS_LSEA)
    e("s_waitcnt lgkmcnt(0)")
    k.settag()
    k.bitmasks(G + 16)

    def cwrite(ks):
        k.ds(f"ds_write_b128 v{40+(ks&3)}, {vr(CF[ks],4)} offset:{((ks&15)>>2)*256}")

    def qload(q):
        return k.ld4(G + 4 * q, 33, S_A, q * 1024, "sc1")

    gat, gq = o.get("a_gat", 10), o.get("a_gq", 12)

    def cproc(p):
        pump(2 * p + 2 + DA)
        if p == gat:
            for q in range(4):
                st["g"] = qload(q)
        k.vmwait(ctok[2 * p + 1])
        k.swap_pairs([(CF[2 * p], C0 + 8 * p, C0 + 8 * p + 4)])
        if p < 8:
            cwrite(2 * p); cwrite(2 * p + 1)

    for p in range(gq + 1):
        cproc(p)
    pump(2 * gq + 4 + DA)
    k.stamp(2)
    top, chk, done = k.newlabel("L_qa"), k.newlabel("L_qachk"), k.newlabel("L_qaok")
    e(f"s_mov_b32 s{sVal}, 0")
    e(f"s_mov_b32 s{S_SPIN}, {SPIN_MAX}")
    k.vmwait(st["g"])
    e(f"s_branch {chk}")
    k.label(top)
    k.cond += 1
    e(f"s_sub_u32 s{S_SPIN}, s{S_SPIN}, 1")
    e(f"s_cbranch_scc1 {done}")
    for q in range(4):
        lab = k.newlabel("L_qsk")
        e(f"s_bitcmp1_b32 s{sVal}, {q}")
        e(f"s_cbranch_scc1 {lab}")
        qload(q)
        k.label(lab)
    e("s_waitcnt vmcnt(0)")
    k.label(chk)
    for q in range(4):
        for i in range(4):
            e(f"v_xor_b32 v{4+i}, v{G+4*q+i}, v{G+16+i}")
        e("v_or3_b32 v4, v4, v5, v6")
        e("v_or_b32 v4, v4, v7")
        e("v_and_b32 v4, 0x10001, v4")
        e(f"v_cmp_ne_u32 {sr(S_BAD)}, 0, v4")
        e(f"s_cmp_eq_u64 {sr(S_BAD)}, 0")
        e(f"s_cselect_b32 s{S_TMP}, {1 << q}, 0")
        e(f"s_or_b32 s{sVal}, s{sVal}, s{S_TMP}")
    e(f"s_cmp_lg_u32 s{sVal}, 15")
    e(f"s_cbranch_scc1 {top}")
    k.cond -= 1
    k.label(done)
    k.stamp(3)
    for q in range(4):
        for i in range(4):
            e(f"v_xor_b32 v{G+4*q+i}, v{G+4*q+i}, v{G+16+i}")
        e(f"v_xor_b32 v{4+q}, {q*16}, v27")
        k.ds(f"ds_write_b128 v{4+q}, {vr(G+4*q,4)} offset:{q*1024}")
    k.barrier()
    tk = {}

    def qread(ks):
        for hh in range(2):
            tk[ks] = k.ds(f"ds_read_b128 {vr(QT+8*(ks&3)+4*hh,4)}, v{44+(ks&3)} offset:{hh*16384+(ks>>2)*256}")

    for ks in range(3):
        qread(ks)
    for ks in range(16):
        if ks + 3 < 16:
            qread(ks + 3)
        if ks & 1 == 0 and 8 + ks // 2 > gq:
            cproc(8 + ks // 2)
        k.lgwait(tk[ks])
        for hh in range(2):
            for rnd in range(2):
                d = vr(SR + 8 * hh + 4 * rnd, 4)
                e(f"v_mfma_f32_16x16x32_bf16 {d}, {vr(CF[16*rnd+ks],4)}, {vr(QT+8*(ks&3)+4*hh,4)}, {'0' if ks == 0 else d}")
        if ks < 2 * (gq - 7) and ks & 1:
            pump(st["n"] + 1)
    c.kload(0, 0, 0, 2)
    k.stamp(4)
    for hh in range(2):
        k.chain("v_max3_f32", "v_max_f32", 4 + hh, range(SR + 8 * hh, SR + 8 * hh + 8))
    k.xrow("v_max_f32", [4, 5], [6, 7])
    k.barrier()
    k.exec_set(0xffff, 0)
    for hh in range(2):
        k.ds(f"ds_write_b32 v36, v{4+hh} offset:{hh*512}")
    k.exec_all()
    c.kload(0, 0, 2, 4)
    k.barrier()
    for hh in range(2):
        for q in range(2):
            k.ds(f"ds_read_b128 {vr(64+8*hh+4*q,4)}, v35 offset:{hh*512+q*16}")
    for q in range(2):
        k.ds(f"ds_read_b128 {vr(80+4*q,4)}, v37 offset:{q*16}")
    k.lgwait()
    for i, dst in enumerate((4, 5, 26)):
        k.chain("v_max3_f32", "v_max_f32", dst, range(64 + 8 * i, 72 + 8 * i))
        e(f"v_mul_f32 v{dst}, s{S_SC}, v{dst}")
    for i in range(16):
        e(f"v_fma_f32 v{SR+i}, v{SR+i}, s{S_SC}, -v{4+(i>>3)}")
    for i in range(16):
        e(f"v_exp_f32 v{SR+i}, v{SR+i}")
    for hh in range(2):
        k.chain(None, "v_add_f32", 6 + hh, range(SR + 8 * hh, SR + 8 * hh + 8))
    for i in range(8):
        e(f"v_cvt_pk_bf16_f32 v{SR+i}, v{SR+2*i}, v{SR+2*i+1}")
    for hh in range(2):
        for rnd in range(2):
            k.ds(f"ds_write_b64 v38, {vr(SR+4*hh+2*rnd,2)} offset:{hh*8192+rnd*256}")
    k.xrow("v_add_f32", [6, 7], [8, 9])
    k.exec_set(0xffff, 0)
    for hh in range(2):
        k.ds(f"ds_write_b32 v36, v{6+hh} offset:{ST2-ST+hh*512}")
    k.exec_all()
    if AT == 2:
        c.kload(1, 0)
    k.barrier()
    FR = 48

    def go(point):
        if o.get("go", 0) != point:
            return

        def st_():
            k.addr(S_A, S_WS, None, WS_GO)
            e("v_lshlrev_b32 v4, 7, v0")
            k.exec_set(0xffffffff, 0)
            k.vm(f"global_store_dword v4, v{V_T}, {sr(S_A)} sc1")
            k.exec_all()

        k.sexpr(S_TMP, [(sA, 0, None, 3), (3, 0, None, 0)])
        k.when(f"s_cmp_eq_u32 s{S_TMP}, {o.get('go_wg', 63) * 8 + 6}", st_)

    go(1)

    def pvpart(rnd, u0, u1):
        tk = {}

        def rd(u):
            f = FR + 12 * (u % 3)
            if u == 4:
                for r in range(16, 20):
                    e(f"v_add_u32 v{r}, 0x10000, v{r}")
            e(f"v_xor_b32 v21, {u*32}, v20")
            k.ds(f"ds_read_b128 {vr(f+8,4)}, v21 offset:{rnd*256}")
            for mt in range(2):
                for ee in range(2):
                    tk[u] = k.ds(f"ds_read_b64_tr_b16 {vr(f+4*mt+2*ee,2)}, v{16+2*mt+ee} offset:{(u&3)*16384}")

        rd(u0); rd(u0 + 1)
        for u in range(u0, u1):
            if u + 2 < u1:
                rd(u + 2)
            k.lgwait(tk[u])
            f = FR + 12 * (u % 3)
            for mt in range(2):
                d = vr(ACC + 16 * mt, 16)
                e(f"v_mfma_f32_32x32x16_bf16 {d}, {vr(f+4*mt,4)}, {vr(f+8,4)}, {'0' if (rnd == 0 and u == 0) else d}")
        if u1 == 8 and rnd == 0:
            for r in range(16, 20):
                e(f"v_subrev_u32 v{r}, 0x10000, v{r}")

    def cw1():
        for ks in range(16, 32):
            cwrite(ks)

    if o.get("a_ovl", 0):
        pvpart(0, 0, 4)
        k.barrier()
        k.when("s_cmp_lt_u32 s3, 4", cw1)
        pvpart(0, 4, 8)
        k.stamp(5)
        c.qaddr()
        qtok = c.qissue(True)
        if o.get("a_ve", 1):
            c.vload(0, 0)
        k.barrier()
        k.when("s_cmp_ge_u32 s3, 4", cw1)
        pvpart(1, 0, 4)
        k.barrier()
        k.stamp(6)
        pvpart(1, 4, 8)
    else:
        pvpart(0, 0, 8)
        k.stamp(5)
        k.barrier()
        c.qaddr()
        qtok = c.qissue(True)
        cw1()
        if o.get("a_ve", 1):
            c.vload(0, 0)
        k.barrier()
        k.stamp(6)
        go(2)
        pvpart(1, 0, 8)
    k.stamp(10)
    for q in range(2):
        k.ds(f"ds_read_b128 {vr(64+4*q,4)}, v37 offset:{ST2-ST+q*16}")
    for r in range(12, 16):
        e(f"v_mov_b32 v{r}, 0")
    e(f"v_mov_b32 v11, {CNT}")
    k.lgwait()
    k.chain(None, "v_add_f32", 9, range(64, 72))
    e("v_rcp_f32 v10, v9")
    e("v_log_f32 v9, v9")
    e("v_add_f32 v26, v26, v9")
    e("s_barrier")
    k.ds("ds_write_b128 v11, v[12:15]")
    for g in range(8):
        for i in range(4):
            e(f"v_mul_f32 v{ACC+4*g+i}, v10, v{ACC+4*g+i}")
        e(f"v_cvt_pk_bf16_f32 v{ACC+4*g}, v{ACC+4*g}, v{ACC+4*g+1}")
        e(f"v_cvt_pk_bf16_f32 v{ACC+4*g+1}, v{ACC+4*g+2}, v{ACC+4*g+3}")
        e(f"v_xor_b32 v{40+g}, {g*16}, v39")
        k.ds(f"ds_write_b64 v{40+g}, {vr(ACC+4*g,2)}")
    k.barrier()
    tk = []
    for q in range(4):
        e(f"v_xor_b32 v{16+q}, {q*16}, v27")
        tk.append(k.ds(f"ds_read_b128 {vr(192+4*q,4)}, v{16+q} offset:{q*1024}"))
    for q in range(4):
        k.lgwait(tk[q])
        stok = k.vm(f"global_store_dwordx4 v33, {vr(192+4*q,4)}, {sr(SL)} sc1")
        if q < 3:
            k.adv(SL, 65536)
    go(3)
    if AT == 2 and o.get("a_v1", 0):
        c.vload(1, 0)
    k.stamp(11)
    c.qpiece(qtok)
    c.qread()
    e(f"v_lshlrev_b32 v40, {3 if o.get('lt', 1) else 9}, v0")
    e(f"v_mov_b32 v27, v{V_T}")
    k.lgwait()
    for t in range(AT):
        c.qk(t)
    c.softmax()
    k.vmwait(stok)
    e("s_barrier")

    def flag():
        k.exec_set(0xffffffff, 0)
        k.vm(f"global_store_dwordx2 v40, v[26:27], {sr(SFL)} sc1")
        k.exec_all()

    k.when(f"s_cmp_eq_u32 s3, {PUBW}", flag)
    if not o.get("a_ve", 1):
        c.vload(0, 0)
    if AT == 2 and not o.get("a_v1", 0):
        c.vload(1, 0)
    k.stamp(7)
    c.factor(208)
    c.pv(0, AT, first=True)
    c.finish(208, 8)


def role_T(k):
    e, o = k.e, k.o
    D = o.get("depth_t", 3)
    R = [32 + 32 * i for i in range(7)]
    CNT, WSC, CS, P1B = 16384, 16640, 21504, 8192
    sStr, sW = S_P + 2, S_P + 3
    SF, SO = 86, 88
    k.c("================ role T")
    k.label("L_roleT")
    k.remap = {11: 2, 12: 3}
    tok = {}

    def pre():
        e(f"v_lshlrev_b32 v{R[4]}, 13, v{V_J}")
        e(f"v_lshl_add_u32 v{R[4]}, v{V_N}, 4, v{R[4]}")
        for r in range(4):
            e(f"v_mov_b32 v{R[4]+4+r}, 0")
        e(f"v_mov_b32 v{R[4]+1}, {CNT}")
        k.ds(f"ds_write_b128 v{R[4]+1}, {vr(R[4]+4,4)}")
        k.ds(f"ds_write_b128 v{R[4]+1}, {vr(R[4]+4,4)} offset:{CNTB-CNT}")

    k.p1_multi([0, 136], pre, R[1], [0, P1B])
    e(f"v_mov_b32 v29, v{R[4]}")
    k.sexpr(S_TMP, [(3, 0, 3, 20), (2, 0, None, 8)])
    k.addr(S_A, S_WUV, S_TMP)
    k.sexpr(S_TMP, [(2, 0, None, 17), (3, 2, None, 16), (3, 0, 3, 8)])
    k.addr(S_C, S_WOA, S_TMP)
    e(f"v_lshlrev_b32 v28, 16, v{V_J}")
    e(f"v_lshl_add_u32 v28, v{V_N}, 4, v28")
    k.sexpr(S_TMP, [(3, 0, 3, 15), (3, 2, None, 14)], WOL)
    e("v_lshlrev_b32 v31, 4, v0")
    e(f"v_add_u32 v30, s{S_TMP}, v31")
    k.sexpr(S_P, [(3, 0, None, 10)], WSC)
    DA_, DB_ = o.get("depth_ta", 3), o.get("depth_tb", 3)

    def wperm(g):
        k.vmwait(tok["w", g])
        for i in range(8):
            k.frag(R[g] + 4 * i, R[g + 1], i, 8)

    def operm(g):
        k.vmwait(tok["o", g])
        for i in range(8):
            x = 8 + 4 * (i & 3)
            k.frag(x, R[5 + g], i, 8)
            k.ds(f"ds_write_b128 v30, {vr(x,4)} offset:{g*8192+i*1024}")

    for n in range(16):
        k.throttle(D)
        tok["o", n >> 3] = k.ld4(R[5] + 4 * n, 29, S_C, (n & 3) * 1024)
        if n & 3 == 3:
            k.adv(S_C, 4096 if n & 4 == 0 else 4096 * 7)
        if n == 11:
            operm(0)
    e("s_cmp_ge_u32 s3, 4")
    e("s_cbranch_scc1 L_ldB")
    base = k.vm_n
    for n in range(32):
        k.throttle(DA_ if n < o.get("ta_sw", 16) else o.get("depth_ta2", 4))
        tok["w", n >> 3] = k.ld4(R[1] + 4 * n, 28, S_A)
        k.adv(S_A, 8192 if n & 7 < 7 else 8192 * 25)
        if n == 3:
            operm(1)
            k.arrive(CNT)
        if n & 7 == 3 and n > 8:
            wperm((n >> 3) - 1)
    wperm(3)
    e("s_branch L_ldok")
    k.label("L_ldB")
    k.vm_n = base
    TT = o.get("t_t", 2)
    c = Chunk(k, TT, 0, KR=[32, 48, 64, 80], VR=[96, 112, 128, 144], QF=160, SR=176, ACC=192, X=224, VA=24, CNT=CNTB,
              sK=S_A, sV=S_D, sQ=S_B, w0=4, lds=(TBW, OB, 0), XR=16)
    k.sexpr(c.sPair, [(2, 0, 1, 3), (2, 2, None, 0)])
    k.sexpr(c.sChunk, [(2, 1, 1, 0)], 14)
    k.sexpr(c.sTile, [(2, 1, 1, 2), (3, 0, 3, 0)])
    e(f"s_mul_i32 s{c.sTile}, s{c.sTile}, {TT}")
    e(f"s_add_u32 s{c.sTile}, s{c.sTile}, {512 - 32 * o.get('a_t', 1) - 8 * TT}")
    c.setup()
    c.qaddr()
    DC = o.get("depth_tc", 3)
    c.kload(0, DC)
    operm(1)
    k.arrive(CNT)
    qtok = c.qissue(True)
    for t in range(1, TT):
        c.kload(t, DC)
    c.vload(0, DC)
    c.qpiece(qtok)
    c.vload(1, DC)
    c.qread()
    k.lgwait()
    for t in range(TT):
        c.qk(t)
    if TT > 2:
        c.vload(2, DC)
    c.softmax()
    if TT > 3:
        c.vload(3, DC)
    c.pv(0, 2, first=True)
    c.factor(32)
    if TT > 2:
        c.pv(2, TT - 2)
    k.remap = {8: 7, 9: 8}
    c.finish(32, 8)
    k.remap = {11: 2, 12: 3}
    k.label("L_ldok")
    e(f"v_bfe_u32 v26, v{V_N}, 2, 1")
    e("v_lshlrev_b32 v25, 8, v26")
    e(f"v_lshl_add_u32 v25, v{V_J}, 4, v25")
    e("v_lshlrev_b32 v24, 3, v0")
    e(f"s_lshr_b32 s{S_P+1}, s3, 2")
    k.sexpr(S_TMP, [(S_P + 1, 0, None, 17), (3, 0, 3, 15), (2, 0, None, 7)])
    k.addr(S_C, S_WS, S_TMP, WS_OUTP)
    e(f"v_lshrrev_b32 v4, 1, v{V_N}")
    e("v_lshlrev_b32 v4, 12, v4")
    e(f"v_and_b32 v5, 1, v{V_N}")
    e("v_lshl_add_u32 v4, v5, 5, v4")
    e(f"v_and_b32 v5, 1, v{V_J}")
    e("v_lshl_add_u32 v4, v5, 6, v4")
    e(f"v_lshrrev_b32 v5, 1, v{V_J}")
    e("v_lshl_add_u32 v23, v5, 4, v4")
    e(f"s_mov_b32 s{S_D}, 0")
    e(f"s_mov_b32 s{S_D+1}, -1")
    k.sexpr(S_TMP, [(S_P + 1, 0, None, 17), (2, 0, None, 12)])
    k.addr(SF, S_WS, S_TMP, WS_OUTP)
    k.sexpr(S_TMP, [(S_P + 1, 0, None, 10), (2, 0, None, 5)])
    k.addr(SO, S_OUT, S_TMP)
    e("v_bfe_u32 v4, v0, 2, 1")
    e("v_lshlrev_b32 v4, 11, v4")
    e("v_and_b32 v5, 3, v0")
    e("v_lshl_add_u32 v27, v5, 3, v4")
    e("v_bfe_u32 v4, v0, 4, 1")
    e("v_lshl_add_u32 v27, v4, 2, v27")
    e("v_lshrrev_b32 v4, 5, v0")
    e("v_lshl_add_u32 v27, v4, 1, v27")
    if o.get("touch", 0) & 1:
        k.sexpr(S_TMP, [(3, 0, 3, 10)])
        e(f"v_add_u32 v4, s{S_TMP}, v31")
        k.ld4(12, 4, SF, 0, "sc1")
    k.stamp(4)
    X = R[4]
    PA = [R[6] + 8 * kg for kg in range(4)]
    PD = [R[5] + 16 + 4 * i for i in range(4)] + [R[6] + 4 + 8 * i for i in range(4)]

    def proj():
        for kg in range(4):
            for i in range(8):
                d = vr(PD[i], 4)
                e(f"v_mfma_f32_16x16x32_bf16 {d}, {vr(PA[kg],4)}, {vr(R[kg]+4*i,4)}, {'0' if kg == 0 else d}")

    def publish():
        for i in range(4):
            e(f"v_cndmask_b32 v{8+i}, v{PD[i]}, v{PD[4+i]}, {sr(S_D)}")
        k.tag4(8)
        k.vm(f"global_store_dwordx4 v23, v[8:11], {sr(S_C)} sc1")

    e("s_cmp_ge_u32 s3, 4")
    e("s_cbranch_scc1 L_tailB")
    base = k.vm_n
    e(f"s_lshl_b32 s{S_TMP}, s2, {3 if o.get('lt', 1) else 9}")
    k.addr(S_A, S_WS, S_TMP, WS_LSEA)
    e(f"v_lshlrev_b32 v22, {8 if o.get('lt', 1) else 3}, v0")
    k.sexpr(S_TMP, [(2, 0, None, 16), (3, 0, None, 8)])
    LB = [98, 100, sW, S_B]
    k.addr(LB[0], S_WS, S_TMP, WS_LATP)
    for i in range(1, 4):
        k.addr(LB[i], LB[0], None, (i >> 1) * 32768 + (i & 1) * 4096)
    sIss, sBlk = 92, 94
    top, done = k.newlabel("L_lat"), k.newlabel("L_latok")
    e(f"s_mov_b64 {sr(sIss)}, 0")
    e(f"v_lshlrev_b32 v21, 3, v{V_J}")
    e(f"s_mov_b32 s{S_SPIN}, {SPIN_MAX}")
    sN = 91
    k.await_cnt(CNT, 8)
    if o.get("go", 0):
        e(f"s_lshl_b32 s{S_TMP}, s2, 7")
        k.addr(S_P + 5, S_WS, S_TMP, WS_GO)
        e("v_mov_b32 v4, 0")

        def gopoll():
            k.poll(lambda: k.vm(f"global_load_dword v9, v4, {sr(S_P + 5)} sc1"), lambda: e(f"v_cmp_ne_u32 {sr(S_BAD)}, v9, v{V_T}"))
            k.arrive(CNT + 12)

        k.when("s_cmp_eq_u32 s3, 0", gopoll)
        k.await_cnt(CNT + 12, 1)
    e(f"s_mov_b32 s{S_SPIN}, {SPIN_MAX}")
    k.cond += 1
    k.vm(f"global_load_dwordx2 v[8:9], v22, {sr(S_A)} sc1")
    e(f"s_mov_b32 s{sN}, 0")
    k.label(top)
    e(f"s_sub_u32 s{S_SPIN}, s{S_SPIN}, 1")
    e(f"s_cbranch_scc1 {done}")
    if o.get("dbg_sleep"):
        e(f"s_sleep {o['dbg_sleep']}")
    got = k.newlabel("L_lw")
    for n in (8, 4, 2, 1):
        e(f"s_waitcnt vmcnt({n})")
        e(f"s_cmp_ge_u32 s{sN}, {n}")
        e(f"s_cbranch_scc1 {got}")
    e("s_waitcnt vmcnt(0)")
    k.label(got)
    e(f"v_cmp_ne_u32 {sr(S_BAD)}, v9, v{V_T}")
    e("v_mov_b32 v12, v8")
    e(f"s_mov_b32 s{sN}, 0")
    k.vm(f"global_load_dwordx2 v[8:9], v22, {sr(S_A)} sc1")
    e(f"s_nor_b64 {sr(sBlk)}, {sr(S_BAD)}, {sr(sIss)}")
    e(f"s_cbranch_scc0 {top}")
    e(f"s_or_b64 {sr(sIss)}, {sr(sIss)}, {sr(sBlk)}")
    for b_ in range(2):
        skb = k.newlabel("L_lskb")
        e(f"s_cmp_eq_u32 s{sBlk+b_}, 0")
        e(f"s_cbranch_scc1 {skb}")
        e(f"v_lshrrev_b32 v10, v21, s{sBlk+b_}")
        for t in range(8):
            sk = k.newlabel("L_lsk")
            e(f"v_and_b32 v11, {1 << t}, v10")
            e(f"v_cmp_ne_u32 vcc, 0, v11")
            e(f"s_and_saveexec_b64 {sr(S_TMP)}, vcc")
            e(f"s_cbranch_execz {sk}")
            k.ld4(R[5] + 32 * b_ + 4 * t, 29, LB[2 * b_ + (t >> 2)], (t & 3) * 1024, ['sc1', 'sc1 nt', 'sc0 sc1 nt'][o.get('lat_ld', 1)])
            e(f"s_add_u32 s{sN}, s{sN}, 1")
            k.label(sk)
            k.exec_all()
        k.label(skb)
    e(f"s_cmp_lg_u64 {sr(sIss)}, -1")
    e(f"s_cbranch_scc1 {top}")
    k.cond -= 1
    k.label(done)
    k.stamp(5)
    if o.get("prio", 0):
        e("s_setprio 2")

    def red32(op, r, tmp):
        for sh in (8, 4, 2, 1):
            e(f"{op}_dpp v{r}, v{r}, v{r} row_ror:{sh} row_mask:0xf bank_mask:0xf")
        k.xrow(op, [r], [tmp], (16,))

    e("v_mov_b32 v10, v12")
    red32("v_max_f32", 10, 11)
    e("v_sub_f32 v12, v12, v10")
    e("v_exp_f32 v12, v12")
    e("v_lshrrev_b32 v4, 5, v0")
    e("v_mov_b32 v10, v12")
    red32("v_add_f32", 10, 11)
    e("v_rcp_f32 v10, v10")
    e("v_lshlrev_b32 v4, 7, v4")
    e("v_mul_f32 v12, v12, v10")
    e("v_cvt_pk_bf16_f32 v13, v12, v12")
    e("v_and_b32 v10, 0xffff0000, v13")
    e("v_sub_f32 v12, v12, v10")
    e("v_cvt_pk_bf16_f32 v10, v12, v12")
    e("v_and_b32 v5, 31, v0")
    e("v_lshl_add_u32 v4, v5, 1, v4")
    e(f"v_add_u32 v4, s{S_P}, v4")
    k.ds("ds_write_b16 v4, v13")
    k.ds("ds_write_b16 v4, v10 offset:64")
    e(f"v_and_b32 v4, 1, v{V_N}")
    e("v_lshlrev_b32 v4, 6, v4")
    e(f"v_lshl_add_u32 v4, v{V_J}, 4, v4")
    e(f"v_add_u32 v4, s{S_P}, v4")
    k.lgwait()
    k.ds(f"ds_read_b128 {vr(R[4]+24,4)}, v4")
    k.ds("ds_read_b128 v[12:15], v4 offset:128")
    e(f"v_lshlrev_b32 v4, 4, v{V_N}")
    e(f"v_add_u32 v4, s{S_P}, v4")
    e(f"v_add_u32 v5, s{S_P}, v25")
    k.lgwait()
    e("s_waitcnt vmcnt(0)")
    k.stamp(6)
    for i in range(4):
        e(f"v_mov_b32 v{8+i}, v{R[4]+24+i}")
    for b_ in range(2):
        for i in range(8):
            x = 16
            k.frag(x, R[5 + b_], i, 8)
            e(f"v_mfma_f32_16x16x32_bf16 {vr(X+4*i,4)}, {vr(8+4*b_,4)}, {vr(x,4)}, 0")
        for i in range(8):
            e(f"v_add_f32 v{X+4*i}, v{X+4*i}, v{X+4*i+1}")
        for i in range(4):
            e(f"v_cvt_pk_bf16_f32 v{R[5+b_]+i}, v{X+8*i}, v{X+8*i+4}")
        k.exec_set(0xffff, 0)
        k.ds(f"ds_write_b128 v4, {vr(R[5+b_],4)} offset:{256+b_*256}")
        k.exec_all()
    k.lgwait()
    AF = R[5]
    for kg in range(4):
        k.ds(f"ds_read_b128 {vr(AF+4*kg,4)}, v5 offset:{256+kg*64}")
    k.sexpr(S_TMP, [(3, 0, None, 10)], CS)
    e(f"v_lshlrev_b32 v4, 5, v{V_N}")
    e(f"v_lshl_add_u32 v4, v{V_J}, 9, v4")
    e(f"v_add_u32 v4, s{S_TMP}, v4")
    k.lgwait()
    for kg in range(4):
        for i in range(8):
            d = vr(X + 4 * i, 4)
            e(f"v_mfma_f32_16x16x32_bf16 {d}, {vr(AF+4*kg,4)}, {vr(R[kg]+4*i,4)}, {'0' if kg == 0 else d}")
    k.sexpr(S_TMP, [(3, 0, None, 15)], WOL)
    e(f"v_add_u32 v30, s{S_TMP}, v31")
    k.exec_set(0xffffffff, 0)
    for i in range(0, 8, 2):
        k.ds(f"ds_write2_b32 v4, v{X+4*i}, v{X+4*i+4} offset0:{i} offset1:{i+1}")
    k.arrive(CNT + 4)
    for f in range(32):
        k.ds(f"ds_read_b128 {vr(R[0]+4*f,4)}, v30 offset:{f*1024}")
    e(f"v_add_u32 v4, {CS}, v31")
    k.stamp(12)
    k.await_cnt(CNT + 4, 4)
    k.stamp(11)
    for w in range(4):
        k.ds(f"ds_read_b128 {vr(X+4*w,4)}, v4 offset:{w*1024}")
    e(f"v_add_u32 v4, s{S_P}, v24")
    k.lgwait()
    k.tree_add4(X, 4)
    e(f"v_cvt_pk_bf16_f32 v8, v{X}, v{X+1}")
    e(f"v_cvt_pk_bf16_f32 v9, v{X+2}, v{X+3}")
    k.ds("ds_write_b64 v4, v[8:9]")
    k.lgwait()
    for kg in range(4):
        k.ds(f"ds_read_b128 {vr(PA[kg],4)}, v5 offset:{kg*64}")
    k.lgwait()
    proj()
    e("s_branch L_proj")
    k.c("================ GQA tail")
    k.label("L_tailB")
    k.vm_n = base
    Y = R[4]

    def issue_o(i):
        for c in range(4):
            k.ld4(Y + 16 * i + 4 * c, 21 - (c >> 1), S_B, (c & 1) * 512, "sc1")

    def check_o(i):
        k.chkn([Y + 16 * i + 4 * c for c in range(4)], 6, 7)

    def comb(i):
        k.untag(Y + 16 * i, 16)
        k.lgwait()
        for r in range(4):
            e(f"v_mul_f32 v{8+r}, v12, v{Y+16*i+r}")
        for c in range(1, 4):
            for r in range(4):
                e(f"v_fmac_f32 v{8+r}, v{12+c}, v{Y+16*i+4*c+r}")

    e(f"s_lshl_b32 s{S_TMP}, s2, 9")
    k.addr(S_A, S_WS, S_TMP, WS_LSEB)
    e("v_lshrrev_b32 v4, 5, v0")
    e("v_lshlrev_b32 v5, 8, v4")
    e(f"v_min_u32 v6, {NCB-1}, v{V_N}")
    e("v_lshl_add_u32 v22, v6, 4, v5")
    e(f"v_cmp_gt_u32 {sr(98)}, {NCB}, v{V_N}")
    e(f"s_mul_i32 s{S_TMP}, s2, {2*NCB*512}")
    k.sexpr(S_P + 2, [(3, 0, 3, 11)])
    e(f"s_add_u32 s{S_TMP}, s{S_TMP}, s{S_P+2}")
    k.addr(S_B, S_WS, S_TMP, WS_OP)
    e(f"v_mul_u32_u24 v4, {NCB*512}, v4")
    e("v_and_b32 v5, 31, v0")
    e("v_lshl_add_u32 v21, v5, 4, v4")
    e("v_add_u32 v20, 0x400, v21")
    k.sexpr(S_TMP, [(3, 0, 3, 8)], TBW)
    e(f"v_lshlrev_b32 v4, 2, v0")
    e(f"v_add_u32 v19, s{S_TMP}, v4")
    e("v_lshrrev_b32 v4, 5, v0")
    e("v_lshlrev_b32 v4, 7, v4")
    k.sexpr(S_P + 2, [(3, 0, 3, 4), (S_TMP, 0, None, 0)])
    e(f"v_add_u32 v18, s{S_P+2}, v4")
    k.sexpr(S_TMP, [(3, 0, 3, 9)], OB)
    e(f"v_add_u32 v17, s{S_TMP}, v24")
    e(f"v_and_b32 v4, 3, v{V_N}")
    e("v_lshl_add_u32 v4, v4, 9, v25")
    e(f"v_add_u32 v16, {OB}, v4")
    if o.get("touch", 0) & 2:
        issue_o(0)
    k.poll_pipe(o.get("np_l", 1), 1, lambda i: k.ld4(Y + 48 + 4 * i, 22, S_A, 0, "sc1"), lambda i: k.chk_full(Y + 48 + 4 * i, 6, 7),
                lambda i: e(f"v_and_b32 v8, s{S_X2}, v{Y+48+4*i}"))
    e("v_mov_b32 v9, 0xff800000")
    e(f"v_cndmask_b32 v8, v9, v8, {sr(98)}")
    e("v_mov_b32 v10, v8")
    for sh in (8, 4, 2, 1):
        e(f"v_max_f32_dpp v10, v10, v10 row_ror:{sh} row_mask:0xf bank_mask:0xf")
    e("v_sub_f32 v8, v8, v10")
    e("v_exp_f32 v8, v8")
    e("v_mov_b32 v10, v8")
    for sh in (8, 4, 2, 1):
        e(f"v_add_f32_dpp v10, v10, v10 row_ror:{sh} row_mask:0xf bank_mask:0xf")
    e("v_rcp_f32 v10, v10")
    e("v_mul_f32 v8, v8, v10")
    k.ds("ds_write_b32 v19, v8")
    k.lgwait()
    k.ds("ds_read_b128 v[12:15], v18")
    k.stamp(7)

    k.poll_pipe(o.get("np_o", 1), 4, issue_o, check_o, comb)
    k.stamp(8)
    e("v_cvt_pk_bf16_f32 v8, v8, v9")
    e("v_cvt_pk_bf16_f32 v9, v10, v11")
    k.ds("ds_write_b64 v17, v[8:9]")
    k.arrive(CNTB)
    k.await_cnt(CNTB, 4)
    k.stamp(11)
    if o.get("prio", 0):
        e("s_setprio 3")
    for kg in range(4):
        k.ds(f"ds_read_b128 {vr(PA[kg],4)}, v16 offset:{kg*64}")
    k.lgwait()

    def rowsum(i):
        e(f"v_add_f32 v{PD[i]}, v{PD[i]}, v{PD[i]+1}")
        e(f"v_add_f32 v{PD[i]+2}, v{PD[i]+2}, v{PD[i]+3}")
        e(f"v_add_f32 v{PD[i]}, v{PD[i]}, v{PD[i]+2}")

    for i in range(8):
        for kg in range(4):
            d = vr(PD[i], 4)
            e(f"v_mfma_f32_16x16x32_bf16 {d}, {vr(PA[kg],4)}, {vr(R[kg]+4*i,4)}, {'0' if kg == 0 else d}")
            if i >= 2 and kg == 1:
                rowsum(i - 2)
    rowsum(6)
    rowsum(7)
    k.c("================ publish the head's partial output, final sum over heads")
    k.label("L_proj")
    publish()
    k.stamp(9)
    e("s_and_b32 s62, s3, 3")
    e("s_cbranch_scc1 L_fin")
    F = R[0]

    def issue(i):
        for q in range(4):
            k.ld4(F + 16 * i + 4 * q, 31, SF, q * 1024, "sc1")

    def check(i):
        k.chkn([F + 16 * i + 4 * q for q in range(4)], 6, 7)

    def fin(i):
        k.untag(F + 16 * i, 16)
        for r in range(8):
            e(f"v_add_f32 v{12+r}, v{F+16*i+r}, v{F+16*i+8+r}")

    lab, lab2 = k.newlabel("L_fa"), k.newlabel("L_fb")
    e("s_cmp_eq_u32 s3, 0")
    e(f"s_cbranch_scc1 {lab}")
    k.poll_pipe(o.get("np_f", 1), 4, issue, check, fin)
    e(f"s_branch {lab2}")
    k.label(lab)
    k.poll_pipe(1, 4, issue, check, fin)
    k.label(lab2)
    k.stamp(10)
    k.tree_add4(12, 2)
    e("v_permlane32_swap_b32 v12, v13")
    e("v_permlane32_swap_b32 v14, v15")
    e("v_add_f32 v12, v12, v13")
    e("v_add_f32 v14, v14, v15")
    e("v_permlane16_swap_b32 v12, v14")
    e("v_add_f32 v12, v12, v14")
    e("v_add_f32_dpp v12, v12, v12 row_ror:8 row_mask:0xf bank_mask:0xf")
    e("v_cvt_pk_bf16_f32 v12, v12, v12")
    k.exec_set(0x00ff00ff, 0x00ff00ff)
    k.vm(f"global_store_short v27, v12, {sr(SO)}")
    e(f"s_or_b32 s{S_TMP}, s2, s3")
    e(f"s_cmp_lg_u32 s{S_TMP}, 0")
    e("s_cbranch_scc1 L_fin")
    k.exec_set(1, 0)
    e("v_mov_b32 v4, 0")
    k.vm(f"global_store_dword v4, v{V_T}, {sr(S_WS)}")
    e("s_branch L_fin")


def finish(k):
    e = k.e
    k.label("L_fin")
    if k.o.get("stamps"):
        k.exec_all()
        k.stamp(15)
        k.sexpr(S_TMP, [(S_DBG, 0, None, 7)])
        e(f"s_load_dwordx2 {sr(S_WS)}, s[0:1], 104")
        e("s_waitcnt lgkmcnt(0)")
        k.addr(S_A, S_WS, S_TMP, WS_STAMP)
        e("s_waitcnt lgkmcnt(0)")
        e("v_mov_b32 v4, 0")
        k.exec_set(1, 0)
        for i in range(8):
            for q in range(4):
                e(f"v_mov_b32 v{8+q}, s{S_STAMP+4*i+q}")
            e(f"global_store_dwordx4 v4, v[8:11], {sr(S_A)} offset:{i*16}")
    k.label("L_end")
    e("s_endpgm")


def tile_table(o):
    late, par, b2 = o.get("adj_late", 0), o.get("adj_par", 0), o.get("adj_b2", -2 if o.get("t_one", 0) else 0)
    tot = 512 - 32 * o.get("a_t", 1) - 8 * o.get("t_t", 2)
    kind = lambda i: (i >= 128, (i & 7) >= 4, (i >> 3) & 1 if i < 128 else 0)
    members = [[] for _ in range(16)]
    for i in range(NB):
        members[(((i >> 4) if i < 128 else (i >> 3)) & 1) * 8 + (i & 7)].append(i)
    out = [0] * NB
    n2 = o.get("n2", 30)
    for p, m in enumerate(members):
        w = []
        for i in m:
            isb2, isl, odd = kind(i)
            ae, ao = o.get("adj_e", 0), o.get("adj_o", 0)
            w.append(n2 if isb2 else (tot - 2 * n2) / 8 + ((ae if odd else -ae) if isl else 0))
        n = [int(v // 1) for v in w]
        for j in sorted(range(10), key=lambda j: n[j] - w[j])[:tot - sum(n)]:
            n[j] += 1
        assert sum(n) == tot
        st = 0
        for ch, (i, v) in enumerate(zip(m, n)):
            lo = 24 if i >= 128 else 40
            assert lo <= v <= (32 if i >= 128 else 56)
            out[i] = st | min(v - lo, 8) << 16 | max(v - lo - 8, 0) << 20 | p << 24 | ch << 28
            st += v
    return out


def generate(**opt):
    k = K(opt)
    head = [l.rstrip("\n") for l in open(REF) if l.startswith(";") and "@launch" not in l and "Override" not in l and "grid=ceil" not in l]
    L = k.L
    L += head
    L += ABOUT.split("\n")
    L.append("; @launch grid=(256,1,1) block=(512,1,1) lds=163840")
    L.append('.amdgcn_target "amdgcn-amd-amdhsa--gfx950"')
    L += [".text", f".globl {NAME}_kernel", ".p2align 8", f".type {NAME}_kernel,@function", f"{NAME}_kernel:"]
    if opt.get("stamps"):
        for r in range(S_STAMP, S_STAMP + 32):
            k.e(f"s_mov_b32 s{r}, 0")
    k.prologue()
    k.e(f"s_cmp_ge_u32 s2, {NT+NA}")
    k.e("s_cbranch_scc1 L_roleB")
    k.e(f"s_cmp_ge_u32 s2, {NT}")
    k.e("s_cbranch_scc1 L_roleA")
    base = k.vm_n
    role_T(k)
    k.vm_n = base
    k.remap = {}
    role_A(k)
    k.vm_n = base
    role_B(k)
    finish(k)
    L.append(".p2align 2")
    L.append(".type L_tiles,@object")
    L.append("L_tiles:")
    L += [f".long {w:#x}" for w in tile_table(opt)]
    L += ['.section .rodata,"a"', ".p2align 6", f".amdhsa_kernel {NAME}_kernel",
          "  .amdhsa_next_free_vgpr 256", "  .amdhsa_next_free_sgpr 102", "  .amdhsa_accum_offset 256",
          "  .amdhsa_group_segment_fixed_size 0", "  .amdhsa_kernarg_size 112", "  .amdhsa_user_sgpr_count 2",
          "  .amdhsa_user_sgpr_kernarg_segment_ptr 1", "  .amdhsa_system_sgpr_workgroup_id_x 1", ".end_amdhsa_kernel"]
    return k.text()


if __name__ == "__main__":
    opt = {}
    for a in sys.argv[2:]:
        kk, v = a.split("=")
        opt[kk] = int(v)
    open(sys.argv[1], "w").write(generate(**opt))
```

```python
import sys, struct
from asmlib import Gen, vr, sr

NAME = "concat_heads__compressed_kv_cla__gqa_block_cached__decode"
REF = "cdna_kernels/" + NAME + ".s.ref"

NT, NA, NB = 32, 64, 160
WOL, TBW, OB, CNTB = 32768, 26624, 27648, 29696
NCB = 16
WS_QP = 0x010000
WS_QA = 0x060000
WS_LSEA = 0x090000
WS_GO = 0x098000
WS_XID = 0x09C000
WS_LSEB = 0x0A0000
WS_OP = 0x0B0000
WS_OUTP = 0x140000
WS_LATP = 0x200000
WS_STAMP = 128 << 20
SCALE = (128 ** -0.5) * 1.4426950408889634

ABOUT = """;
; Hand-offs between workgroups go through d_ws; every piece carries this launch's tag (previous tag + 0x01010101,
;"""


def f2u(x):
    return struct.unpack("<I", struct.pack("<f", x))[0]


S_AX, S_CKV, S_WQA, S_WUK, S_WUV, S_WOA, S_BX, S_K, S_V, S_WQB, S_WOB, S_OUT, S_DBG, S_WS = range(4, 32, 2)
S_E, S_T = 32, 33
S_SEL = 34
S_LO, S_HI = 38, 39
S_A, S_B, S_C, S_D = 40, 42, 44, 46
S_X0, S_X1, S_X2 = 48, 49, 50
S_SC = 51
S_SPIN = 52
S_P = 53
S_BAD = 60
S_TMP = 62
S_STAMP = 64
S_EVEN = 96
S_SL = 100
S_LOC = 90
V_L, V_N, V_J, V_T = 0, 1, 2, 3
SPIN_MAX = 1 << 18
PUBW = 7


class K(Gen):
    def __init__(self, opt):
        super().__init__()
        self.o = opt
        self.remap = {}
        self.role7 = False

    def stamp(self, k):
        if self.o.get("stamps"):
            self.e(f"s_memrealtime {sr(S_STAMP + 2 * self.remap.get(k, k))}")

    def addr(self, dst, base, off_s=None, off_i=0):
        if off_s is not None:
            self.e(f"s_add_u32 s{dst}, s{base}, s{off_s}")
            self.e(f"s_addc_u32 s{dst+1}, s{base+1}, 0")
            base = dst
        if off_i or off_s is None:
            self.e(f"s_add_u32 s{dst}, s{base}, {off_i}")
            self.e(f"s_addc_u32 s{dst+1}, s{base+1}, 0")

    def adv(self, a, n):
        self.e(f"s_add_u32 s{a}, s{a}, {n}")
        self.e(f"s_addc_u32 s{a+1}, s{a+1}, 0")

    def sexpr(self, dst, terms, const=0):
        first = True
        for reg, shr, mask, shl in terms:
            t = dst if first else S_TMP + 1
            src = reg
            if shr:
                self.e(f"s_lshr_b32 s{t}, s{src}, {shr}"); src = t
            if mask is not None:
                self.e(f"s_and_b32 s{t}, s{src}, {mask}"); src = t
            if shl or src != t:
                self.e(f"s_lshl_b32 s{t}, s{src}, {shl}")
            if not first:
                self.e(f"s_add_u32 s{dst}, s{dst}, s{t}")
            first = False
        if const:
            self.e(f"s_add_u32 s{dst}, s{dst}, {const}")

    def ld4(self, dst, voff, sbase, off=0, fl="nt"):
        return self.vm(f"global_load_dwordx4 {vr(dst,4)}, v{voff}, {sr(sbase)} offset:{off} {fl}")

    def throttle(self, d):
        if d:
            self.e(f"s_waitcnt vmcnt({d-1})")

    def tag4(self, r):
        for k in range(4):
            self.e(f"v_perm_b32 v{r+k}, v{r+k}, v{V_T}, s{S_SEL+k}")

    def untag(self, r, n=4):
        for i in range(n):
            self.e(f"v_and_b32 v{r+i}, s{S_X2}, v{r+i}")

    def chkn(self, regs, acc, tmp):
        if self.o.get("nodep"):
            self.e(f"s_mov_b64 {sr(S_BAD)}, 0")
            return
        for i, r in enumerate(regs):
            self.e(f"v_perm_b32 v{tmp}, v{r+3}, v{r}, s{S_X0}")
            if len(regs) == 1:
                self.e(f"v_cmp_ne_u32 {sr(S_BAD)}, s{S_X1}, v{tmp}")
                return
            if i == 0:
                self.e(f"v_xor_b32 v{acc}, s{S_X1}, v{tmp}")
            else:
                self.e(f"v_xad_u32 v{acc}, v{tmp}, s{S_X1}, v{acc}")
        self.e(f"v_cmp_ne_u32 {sr(S_BAD)}, 0, v{acc}")

    def chk4(self, r, tmp, first):
        self.chkn([r], tmp, tmp)

    def chk_full(self, r, a, b):
        if self.o.get("nodep"):
            self.e(f"s_mov_b64 {sr(S_BAD)}, 0")
            return
        self.e(f"v_perm_b32 v{a}, v{r+1}, v{r}, s{S_X0}")
        self.e(f"v_perm_b32 v{b}, v{r+3}, v{r+2}, s{S_X0}")
        self.e(f"v_lshl_or_b32 v{a}, v{b}, 16, v{a}")
        self.e(f"v_cmp_ne_u32 {sr(S_BAD)}, v{a}, v{V_T}")

    def poll(self, issue, check, pre_issued=None, light=None):
        top, done = self.newlabel("L_poll"), self.newlabel("L_got")
        self.e(f"s_mov_b32 s{S_SPIN}, {SPIN_MAX}")
        if pre_issued is not None:
            self.vmwait(pre_issued)
            check()
            self.e(f"s_cmp_eq_u64 {sr(S_BAD)}, 0")
            self.e(f"s_cbranch_scc1 {done}")
        self.label(top)
        self.cond += 1
        self.e(f"s_sub_u32 s{S_SPIN}, s{S_SPIN}, 1")
        self.e(f"s_cbranch_scc1 {done}")
        if light:
            light[0]()
            self.e("s_waitcnt vmcnt(0)")
            light[1]()
            self.e(f"s_cmp_eq_u64 {sr(S_BAD)}, 0")
            self.e(f"s_cbranch_scc0 {top}")
        issue()
        self.e("s_waitcnt vmcnt(0)")
        check()
        self.cond -= 1
        self.e(f"s_cmp_eq_u64 {sr(S_BAD)}, 0")
        self.e(f"s_cbranch_scc0 {top}")
        self.label(done)

    def poll_pipe(self, nset, nld, issue, check, finish):
        top, done = self.newlabel("L_pp"), self.newlabel("L_ppok")
        oks = [self.newlabel("L_ppv") for _ in range(nset)]
        self.cond += 1
        self.e(f"s_mov_b32 s{S_SPIN}, {SPIN_MAX}")
        for i in range(nset - 1):
            issue(i)
        self.label(top)
        if self.o.get("dbg_sleep2") and nld == 1:
            self.e(f"s_sleep {self.o['dbg_sleep2']}")
        for i in range(nset):
            issue((i + nset - 1) % nset)
            self.e(f"s_waitcnt vmcnt({nld * (nset - 1)})")
            check(i)
            self.e(f"s_cmp_eq_u64 {sr(S_BAD)}, 0")
            self.e(f"s_cbranch_scc1 {oks[i]}")
        self.e(f"s_sub_u32 s{S_SPIN}, s{S_SPIN}, 1")
        self.e(f"s_cbranch_scc0 {top}")
        for i in reversed(range(nset)):
            self.label(oks[i])
            finish(i)
            if i:
                self.e(f"s_branch {done}")
        self.label(done)
        self.cond -= 1

    def when(self, cmp, fn):
        lab = self.newlabel("L_skip")
        self.e(cmp)
        self.e(f"s_cbranch_scc0 {lab}")
        self.cond += 1
        fn()
        self.cond -= 1
        self.label(lab)

    def arrive(self, cnt):
        self.e("v_mov_b32 v6, 1")
        self.e(f"v_mov_b32 v7, {cnt}")
        self.exec_set(1, 0)
        self.ds("ds_add_u32 v7, v6")
        self.exec_all()

    def await_cnt(self, cnt, n):
        top, done = self.newlabel("L_cnt"), self.newlabel("L_cntok")
        e = self.e
        e(f"v_mov_b32 v7, {cnt}")
        e(f"s_mov_b32 s{S_SPIN}, {SPIN_MAX*16}")
        self.label(top)
        if self.o.get("dbg_sleep3"):
            e(f"s_sleep {self.o['dbg_sleep3']}")
        e("ds_read_b32 v6, v7")
        e(f"s_sub_u32 s{S_SPIN}, s{S_SPIN}, 1")
        e(f"s_cbranch_scc1 {done}")
        e("s_waitcnt lgkmcnt(0)")
        e(f"v_readfirstlane_b32 s{S_TMP}, v6")
        e(f"s_cmp_lt_u32 s{S_TMP}, {n}")
        e(f"s_cbranch_scc1 {top}")
        self.label(done)

    def xrow(self, op, regs, tmps, which=(16, 32)):
        for w in which:
            for r, t in zip(regs, tmps):
                self.e(f"v_mov_b32 v{t}, v{r}")
            for r, t in zip(regs, tmps):
                self.e(f"v_permlane{w}_swap_b32 v{t}, v{r}")
            for r, t in zip(regs, tmps):
                self.e(f"{op} v{r}, v{r}, v{t}")

    def frag(self, dst, raw, i, nld):
        for p in range(nld // 2):
            self.e(f"v_perm_b32 v{dst+p}, v{raw + 4*(2*p+1) + (i >> 1)}, v{raw + 4*(2*p) + (i >> 1)}, s{S_HI if i & 1 else S_LO}")

    def swap_pairs(self, pairs):
        dpp = "quad_perm:[1,0,3,2] row_mask:0xf bank_mask:0xf"
        self.e(f"s_mov_b64 vcc, {sr(S_EVEN)}")
        for d, a, b in pairs:
            for k in range(4):
                self.e(f"v_cndmask_b32_dpp v{d+k}, v{b+k}, v{a+k}, vcc {dpp}")
                self.e(f"v_xor_b32 v{a+k}, v{a+k}, v{d+k}")
            for k in range(4):
                self.e(f"v_xor_b32_dpp v{b+k}, v{a+k}, v{b+k} {dpp}")

    def tree_add4(self, r, n):
        st = n // 2
        while st:
            for w in range(st):
                for k in range(4):
                    self.e(f"v_add_f32 v{r+4*w+k}, v{r+4*w+k}, v{r+4*(w+st)+k}")
            st //= 2

    def chain(self, op3, op2, dst, regs):
        regs = list(regs)
        if len(regs) >= 3 and op3:
            self.e(f"{op3} v{dst}, v{regs[0]}, v{regs[1]}, v{regs[2]}")
            rest = regs[3:]
            while len(rest) >= 2:
                self.e(f"{op3} v{dst}, v{dst}, v{rest[0]}, v{rest[1]}")
                rest = rest[2:]
        else:
            self.e(f"{op2} v{dst}, v{regs[0]}, v{regs[1]}")
            rest = regs[2:]
        for r in rest:
            self.e(f"{op2} v{dst}, v{dst}, v{r}")

    def exec_set(self, lo, hi):
        self.e(f"s_mov_b32 exec_lo, {lo:#x}")
        self.e(f"s_mov_b32 exec_hi, {hi:#x}")

    def exec_all(self):
        self.e("s_mov_b64 exec, -1")

    def prologue(self):
        e = self.e
        e("s_cmp_ge_u32 s2, 256")
        e("s_cbranch_scc1 L_end")
        self.stamp(0)
        if self.o.get("stamps"):
            pass
        e("s_load_dwordx16 s[4:19], s[0:1], 0")
        e("s_load_dwordx8 s[20:27], s[0:1], 64")
        e("s_load_dwordx4 s[28:31], s[0:1], 96")
        e("v_lshrrev_b32 v4, 6, v0")
        e("v_and_b32 v0, 63, v0")
        e("v_readfirstlane_b32 s3, v4")
        e(f"v_and_b32 v{V_N}, 15, v0")
        e(f"v_lshrrev_b32 v{V_J}, 4, v0")

    def consts(self):
        e = self.e
        if self.o.get("wsoff"):
            self.adv(S_WS, self.o["wsoff"] << 20)
        e(f"s_load_dword s{S_E}, {sr(S_WS)}, 0")
        if self.o.get("cpf"):
            def pf():
                lab = self.newlabel("L_cp")
                e(f"s_getpc_b64 {sr(S_BAD)}")
                self.label(lab)
                e(f"s_sub_u32 s{S_BAD}, s{S_BAD}, {lab}-{NAME}_kernel")
                e(f"s_subb_u32 s{S_BAD+1}, s{S_BAD+1}, 0")
                self.sexpr(S_TMP, [(2, 3, None, 11)])
                e(f"s_min_u32 s{S_TMP}, s{S_TMP}, L_tiles-{NAME}_kernel-2048")
                self.addr(S_BAD, S_BAD, S_TMP)
                e("v_lshlrev_b32 v247, 5, v0")
                self.vm(f"global_load_dword v246, v247, {sr(S_BAD)}")
            self.when("s_cmp_eq_u32 s3, 1", pf)
        for k in range(4):
            e(f"s_mov_b32 s{S_SEL+k}, {0x07060500 + k:#x}")
        e(f"s_mov_b32 s{S_LO}, 0x05040100")
        e(f"s_mov_b32 s{S_HI}, 0x07060302")
        e(f"s_mov_b32 s{S_X0}, 0x0c0c0400")
        e(f"s_mov_b32 s{S_SC}, {f2u(SCALE):#x}")
        e(f"s_mov_b32 s{S_EVEN}, 0x55555555")
        e(f"s_mov_b32 s{S_EVEN+1}, 0x55555555")
        self.xid_publish(246)
        if self.o.get("stamps"):
            e(f"s_lshl_b32 s{S_DBG}, s2, 3")
            e(f"s_add_u32 s{S_DBG}, s{S_DBG}, s3")

    def bitmasks(self, r):
        e = self.e
        e("v_and_b32 v4, 3, v0")
        e("v_lshlrev_b32 v4, 3, v4")
        e(f"v_lshrrev_b32 v4, v4, v{V_T}")
        for q in range(4):
            e(f"v_bfe_u32 v5, v4, {2*q+1}, 1")
            e(f"v_bfe_u32 v{r+q}, v4, {2*q}, 1")
            e(f"v_lshl_or_b32 v{r+q}, v5, 16, v{r+q}")

    def xword(self, dst, tag):
        self.e(f"s_getreg_b32 s{S_TMP}, hwreg(HW_REG_XCC_ID)")
        self.e(f"s_and_b32 s{S_TMP}, s{S_TMP}, 15")
        self.e(f"s_and_b32 s{dst}, s{tag}, -16")
        self.e(f"s_or_b32 s{dst}, s{dst}, s{S_TMP}")

    def xid_publish(self, r):
        def go():
            e = self.e
            self.sexpr(S_TMP, [(2, 0, 7, 7), (2, 3, None, 2)])
            self.addr(S_BAD, S_WS, S_TMP, WS_XID)
            e("s_waitcnt lgkmcnt(0)")
            e(f"s_add_u32 s{S_LOC}, s{S_E}, 0x01010101")
            self.xword(S_LOC, S_LOC)
            e(f"v_mov_b32 v{r}, 0")
            e(f"v_mov_b32 v{r+1}, s{S_LOC}")
            self.exec_set(1, 0)
            self.vm(f"global_store_dword v{r}, v{r+1}, {sr(S_BAD)}" + (" sc1" if self.o.get("xsc", 0) else ""))
            self.exec_all()
        if self.o.get("xid", 1):
            self.when(f"s_cmp_eq_u32 s3, {self.o.get('xw', 1)}", go)
        self.e(f"s_mov_b32 s{S_LOC}, {self.o.get('force', 0)}")

    def xid_load(self, r, sG):
        self.sexpr(S_TMP, [(sG, 0, 7, 7)])
        self.addr(S_BAD, S_WS, S_TMP, WS_XID)
        self.e(f"v_and_b32 v{r}, 31, v0")
        self.e(f"v_lshlrev_b32 v{r}, 2, v{r}")
        return self.vm(f"global_load_dword v{r}, v{r}, {sr(S_BAD)} sc1")

    def xid_eval(self, r):
        if not self.o.get("loc", 1) or not self.o.get("xid", 1):
            return
        self.e(f"v_cmp_ne_u32 {sr(S_BAD)}, s{S_T}, v{r}")
        self.e(f"s_cmp_eq_u64 {sr(S_BAD)}, 0")
        self.e(f"s_cselect_b32 s{S_LOC}, 1, 0")

    def st_group(self, t):
        l1, l2 = self.newlabel("L_sl"), self.newlabel("L_sd")
        self.e(f"s_cmp_lg_u32 s{S_LOC}, 0")
        self.e(f"s_cbranch_scc1 {l1}")
        tok = self.vm(t + " sc1")
        self.e(f"s_branch {l2}")
        self.label(l1)
        self.e(t)
        self.label(l2)
        return tok

    def settag(self):
        self.e(f"s_add_u32 s{S_T}, s{S_E}, 0x01010101")
        self.e(f"v_mov_b32 v{V_T}, s{S_T}")
        self.e(f"s_lshr_b32 s{S_X1}, s{S_T}, 16")
        self.e(f"s_and_b32 s{S_X1}, s{S_X1}, 0xff00")
        self.e(f"s_and_b32 s{S_X2}, s{S_T}, 0xff")
        self.e(f"s_or_b32 s{S_X1}, s{S_X1}, s{S_X2}")
        self.e(f"s_mov_b32 s{S_X2}, 0xffffff00")
        self.xword(S_T, S_T)

    def p1_issue(self, sSl, sW, sX, xr, wr, first=True):
        e = self.e
        if first:
            e(f"v_lshlrev_b32 v4, 15, v{V_J}")
            e(f"v_lshl_add_u32 v4, v{V_N}, 4, v4")
            e(f"v_bfe_u32 v5, v{V_N}, 2, 1")
            e("v_lshlrev_b32 v5, 10, v5")
            e(f"v_lshl_add_u32 v5, v{V_J}, 3, v5")
        self.sexpr(S_TMP, [(sSl, 0, 3, 7), (3, 0, None, 4)])
        self.sexpr(S_A, [(S_TMP, 0, None, 13), (sSl, 2, 31, 8)])
        e(f"s_lshl_b32 s{S_TMP}, s{S_TMP}, 1")
        if first:
            e("s_waitcnt lgkmcnt(0)")
        sW(); sX()
        self.vm(f"global_load_dwordx2 {vr(xr, 2)}, v5, {sr(S_B)}")
        for t in range(4):
            tok = self.ld4(wr + 4 * t, 4, S_A)
            if t < 3:
                self.adv(S_A, 8192)
        if first:
            e("s_barrier")
        return tok

    def p1_plain(self, sSl, W, X, xr, wr, first=True):
        def sW():
            self.e(f"s_add_u32 s{S_A}, s{W}, s{S_A}")
            self.e(f"s_addc_u32 s{S_A+1}, s{W+1}, 0")
        return self.p1_issue(sSl, sW, lambda: self.addr(S_B, X, S_TMP), xr, wr, first)

    def p1_compute(self, sSl, tok, xr, wr, d0, X, lds=0, first=True):
        e = self.e
        e(f"v_lshlrev_b32 v4, 5, v{V_N}")
        e(f"v_lshl_add_u32 v4, v{V_J}, 9, v4")
        self.sexpr(S_TMP, [(3, 0, None, 10)], lds)
        e(f"v_add_u32 v4, s{S_TMP}, v4")
        if first and self.o.get("xid", 1) and self.o.get("xp1", 1):
            self.sexpr(S_LOC, [(sSl, 4, None, 0)])
            self.when(f"s_cmp_eq_u32 s3, {PUBW}", lambda: self.xid_load(245, S_LOC))
            e(f"s_mov_b32 s{S_LOC}, 0")
        self.vmwait(tok)
        for i in range(8):
            t = X + 2 * (i & 3)
            self.frag(t, wr, i, 4)
            e(f"v_mfma_f32_16x16x16_bf16 {vr(d0+4*i,4)}, {vr(xr,2)}, {vr(t,2)}, 0")
        self.exec_set(0xffffffff, 0)
        for i in range(0, 8, 2):
            self.ds(f"ds_write2_b32 v4, v{d0+4*i}, v{d0+4*i+4} offset0:{i} offset1:{i+1}")
        self.exec_all()
        e("s_waitcnt lgkmcnt(0)")
        if first:
            self.settag()
        e("s_barrier")

        def pub():
            e("v_lshlrev_b32 v4, 4, v0")
            for w in range(8):
                self.ds(f"ds_read_b128 {vr(d0+4*w,4)}, v4 offset:{lds+w*1024}")
            e(f"s_lshl_b32 s{S_TMP}, s{sSl}, 10")
            self.addr(S_B, S_WS, S_TMP, WS_QP)
            e("s_waitcnt lgkmcnt(0)")
            self.tree_add4(d0, 8)
            self.tag4(d0)
            if first and self.o.get("xid", 1) and self.o.get("xp1", 1):
                e("s_waitcnt vmcnt(0)")
                self.xid_eval(245)
            self.st_group(f"global_store_dwordx4 v4, {vr(d0,4)}, {sr(S_B)}")

        self.when(f"s_cmp_eq_u32 s3, {PUBW}", pub)
        if first:
            self.stamp(1)

    def p1_multi(self, offs, pre, d0, lds):
        e = self.e
        sl, raw, tok = [S_SL, S_SL + 1], [16, 32], []
        self.sexpr(S_SL + 1, [(2, 0, 7, 4), (2, 3, 3, 0)])
        e(f"s_add_u32 s{S_SL}, s{S_SL+1}, {offs[0]}")
        e(f"s_add_u32 s{S_SL+1}, s{S_SL+1}, {offs[1]}")
        for i in range(2):
            tok.append(self.p1_plain(sl[i], S_WQB if i else S_WQA, S_BX if i else S_AX, 8 + 2 * i, raw[i], first=not i))
        self.consts()
        self.sexpr(S_TMP, [(2, 0, 7, 2), (2, 3, 3, 0)])
        e(f"s_mov_b32 s2, s{S_TMP}")
        pre()
        for i in range(2):
            self.p1_compute(sl[i], tok[i], 8 + 2 * i, raw[i], d0, 48, lds[i], first=not i)


class Chunk:
    QS, ST, OS = 8192, 9216, 10240

    def __init__(self, k, nb, extra, KR, VR, QF, SR, ACC, X, VA, CNT, sK, sV, sQ, QG=8, w0=0, lds=None, XR=12):
        self.k, self.nb, self.extra, self.QG, self.w0 = k, nb, extra, QG, w0
        self.XR = XR
        if lds:
            self.QS, self.ST, self.OS = lds
        self.KR, self.VR, self.QF, self.SR, self.ACC, self.X = KR, VR, QF, SR, ACC, X
        self.vK, self.vV, self.vQ, self.vF = VA, VA + 1, VA + 2, VA + 3
        self.CNT, self.sK, self.sV, self.sQ = CNT, sK, sV, sQ
        self.sPair, self.sChunk, self.sTile, self.sNx = S_P, S_P + 1, S_P + 2, [S_P + 3, S_P + 5]
        self.ktok, self.vtok = {}, {}

    def ifx(self, i, fn):
        self.k.when(f"s_cmp_lt_u32 s3, s{self.sNx[i]}", fn)

    def setup(self):
        k = self.k; e = k.e
        k.sexpr(S_TMP, [(self.sPair, 0, None, 21), (self.sTile, 0, None, 12)])
        k.addr(self.sK, S_K, S_TMP)
        k.addr(self.sV, S_V, S_TMP)
        a, b = self.vQ, self.vF
        e(f"v_bfe_u32 v{a}, v0, 1, 1")
        e(f"v_lshlrev_b32 v{a}, 11, v{a}")
        e(f"v_bfe_u32 v{b}, v0, 2, 2")
        e(f"v_lshl_add_u32 v{a}, v{b}, 8, v{a}")
        e(f"v_lshl_add_u32 v{a}, v{V_J}, 5, v{a}")
        e(f"v_and_b32 v{b}, 1, v0")
        e(f"v_lshl_add_u32 v{self.vK}, v{b}, 4, v{a}")
        e(f"v_lshlrev_b32 v{self.vV}, 4, v0")
        e(f"v_lshlrev_b32 v{self.vQ}, 10, v{V_J}")
        e(f"v_lshl_add_u32 v{self.vQ}, v{V_N}, 4, v{self.vQ}")

    def qaddr(self):
        k = self.k
        if self.w0 == 0:
            k.sexpr(S_TMP, [(self.sPair, 0, 7, 14), (3, 1, None, 12), (self.sPair, 3, None, 9), (3, 0, 1, 8)])
        else:
            k.sexpr(S_TMP, [(self.sPair, 0, 7, 14), (3, 0, 3, 12), (self.sPair, 3, None, 9)])
        k.addr(self.sQ, S_WS, S_TMP, WS_QP + 128 * 1024)

    def kload(self, t, d=0, lo=0, hi=4):
        for ks in range(lo, hi):
            self.k.throttle(d)
            r = (ks >> 1) + 2 * (ks & 1)
            self.ktok[t] = self.k.ld4(self.KR[t] + 4 * r, self.vK, self.sK, (ks >> 1) * 1024 + (ks & 1) * 128)
        if hi == 4:
            self.k.adv(self.sK, 4096)

    def vload(self, t, d=0, lo=0, hi=4):
        for i in range(lo, hi):
            self.k.throttle(d)
            self.vtok[t] = self.k.ld4(self.VR[t] + 4 * i, self.vV, self.sV, i * 1024)
        if hi == 4:
            self.k.adv(self.sV, 4096)

    def qissue(self, first=False):
        if first and self.k.o.get("xid", 1):
            self.k.when("s_cmp_ge_u32 s3, 6", lambda: self.k.xid_load(self.XR, self.sPair))
        for i in range(2 if self.w0 else 1):
            t = self.k.ld4(self.QG + 4 * i, self.vQ, self.sQ, i * 256, "sc1")
        return t

    def qpiece(self, tok=None):
        k = self.k; e = k.e
        g, n = self.QG, 2 if self.w0 else 1
        k.poll(self.qissue, lambda: k.chkn([g + 4 * i for i in range(n)], 4, 5), pre_issued=tok)
        k.when("s_cmp_ge_u32 s3, 6", lambda: k.xid_eval(self.XR))
        k.untag(g, 4 * n)
        for i in range(n):
            r = g + 4 * i
            k.xrow("v_add_f32", [r, r + 1, r + 2, r + 3], [self.X + j for j in range(4)])
            e(f"v_cvt_pk_bf16_f32 v{r}, v{r}, v{r+1}")
            e(f"v_cvt_pk_bf16_f32 v{r+1}, v{r+2}, v{r+3}")
        k.sexpr(S_TMP, [(3, 0, 3 if self.w0 else None, 6 + n)])
        e(f"v_lshlrev_b32 v4, 3, v{V_N}")
        e(f"v_add_u32 v4, s{S_TMP}, v4")
        k.exec_set(0xffff, 0)
        for i in range(n):
            k.ds(f"ds_write_b64 v4, {vr(g+4*i,2)} offset:{self.QS+i*128}")
        k.arrive(self.CNT)

    def qread(self):
        k = self.k; e = k.e
        k.await_cnt(self.CNT, 8 - self.w0)
        e(f"v_lshrrev_b32 v4, 2, v{V_N}")
        e("v_lshlrev_b32 v4, 8, v4")
        e(f"v_lshl_add_u32 v4, v{V_J}, 5, v4")
        for ks in range(4):
            k.ds(f"ds_read_b128 {vr(self.QF+4*ks,4)}, v4 offset:{self.QS+(ks>>1)*128+(ks&1)*16}")
        for r in range(4 * self.extra):
            e(f"v_mov_b32 v{self.SR+4*self.nb+r}, 0xff800000")

    def qk(self, t):
        k = self.k
        k.vmwait(self.ktok[t])
        k0, x = self.KR[t], self.X + 8 * (t & 1)
        k.swap_pairs([(x, k0, k0 + 4), (x + 4, k0 + 8, k0 + 12)])
        d = vr(self.SR + 4 * t, 4)
        for ks, f in enumerate((x, k0 + 4, x + 4, k0 + 12)):
            k.e(f"v_mfma_f32_16x16x32_bf16 {d}, {vr(f,4)}, {vr(self.QF+4*ks,4)}, {'0' if ks == 0 else d}")

    def softmax(self):
        k = self.k; e = k.e
        SR = self.SR
        n = 4 * (self.nb + self.extra)
        k.chain("v_max3_f32", "v_max_f32", 4, range(SR, SR + n))
        k.xrow("v_max_f32", [4], [5])
        e(f"v_mul_f32 v4, s{S_SC}, v4")
        for i in range(n):
            e(f"v_fma_f32 v{SR+i}, v{SR+i}, s{S_SC}, -v4")
        for i in range(n):
            e(f"v_exp_f32 v{SR+i}, v{SR+i}")
        k.chain(None, "v_add_f32", 5, range(SR, SR + n))
        for i in range(n // 2):
            e(f"v_cvt_pk_bf16_f32 v{SR+i}, v{SR+2*i}, v{SR+2*i+1}")
        k.xrow("v_add_f32", [5], [6])
        e(f"s_lshl_b32 s{S_TMP}, s3, 5")
        e(f"v_lshlrev_b32 v6, 1, v{V_N}")
        e(f"v_add_u32 v6, s{S_TMP}, v6")
        k.exec_set(0x1111, 0)
        k.ds(f"ds_write_b64 v6, v[4:5] offset:{self.ST}")
        k.arrive(self.CNT + 4)

    def pv(self, t, n, first=False):
        k = self.k
        k.vmwait(self.vtok[t + n - 1])
        for i in range(8):
            x = self.X + 4 * (i & 3)
            k.frag(x, self.VR[t], i, 4 * n)
            d = vr(self.ACC + 4 * i, 4)
            op = "v_mfma_f32_16x16x32_bf16" if n == 2 else "v_mfma_f32_16x16x16_bf16"
            k.e(f"{op} {d}, {vr(self.SR+2*t,2*n)}, {vr(x,2*n)}, {'0' if first else d}")

    def factor(self, T0):
        k = self.k; e = k.e
        nw = 8 - self.w0
        k.await_cnt(self.CNT + 4, nw)
        e(f"v_lshlrev_b32 v6, 3, v{V_J}")
        for w in range(nw):
            k.ds(f"ds_read_b64 {vr(T0+2*w,2)}, v6 offset:{self.ST+(self.w0+w)*32}")
        e(f"s_lshl_b32 s{S_TMP}, s3, 5")
        e(f"v_add_u32 v6, s{S_TMP}, v6")
        k.ds(f"ds_read_b64 v[4:5], v6 offset:{self.ST}")
        k.lgwait()
        k.chain("v_max3_f32", "v_max_f32", 7, range(T0, T0 + 2 * nw, 2))
        for w in range(nw):
            e(f"v_sub_f32 v{T0+2*w}, v{T0+2*w}, v7")
        e("v_sub_f32 v4, v4, v7")
        for w in range(nw):
            e(f"v_exp_f32 v{T0+2*w}, v{T0+2*w}")
        e("v_exp_f32 v4, v4")
        e(f"v_mul_f32 v5, v{T0}, v{T0+1}")
        for w in range(1, nw):
            e(f"v_fmac_f32 v5, v{T0+2*w}, v{T0+2*w+1}")
        e("v_rcp_f32 v6, v5")
        e("v_log_f32 v5, v5")
        e(f"v_mul_f32 v{self.vF}, v4, v6")

        def lse():
            for i in range(4):
                e(f"v_add_f32 v{8+i}, v5, v7")
            k.tag4(8)
            k.sexpr(S_TMP, [(self.sPair, 0, 7, 11), (self.sPair, 3, None, 8), (self.sChunk, 0, None, 4)])
            k.addr(self.sQ, S_WS, S_TMP, WS_LSEB)
            e(f"v_lshlrev_b32 v4, 9, v{V_J}")
            k.exec_set(0x00010001, 0x00010001)
            k.st_group(f"global_store_dwordx4 v4, v[8:11], {sr(self.sQ)}")
            k.exec_all()

        k.when(f"s_cmp_eq_u32 s3, {PUBW}", lse)
        k.sexpr(S_TMP, [(self.sPair, 0, 7, 3), (3, 0, 1, 2), (self.sPair, 3, None, 0)])
        e(f"s_mul_i32 s{S_TMP}, s{S_TMP}, {NCB}")
        e(f"s_add_u32 s{S_TMP}, s{S_TMP}, s{self.sChunk}")
        e(f"s_lshl_b32 s{S_TMP}, s{S_TMP}, 9")
        k.addr(self.sQ, S_WS, S_TMP, WS_OP)
        e("v_lshrrev_b32 v4, 5, v0")
        e(f"v_mul_u32_u24 v4, {2*NCB*512}, v4")
        e("v_and_b32 v5, 31, v0")
        e(f"v_lshl_add_u32 v{self.vQ}, v5, 4, v4")
        e(f"s_lshl_b32 s{S_TMP}, s3, 11")
        e(f"v_lshlrev_b32 v4, 9, v{V_J}")
        e(f"v_lshl_add_u32 v4, v{V_N}, 5, v4")
        e(f"v_add_u32 v{self.vK}, s{S_TMP}, v4")
        k.sexpr(S_TMP, [(3, 0, 1, 10)])
        e(f"v_add_u32 v{T0}, s{S_TMP}, v{self.vV}")
        self.vR = T0

    def finish(self, T0, st, cont=False):
        k = self.k; e = k.e
        k.stamp(st)
        T0 += 4
        for i in range(8):
            e(f"v_mul_f32 v{T0+i}, v{self.vF}, v{self.ACC+4*i}")
        k.ds(f"ds_write_b128 v{self.vK}, {vr(T0,4)} offset:{self.OS}")
        k.ds(f"ds_write_b128 v{self.vK}, {vr(T0+4,4)} offset:{self.OS+16}")
        nw = 8 - self.w0
        if self.w0:
            k.arrive(self.CNT + 8)
        else:
            k.barrier()

        def pub():
            if self.w0:
                k.await_cnt(self.CNT + 8, nw)
            for w in range(nw):
                k.ds(f"ds_read_b128 {vr(T0+4*w,4)}, v{self.vR} offset:{self.OS+(self.w0+w)*2048}")
            k.lgwait()
            k.tree_add4(T0, nw)
            k.tag4(T0)
            k.st_group(f"global_store_dwordx4 v{self.vQ}, {vr(T0,4)}, {sr(self.sQ)}")
            k.stamp(st + 1)

        k.when("s_cmp_ge_u32 s3, 6", pub)
        if not cont:
            e("s_branch L_fin")


def role_B(k):
    e, o = k.e, k.o
    D1, D, DV, SW = o.get("depth_b1", 3), o.get("depth_b", 6), o.get("depth_v", 8), o.get("b_sw", 2)
    KR = [160 + 16 * t for t in range(6)] + [144]
    VR = [16, 32, KR[0], KR[1], KR[2], KR[3], KR[4]]
    CNT, QS2, QAS, UK = 9728, 9856, 40960, 144
    c = Chunk(k, 5, 2, KR, VR, QF=128, SR=100, ACC=64, X=48, VA=96, CNT=CNT, sK=S_C, sV=S_D, sQ=S_A)
    sI = S_P + 4
    dep = lambda t: D1 if t < SW else D
    npre, bpre = o.get("p2_at", 2), o.get("b_pre", 1)

    def kstream(lo, hi, thr, c=c):
        for n in range(lo, hi):
            c.kload(n >> 2, dep(n >> 2) if thr else 0, n & 3, (n & 3) + 1)

    def params(c=c):
        e("s_waitcnt lgkmcnt(0)")
        e(f"s_bfe_u32 s{c.sNx[0]}, s{c.sTile}, 0x40010")
        e(f"s_bfe_u32 s{c.sNx[1]}, s{c.sTile}, 0x40014")
        e(f"s_bfe_u32 s{c.sPair}, s{c.sTile}, 0x40018")
        e(f"s_lshr_b32 s{c.sChunk}, s{c.sTile}, 28")
        e(f"s_and_b32 s{c.sTile}, s{c.sTile}, 0xffff")
        e(f"s_mul_i32 s{S_TMP}, s3, {c.nb}")
        e(f"s_add_u32 s{c.sTile}, s{c.sTile}, s{S_TMP}")
        for i in range(2):
            e(f"s_min_u32 s{S_TMP}, s3, s{c.sNx[i]}")
            e(f"s_add_u32 s{c.sTile}, s{c.sTile}, s{S_TMP}")
        c.setup()
        for r in range(124, 128):
            e(f"v_mov_b32 v{r}, 0")
        e(f"v_mov_b32 v123, {CNT}")
        k.ds("ds_write_b128 v123, v[124:127]")

    k.c("================ role B1")
    k.label("L_roleB")
    e(f"s_sub_u32 s{sI}, s2, {NT+NA}")
    e(f"s_getpc_b64 {sr(S_C)}")
    k.label("L_pc")
    e(f"s_lshl_b32 s{S_TMP}, s{sI}, 2")
    e(f"s_add_u32 s{S_C}, s{S_C}, L_tiles-L_pc")
    e(f"s_addc_u32 s{S_C+1}, s{S_C+1}, 0")
    e(f"s_load_dword s{c.sTile}, {sr(S_C)}, s{S_TMP}")
    e("s_cmp_ge_u32 s2, 224")
    e("s_cbranch_scc1 L_roleB2")
    base = k.vm_n
    k.sexpr(S_TMP, [(sI, 0, 7, 4), (sI, 3, None, 0)])
    e(f"s_mov_b32 s{sI}, s{S_TMP}")
    e(f"s_bitcmp1_b32 s{sI}, 3")
    e(f"s_cselect_b32 s{S_SL}, 120, 8")
    e(f"s_add_u32 s{S_SL}, s{S_SL}, s{sI}")

    def selW():
        e(f"s_cmp_lt_u32 s{S_SL}, 128")
        e(f"s_cselect_b32 s{S_C}, s{S_WQA}, s{S_WQB}")
        e(f"s_cselect_b32 s{S_C+1}, s{S_WQA+1}, s{S_WQB+1}")
        e(f"s_cselect_b32 s{S_B}, s{S_AX}, s{S_BX}")
        e(f"s_cselect_b32 s{S_B+1}, s{S_AX+1}, s{S_BX+1}")
        e(f"s_add_u32 s{S_A}, s{S_C}, s{S_A}")
        e(f"s_addc_u32 s{S_A+1}, s{S_C+1}, 0")

    tok = k.p1_issue(S_SL, selW, lambda: k.addr(S_B, S_B, S_TMP), 8, 16)
    k.sexpr(S_TMP, [(sI, 0, 3, 20), (3, 0, None, 17), (sI, 2, None, 8)])
    k.addr(S_C, S_WUK, S_TMP)
    e("v_bfe_u32 v33, v0, 1, 3")
    e("v_lshlrev_b32 v33, 14, v33")
    e(f"v_lshl_add_u32 v33, v{V_J}, 5, v33")
    e("v_and_b32 v32, 1, v0")
    e("v_lshl_add_u32 v33, v32, 4, v33")
    e("v_add_u32 v32, 0x2000, v33")
    for ks in range(4):
        uktok = k.ld4(UK + 4 * ((ks >> 1) + 2 * (ks & 1)), 33 - (ks >> 1), S_C, (ks & 1) * 128)
    k.consts()
    params()
    kstream(0, bpre, False)
    k.p1_compute(S_SL, tok, 8, 16, c.ACC, 48)
    kstream(bpre, npre, False)
    k.sexpr(S_TMP, [(sI, 2, None, 12), (3, 0, 3, 8)])
    k.addr(S_B, S_WS, S_TMP, WS_QP)

    def p2_piece():
        e(f"s_waitcnt vmcnt({o.get('p2_w', 0)})")
        k.poll(lambda: k.ld4(8, c.vQ, S_B, 0, "sc1"), lambda: k.chk4(8, 4, True))
        k.untag(8)
        k.xrow("v_add_f32", [8, 9, 10, 11], [12, 13, 14, 15])
        e("v_cvt_pk_bf16_f32 v8, v8, v9")
        e("v_cvt_pk_bf16_f32 v9, v10, v11")
        k.sexpr(S_TMP, [(3, 0, 3, 7)])
        e(f"v_lshlrev_b32 v4, 3, v{V_N}")
        e(f"v_add_u32 v4, s{S_TMP}, v4")
        k.exec_set(0xffff, 0)
        k.ds(f"ds_write_b64 v4, v[8:9] offset:{QS2}")
        k.arrive(CNT + 8)

    k.vmwait(uktok)
    k.swap_pairs([(48, UK, UK + 4), (52, UK + 8, UK + 12)])
    k.when("s_cmp_ge_u32 s3, 4", p2_piece)
    k.stamp(7)
    k.sexpr(S_TMP, [(sI, 2, None, 10), (sI, 0, 3, 8)])
    k.addr(S_B, S_WS, S_TMP, WS_QA)
    k.bitmasks(12)
    e("v_mov_b32 v16, 0xfffefffe")
    e(f"v_lshlrev_b32 v17, 15, v{V_J}")
    e(f"v_lshl_add_u32 v17, v{V_N}, 4, v17")
    e(f"v_lshlrev_b32 v5, 8, v{V_N}")
    e(f"v_lshl_add_u32 v5, v{V_J}, 3, v5")
    e(f"s_lshl_b32 s{S_TMP}, s3, 5")
    e(f"v_add_u32 v5, s{S_TMP}, v5")
    e(f"v_and_b32 v4, 1, v{V_N}")
    e("v_lshlrev_b32 v4, 8, v4")
    e(f"v_lshl_add_u32 v4, v{V_J}, 5, v4")
    k.await_cnt(CNT + 8, 4)
    for ks in range(4):
        k.ds(f"ds_read_b128 {vr(c.QF+4*ks,4)}, v4 offset:{QS2+(ks>>1)*128+(ks&1)*16}")
    k.lgwait()
    for ks, f in enumerate((48, UK + 4, 52, UK + 12)):
        e(f"v_mfma_f32_16x16x32_bf16 v[8:11], {vr(f,4)}, {vr(c.QF+4*ks,4)}, {'0' if ks == 0 else 'v[8:11]'}")
    for i in range(4):
        e(f"v_add_u32 v{8+i}, 0x10000, v{8+i}")
    e(f"v_perm_b32 v8, v9, v8, s{S_HI}")
    e(f"v_perm_b32 v9, v11, v10, s{S_HI}")
    k.exec_set(0x00030003, 0x00030003)
    k.ds(f"ds_write_b64 v5, v[8:9] offset:{QAS}")
    k.arrive(CNT + 12)

    def qa_pub():
        k.await_cnt(CNT + 12, 8)
        k.ds(f"ds_read_b128 v[8:11], v{c.vV} offset:{QAS}")
        k.lgwait()
        for q in range(4):
            e(f"v_and_or_b32 v{8+q}, v{8+q}, v16, v{12+q}")
        k.exec_set(0xffffffff, 0)
        k.vm(f"global_store_dwordx4 v17, v[8:11], {sr(S_B)} sc1")
        k.exec_all()

    k.when(f"s_cmp_eq_u32 s3, {o.get('qaw', 3)}", qa_pub)
    k.stamp(8)
    c.qaddr()
    qat = o.get("b_qat", 2)
    for t in range(5):
        if t == qat:
            qtok = c.qissue(True)
        kstream(max(4 * t, npre), max(4 * t + 4, npre), True)
        if t == o.get("b_qchk", 4):
            k.stamp(2)
            c.qpiece(qtok)
            k.stamp(3)
    c.ifx(0, lambda: c.kload(5, D))
    c.ifx(1, lambda: c.kload(6, D))
    c.qread()
    c.vload(0, DV)
    k.lgwait()
    c.qk(0); c.qk(1)
    c.vload(1, DV)
    c.qk(2); c.qk(3)
    c.vload(2, DV)
    c.qk(4)
    c.ifx(0, lambda: c.qk(5))
    c.ifx(1, lambda: c.qk(6))
    c.vload(3, DV)
    k.stamp(4)
    c.softmax()
    c.vload(4, DV)
    c.pv(0, 2, first=True)
    c.ifx(0, lambda: c.vload(5, DV))
    c.factor(16)
    c.ifx(1, lambda: c.vload(6, DV))
    c.pv(2, 2)
    c.pv(4, 1)
    c.ifx(0, lambda: c.pv(5, 1))
    c.ifx(1, lambda: c.pv(6, 1))
    c.finish(16, 5)
    k.c("================ role B2")
    k.label("L_roleB2")
    k.vm_n = base
    K2 = [160, 176, 192, 208]
    c = Chunk(k, 3, 1, K2, [16, 32, K2[0], K2[1]], QF=128, SR=100, ACC=64, X=48, VA=96, CNT=CNT, sK=S_C, sV=S_D, sQ=S_A)
    k.p1_multi([4, 140], lambda: (params(c), kstream(0, bpre, False, c)), c.ACC, [0, 16384])
    D2 = o.get("depth_b2", 5)
    SW2 = 98
    k.sexpr(S_TMP, [(2, 0, 31, 17), (3, 2, None, 16), (3, 0, 3, 8)])
    k.addr(SW2, S_WOB, S_TMP)
    e(f"v_lshlrev_b32 v144, 13, v{V_J}")
    e(f"v_lshl_add_u32 v144, v{V_N}, 4, v144")
    k.sexpr(S_TMP, [(3, 0, 3, 15), (3, 2, None, 14)], WOL)
    e(f"v_add_u32 v145, s{S_TMP}, v{c.vV}")
    c.qaddr()
    for n in range(bpre, 12):
        if n == 8:
            qtok = c.qissue(True)
        c.kload(n >> 2, D2, n & 3, (n & 3) + 1)
    c.ifx(0, lambda: c.kload(3, D2))
    c.vload(0, D2)
    c.qpiece(qtok)
    c.vload(1, D2)
    c.qread()
    k.lgwait()
    c.qk(0); c.qk(1); c.qk(2)
    c.ifx(0, lambda: c.qk(3))
    c.vload(2, D2)
    c.ifx(0, lambda: c.vload(3, D2))
    k.stamp(4)
    c.softmax()
    wtok = {}

    def wload(g):
        for t in range(8):
            k.throttle(D2)
            wtok[g] = k.ld4((224, 192)[g] + 4 * t, 144, SW2, (t & 3) * 1024)
            if t & 3 == 3:
                k.adv(SW2, 4096 if t == 3 else 4096 * 7)

    c.pv(0, 2, first=True)
    c.factor(16)
    wload(0)
    c.pv(2, 1)
    c.ifx(0, lambda: c.pv(3, 1))
    c.finish(16, 5, cont=True)
    wload(1)
    for r in range(4, 8):
        e(f"v_mov_b32 v{r}, 0")
    e(f"v_mov_b32 v8, {CNTB}")
    k.ds("ds_write_b128 v8, v[4:7]")
    for g in range(2):
        k.vmwait(wtok[g])
        for i in range(8):
            x = 8 + 4 * (i & 3)
            k.frag(x, (224, 192)[g], i, 8)
            k.ds(f"ds_write_b128 v145, {vr(x,4)} offset:{g*8192+i*1024}")
    k.barrier()
    e("s_cmp_ge_u32 s3, 4")
    e("s_cbranch_scc1 L_fin")
    k.sexpr(S_TMP, [(3, 0, None, 15)], WOL)
    e("v_lshlrev_b32 v31, 4, v0")
    e(f"v_add_u32 v30, s{S_TMP}, v31")
    for f in range(32):
        k.ds(f"ds_read_b128 {vr(32+4*f,4)}, v30 offset:{f*1024}")
    e("s_and_b32 s2, s2, 31")
    e("s_add_u32 s3, s3, 4")
    e("s_branch L_ldok")


def role_A(k):
    e, o = k.e, k.o
    C0, G, QT, SR, ACC = 128, 64, 64, 48, 96
    Q = 131072
    PB, ST, ST2, CNT = Q, Q + 16384, Q + 17408, 9728
    sB, sCh, sA = S_P + 4, S_P + 5, S_P + 6
    AT = o.get("a_t", 1)
    c = Chunk(k, AT, 0, KR=[128, 144][:AT], VR=[160, 176][:AT], QF=64, SR=48, ACC=96, X=80, VA=28, CNT=CNT, sK=S_C, sV=S_D, sQ=S_B, QG=22, XR=32)
    k.c("================ role A")
    k.label("L_roleA")
    e(f"s_sub_u32 s{sA}, s2, {NT}")
    k.sexpr(S_TMP, [(sA, 0, None, 18), (3, 0, None, 14)])
    e("v_bfe_u32 v32, v0, 1, 3")
    e("v_lshlrev_b32 v32, 11, v32")
    e(f"v_lshl_add_u32 v32, v{V_J}, 5, v32")
    e("v_and_b32 v33, 1, v0")
    e("v_lshl_add_u32 v32, v33, 4, v32")
    e("s_waitcnt lgkmcnt(0)")
    SCK = 98
    k.addr(SCK, S_CKV, S_TMP)
    DA = o.get("depth_a", 5)
    coff = lambda ks: (ks & 1) * 1024 + (ks >> 1) * 128
    CF = []
    for p in range(16):
        CF += [C0 + 8 * p - 8 if p else 124, C0 + 8 * p + 4]
    ctok = {}
    st = {"n": 0}
    sVal = 92

    def pump(upto):
        while st["n"] < min(upto, 32):
            n = st["n"]
            if n == 16:
                k.adv(SCK, 131072)
            m = (n & ~3) | ((n & 1) << 1) | ((n >> 1) & 1)
            ctok[m] = k.ld4(C0 + 4 * m, 32, SCK, coff(m & 15))
            st["n"] += 1

    pump(DA)
    k.consts()
    e(f"s_lshr_b32 s{sB}, s{sA}, 5")
    e(f"s_and_b32 s{sCh}, s{sA}, 31")
    e(f"v_bfe_u32 v4, v{V_N}, 1, 2")
    e(f"v_and_b32 v5, 3, v{V_N}")
    e("v_lshl_add_u32 v4, v5, 2, v4")
    e(f"v_lshlrev_b32 v5, 1, v{V_J}")
    e("v_xor_b32 v4, v4, v5")
    e(f"s_lshl_b32 s{S_TMP}, s3, 14")
    e(f"v_lshlrev_b32 v5, 10, v{V_N}")
    e(f"v_add_u32 v5, s{S_TMP}, v5")
    e("v_lshl_add_u32 v40, v4, 4, v5")
    kx = lambda q: (q >> 1) * 128 + (q & 1) * 16
    for q in range(1, 4):
        e(f"v_xor_b32 v{40+q}, {kx(q)}, v40")
    k.sexpr(S_TMP, [(sB, 0, None, 15), (3, 0, None, 12)])
    k.addr(S_A, S_WS, S_TMP, WS_QA)
    e("v_lshlrev_b32 v33, 4, v0")
    e(f"v_lshlrev_b32 v4, 1, v{V_J}")
    e(f"v_xor_b32 v4, v4, v{V_N}")
    e(f"v_lshlrev_b32 v5, 10, v{V_N}")
    e(f"v_add_u32 v5, {Q}, v5")
    e("v_lshl_add_u32 v44, v4, 4, v5")
    for q in range(1, 4):
        e(f"v_xor_b32 v{44+q}, {kx(q)}, v44")
    e(f"v_lshlrev_b32 v4, 5, v{V_N}")
    e(f"v_add_u32 v35, {ST}, v4")
    e(f"s_lshl_b32 s{S_TMP}, s3, 2")
    e(f"v_add_u32 v36, s{S_TMP}, v35")
    e("v_and_b32 v6, 31, v0")
    e("v_lshlrev_b32 v4, 5, v6")
    e(f"v_add_u32 v37, {ST}, v4")
    e(f"v_lshrrev_b32 v7, 1, v{V_J}")
    e(f"s_lshl_b32 s{S_TMP}, s3, 1")
    e(f"v_add_u32 v7, s{S_TMP}, v7")
    e(f"v_xor_b32 v7, v7, v{V_N}")
    e("v_lshlrev_b32 v7, 4, v7")
    e(f"v_lshl_add_u32 v7, v{V_N}, 9, v7")
    e(f"v_and_b32 v8, 1, v{V_J}")
    e("v_lshl_add_u32 v7, v8, 3, v7")
    e(f"v_add_u32 v38, {PB}, v7")
    e("v_lshrrev_b32 v4, 5, v0")
    e(f"v_xor_b32 v7, v4, v{V_N}")
    e("v_lshlrev_b32 v7, 4, v7")
    e("v_lshl_add_u32 v7, v6, 9, v7")
    e(f"v_add_u32 v20, {PB}, v7")
    k.sexpr(S_TMP, [(3, 0, 1, 3)])
    e(f"v_xor_b32 v7, s{S_TMP}, v{V_N}")
    e("v_lshlrev_b32 v7, 4, v7")
    e("v_lshl_add_u32 v7, v6, 10, v7")
    e("v_lshl_add_u32 v7, v4, 3, v7")
    k.sexpr(S_TMP, [(3, 1, None, 8)], Q)
    e(f"v_add_u32 v39, s{S_TMP}, v7")
    k.sexpr(S_TMP, [(3, 0, 3, 2)])
    e(f"v_xor_b32 v7, s{S_TMP}, v0")
    e("v_lshlrev_b32 v7, 4, v7")
    k.sexpr(S_TMP, [(3, 0, None, 12)], Q)
    e(f"v_add_u32 v27, s{S_TMP}, v7")
    e("v_bfe_u32 v5, v0, 2, 2")
    e("v_lshl_add_u32 v6, v4, 3, v5")
    e("v_lshlrev_b32 v6, 10, v6")
    e("v_and_b32 v7, 1, v0")
    e("v_lshl_add_u32 v6, v7, 3, v6")
    k.sexpr(S_TMP, [(3, 1, None, 8)])
    e(f"v_add_u32 v6, s{S_TMP}, v6")
    e("v_bfe_u32 v7, v0, 4, 1")
    e("v_bfe_u32 v8, v0, 1, 1")
    e("v_lshl_add_u32 v7, v7, 1, v8")
    k.sexpr(S_TMP, [(3, 0, 1, 3)])
    e(f"v_add_u32 v7, s{S_TMP}, v7")
    e("v_lshrrev_b32 v8, 1, v5")
    e("v_lshlrev_b32 v5, 2, v5")
    e("v_xor_b32 v7, v7, v5")
    e("v_xor_b32 v7, v7, v8")
    for mt in range(2):
        for ee in range(2):
            r = 16 + 2 * mt + ee
            e(f"v_xor_b32 v{r}, {4*mt + 2*ee}, v7")
            e(f"v_lshl_add_u32 v{r}, v{r}, 4, v6")
            if ee:
                e(f"v_add_u32 v{r}, 4096, v{r}")
    e(f"s_and_b32 s{c.sPair}, s{sA}, 15")
    k.sexpr(c.sChunk, [(sA, 4, None, 0)], 10)
    k.sexpr(c.sTile, [(sA, 4, None, 2 + AT), (3, 0, None, AT - 1)], 512 - 32 * AT)
    c.setup()
    SL, SFL = 94, 100
    k.sexpr(S_TMP, [(3, 0, None, 18), (sB, 0, None, 15), (sCh, 0, None, 10)])
    k.addr(SL, S_WS, S_TMP, WS_LATP)
    k.sexpr(S_TMP, [(sA, 0, None, 8 if o.get("lt", 1) else 3)])
    k.addr(SFL, S_WS, S_TMP, WS_LSEA)
    e("s_waitcnt lgkmcnt(0)")
    k.settag()
    k.bitmasks(G + 16)

    def cwrite(ks):
        k.ds(f"ds_write_b128 v{40+(ks&3)}, {vr(CF[ks],4)} offset:{((ks&15)>>2)*256}")

    def qload(q):
        return k.ld4(G + 4 * q, 33, S_A, q * 1024, "sc1")

    gat, gq = o.get("a_gat", 10), o.get("a_gq", 12)

    def cproc(p):
        pump(2 * p + 2 + DA)
        if p == gat:
            for q in range(4):
                st["g"] = qload(q)
        k.vmwait(ctok[2 * p + 1])
        k.swap_pairs([(CF[2 * p], C0 + 8 * p, C0 + 8 * p + 4)])
        if p < 8:
            cwrite(2 * p); cwrite(2 * p + 1)

    for p in range(gq + 1):
        cproc(p)
    pump(2 * gq + 4 + DA)
    k.stamp(2)
    top, chk, done = k.newlabel("L_qa"), k.newlabel("L_qachk"), k.newlabel("L_qaok")
    e(f"s_mov_b32 s{sVal}, 0")
    e(f"s_mov_b32 s{S_SPIN}, {SPIN_MAX}")
    k.vmwait(st["g"])
    e(f"s_branch {chk}")
    k.label(top)
    k.cond += 1
    e(f"s_sub_u32 s{S_SPIN}, s{S_SPIN}, 1")
    e(f"s_cbranch_scc1 {done}")
    for q in range(4):
        lab = k.newlabel("L_qsk")
        e(f"s_bitcmp1_b32 s{sVal}, {q}")
        e(f"s_cbranch_scc1 {lab}")
        qload(q)
        k.label(lab)
    e("s_waitcnt vmcnt(0)")
    k.label(chk)
    for q in range(4):
        for i in range(4):
            e(f"v_xor_b32 v{4+i}, v{G+4*q+i}, v{G+16+i}")
        e("v_or3_b32 v4, v4, v5, v6")
        e("v_or_b32 v4, v4, v7")
        e("v_and_b32 v4, 0x10001, v4")
        e(f"v_cmp_ne_u32 {sr(S_BAD)}, 0, v4")
        e(f"s_cmp_eq_u64 {sr(S_BAD)}, 0")
        e(f"s_cselect_b32 s{S_TMP}, {1 << q}, 0")
        e(f"s_or_b32 s{sVal}, s{sVal}, s{S_TMP}")
    e(f"s_cmp_lg_u32 s{sVal}, 15")
    e(f"s_cbranch_scc1 {top}")
    k.cond -= 1
    k.label(done)
    k.stamp(3)
    for q in range(4):
        for i in range(4):
            e(f"v_xor_b32 v{G+4*q+i}, v{G+4*q+i}, v{G+16+i}")
        e(f"v_xor_b32 v{4+q}, {q*16}, v27")
        k.ds(f"ds_write_b128 v{4+q}, {vr(G+4*q,4)} offset:{q*1024}")
    k.barrier()
    tk = {}

    def qread(ks):
        for hh in range(2):
            tk[ks] = k.ds(f"ds_read_b128 {vr(QT+8*(ks&3)+4*hh,4)}, v{44+(ks&3)} offset:{hh*16384+(ks>>2)*256}")

    for ks in range(3):
        qread(ks)
    for ks in range(16):
        if ks + 3 < 16:
            qread(ks + 3)
        if ks & 1 == 0 and 8 + ks // 2 > gq:
            cproc(8 + ks // 2)
        k.lgwait(tk[ks])
        for hh in range(2):
            for rnd in range(2):
                d = vr(SR + 8 * hh + 4 * rnd, 4)
                e(f"v_mfma_f32_16x16x32_bf16 {d}, {vr(CF[16*rnd+ks],4)}, {vr(QT+8*(ks&3)+4*hh,4)}, {'0' if ks == 0 else d}")
        if ks < 2 * (gq - 7) and ks & 1:
            pump(st["n"] + 1)
    c.kload(0, 0, 0, 2)
    k.stamp(4)
    for hh in range(2):
        k.chain("v_max3_f32", "v_max_f32", 4 + hh, range(SR + 8 * hh, SR + 8 * hh + 8))
    k.xrow("v_max_f32", [4, 5], [6, 7])
    k.barrier()
    k.exec_set(0xffff, 0)
    for hh in range(2):
        k.ds(f"ds_write_b32 v36, v{4+hh} offset:{hh*512}")
    k.exec_all()
    c.kload(0, 0, 2, 4)
    k.barrier()
    for hh in range(2):
        for q in range(2):
            k.ds(f"ds_read_b128 {vr(64+8*hh+4*q,4)}, v35 offset:{hh*512+q*16}")
    for q in range(2):
        k.ds(f"ds_read_b128 {vr(80+4*q,4)}, v37 offset:{q*16}")
    k.lgwait()
    for i, dst in enumerate((4, 5, 26)):
        k.chain("v_max3_f32", "v_max_f32", dst, range(64 + 8 * i, 72 + 8 * i))
        e(f"v_mul_f32 v{dst}, s{S_SC}, v{dst}")
    for i in range(16):
        e(f"v_fma_f32 v{SR+i}, v{SR+i}, s{S_SC}, -v{4+(i>>3)}")
    for i in range(16):
        e(f"v_exp_f32 v{SR+i}, v{SR+i}")
    for hh in range(2):
        k.chain(None, "v_add_f32", 6 + hh, range(SR + 8 * hh, SR + 8 * hh + 8))
    for i in range(8):
        e(f"v_cvt_pk_bf16_f32 v{SR+i}, v{SR+2*i}, v{SR+2*i+1}")
    for hh in range(2):
        for rnd in range(2):
            k.ds(f"ds_write_b64 v38, {vr(SR+4*hh+2*rnd,2)} offset:{hh*8192+rnd*256}")
    k.xrow("v_add_f32", [6, 7], [8, 9])
    k.exec_set(0xffff, 0)
    for hh in range(2):
        k.ds(f"ds_write_b32 v36, v{6+hh} offset:{ST2-ST+hh*512}")
    k.exec_all()
    if AT == 2:
        c.kload(1, 0)
    k.barrier()
    FR = 48

    def go(point):
        if o.get("go", 0) != point:
            return

        def st_():
            k.addr(S_A, S_WS, None, WS_GO)
            e("v_lshlrev_b32 v4, 7, v0")
            k.exec_set(0xffffffff, 0)
            k.vm(f"global_store_dword v4, v{V_T}, {sr(S_A)} sc1")
            k.exec_all()

        k.sexpr(S_TMP, [(sA, 0, None, 3), (3, 0, None, 0)])
        k.when(f"s_cmp_eq_u32 s{S_TMP}, {o.get('go_wg', 63) * 8 + 6}", st_)

    go(1)

    def pvpart(rnd, u0, u1):
        tk = {}

        def rd(u):
            f = FR + 12 * (u % 3)
            if u == 4:
                for r in range(16, 20):
                    e(f"v_add_u32 v{r}, 0x10000, v{r}")
            e(f"v_xor_b32 v21, {u*32}, v20")
            k.ds(f"ds_read_b128 {vr(f+8,4)}, v21 offset:{rnd*256}")
            for mt in range(2):
                for ee in range(2):
                    tk[u] = k.ds(f"ds_read_b64_tr_b16 {vr(f+4*mt+2*ee,2)}, v{16+2*mt+ee} offset:{(u&3)*16384}")

        rd(u0); rd(u0 + 1)
        for u in range(u0, u1):
            if u + 2 < u1:
                rd(u + 2)
            k.lgwait(tk[u])
            f = FR + 12 * (u % 3)
            for mt in range(2):
                d = vr(ACC + 16 * mt, 16)
                e(f"v_mfma_f32_32x32x16_bf16 {d}, {vr(f+4*mt,4)}, {vr(f+8,4)}, {'0' if (rnd == 0 and u == 0) else d}")
        if u1 == 8 and rnd == 0:
            for r in range(16, 20):
                e(f"v_subrev_u32 v{r}, 0x10000, v{r}")

    def cw1():
        for ks in range(16, 32):
            cwrite(ks)

    if o.get("a_ovl", 0):
        pvpart(0, 0, 4)
        k.barrier()
        k.when("s_cmp_lt_u32 s3, 4", cw1)
        pvpart(0, 4, 8)
        k.stamp(5)
        c.qaddr()
        qtok = c.qissue(True)
        if o.get("a_ve", 1):
            c.vload(0, 0)
        k.barrier()
        k.when("s_cmp_ge_u32 s3, 4", cw1)
        pvpart(1, 0, 4)
        k.barrier()
        k.stamp(6)
        pvpart(1, 4, 8)
    else:
        pvpart(0, 0, 8)
        k.stamp(5)
        k.barrier()
        c.qaddr()
        qtok = c.qissue(True)
        cw1()
        if o.get("a_ve", 1):
            c.vload(0, 0)
        k.barrier()
        k.stamp(6)
        go(2)
        pvpart(1, 0, 8)
    k.stamp(10)
    for q in range(2):
        k.ds(f"ds_read_b128 {vr(64+4*q,4)}, v37 offset:{ST2-ST+q*16}")
    for r in range(12, 16):
        e(f"v_mov_b32 v{r}, 0")
    e(f"v_mov_b32 v11, {CNT}")
    k.lgwait()
    k.chain(None, "v_add_f32", 9, range(64, 72))
    e("v_rcp_f32 v10, v9")
    e("v_log_f32 v9, v9")
    e("v_add_f32 v26, v26, v9")
    e("s_barrier")
    k.ds("ds_write_b128 v11, v[12:15]")
    for g in range(8):
        for i in range(4):
            e(f"v_mul_f32 v{ACC+4*g+i}, v10, v{ACC+4*g+i}")
        e(f"v_cvt_pk_bf16_f32 v{ACC+4*g}, v{ACC+4*g}, v{ACC+4*g+1}")
        e(f"v_cvt_pk_bf16_f32 v{ACC+4*g+1}, v{ACC+4*g+2}, v{ACC+4*g+3}")
        e(f"v_xor_b32 v{40+g}, {g*16}, v39")
        k.ds(f"ds_write_b64 v{40+g}, {vr(ACC+4*g,2)}")
    k.barrier()
    tk = []
    for q in range(4):
        e(f"v_xor_b32 v{16+q}, {q*16}, v27")
        tk.append(k.ds(f"ds_read_b128 {vr(192+4*q,4)}, v{16+q} offset:{q*1024}"))
    for q in range(4):
        k.lgwait(tk[q])
        stok = k.vm(f"global_store_dwordx4 v33, {vr(192+4*q,4)}, {sr(SL)} sc1")
        if q < 3:
            k.adv(SL, 65536)
    go(3)
    if AT == 2 and o.get("a_v1", 0):
        c.vload(1, 0)
    k.stamp(11)
    c.qpiece(qtok)
    c.qread()
    e(f"v_lshlrev_b32 v40, {3 if o.get('lt', 1) else 9}, v0")
    e(f"v_mov_b32 v27, v{V_T}")
    k.lgwait()
    for t in range(AT):
        c.qk(t)
    c.softmax()
    k.vmwait(stok)
    e("s_barrier")

    def flag():
        k.exec_set(0xffffffff, 0)
        k.vm(f"global_store_dwordx2 v40, v[26:27], {sr(SFL)} sc1")
        k.exec_all()

    k.when(f"s_cmp_eq_u32 s3, {PUBW}", flag)
    if not o.get("a_ve", 1):
        c.vload(0, 0)
    if AT == 2 and not o.get("a_v1", 0):
        c.vload(1, 0)
    k.stamp(7)
    c.factor(208)
    c.pv(0, AT, first=True)
    c.finish(208, 8)


def role_T(k):
    e, o = k.e, k.o
    D = o.get("depth_t", 3)
    R = [32 + 32 * i for i in range(7)]
    CNT, WSC, CS, P1B = 16384, 16640, 21504, 8192
    sStr, sW = S_P + 2, S_P + 3
    SF, SO = 86, 88
    k.c("================ role T")
    k.label("L_roleT")
    k.remap = {11: 2, 12: 3}
    tok = {}

    def pre():
        e(f"v_lshlrev_b32 v{R[4]}, 13, v{V_J}")
        e(f"v_lshl_add_u32 v{R[4]}, v{V_N}, 4, v{R[4]}")
        for r in range(4):
            e(f"v_mov_b32 v{R[4]+4+r}, 0")
        e(f"v_mov_b32 v{R[4]+1}, {CNT}")
        k.ds(f"ds_write_b128 v{R[4]+1}, {vr(R[4]+4,4)}")
        k.ds(f"ds_write_b128 v{R[4]+1}, {vr(R[4]+4,4)} offset:{CNTB-CNT}")

    k.p1_multi([0, 136], pre, R[1], [0, P1B])
    e(f"v_mov_b32 v29, v{R[4]}")
    k.sexpr(S_TMP, [(3, 0, 3, 20), (2, 0, None, 8)])
    k.addr(S_A, S_WUV, S_TMP)
    k.sexpr(S_TMP, [(2, 0, None, 17), (3, 2, None, 16), (3, 0, 3, 8)])
    k.addr(S_C, S_WOA, S_TMP)
    e(f"v_lshlrev_b32 v28, 16, v{V_J}")
    e(f"v_lshl_add_u32 v28, v{V_N}, 4, v28")
    k.sexpr(S_TMP, [(3, 0, 3, 15), (3, 2, None, 14)], WOL)
    e("v_lshlrev_b32 v31, 4, v0")
    e(f"v_add_u32 v30, s{S_TMP}, v31")
    k.sexpr(S_P, [(3, 0, None, 10)], WSC)
    DA_, DB_ = o.get("depth_ta", 3), o.get("depth_tb", 3)

    def wperm(g):
        k.vmwait(tok["w", g])
        for i in range(8):
            k.frag(R[g] + 4 * i, R[g + 1], i, 8)

    def operm(g):
        k.vmwait(tok["o", g])
        for i in range(8):
            x = 8 + 4 * (i & 3)
            k.frag(x, R[5 + g], i, 8)
            k.ds(f"ds_write_b128 v30, {vr(x,4)} offset:{g*8192+i*1024}")

    for n in range(16):
        k.throttle(D)
        tok["o", n >> 3] = k.ld4(R[5] + 4 * n, 29, S_C, (n & 3) * 1024)
        if n & 3 == 3:
            k.adv(S_C, 4096 if n & 4 == 0 else 4096 * 7)
        if n == 11:
            operm(0)
    e("s_cmp_ge_u32 s3, 4")
    e("s_cbranch_scc1 L_ldB")
    base = k.vm_n
    for n in range(32):
        k.throttle(DA_ if n < o.get("ta_sw", 16) else o.get("depth_ta2", 4))
        tok["w", n >> 3] = k.ld4(R[1] + 4 * n, 28, S_A)
        k.adv(S_A, 8192 if n & 7 < 7 else 8192 * 25)
        if n == 3:
            operm(1)
            k.arrive(CNT)
        if n & 7 == 3 and n > 8:
            wperm((n >> 3) - 1)
    wperm(3)
    e("s_branch L_ldok")
    k.label("L_ldB")
    k.vm_n = base
    TT = o.get("t_t", 2)
    c = Chunk(k, TT, 0, KR=[32, 48, 64, 80], VR=[96, 112, 128, 144], QF=160, SR=176, ACC=192, X=224, VA=24, CNT=CNTB,
              sK=S_A, sV=S_D, sQ=S_B, w0=4, lds=(TBW, OB, 0), XR=16)
    k.sexpr(c.sPair, [(2, 0, 1, 3), (2, 2, None, 0)])
    k.sexpr(c.sChunk, [(2, 1, 1, 0)], 14)
    k.sexpr(c.sTile, [(2, 1, 1, 2), (3, 0, 3, 0)])
    e(f"s_mul_i32 s{c.sTile}, s{c.sTile}, {TT}")
    e(f"s_add_u32 s{c.sTile}, s{c.sTile}, {512 - 32 * o.get('a_t', 1) - 8 * TT}")
    c.setup()
    c.qaddr()
    DC = o.get("depth_tc", 3)
    c.kload(0, DC)
    operm(1)
    k.arrive(CNT)
    qtok = c.qissue(True)
    for t in range(1, TT):
        c.kload(t, DC)
    c.vload(0, DC)
    c.qpiece(qtok)
    c.vload(1, DC)
    c.qread()
    k.lgwait()
    for t in range(TT):
        c.qk(t)
    if TT > 2:
        c.vload(2, DC)
    c.softmax()
    if TT > 3:
        c.vload(3, DC)
    c.pv(0, 2, first=True)
    c.factor(32)
    if TT > 2:
        c.pv(2, TT - 2)
    k.remap = {8: 7, 9: 8}
    c.finish(32, 8)
    k.remap = {11: 2, 12: 3}
    k.label("L_ldok")
    e(f"v_bfe_u32 v26, v{V_N}, 2, 1")
    e("v_lshlrev_b32 v25, 8, v26")
    e(f"v_lshl_add_u32 v25, v{V_J}, 4, v25")
    e("v_lshlrev_b32 v24, 3, v0")
    e(f"s_lshr_b32 s{S_P+1}, s3, 2")
    k.sexpr(S_TMP, [(S_P + 1, 0, None, 17), (3, 0, 3, 15), (2, 0, None, 7)])
    k.addr(S_C, S_WS, S_TMP, WS_OUTP)
    e(f"v_lshrrev_b32 v4, 1, v{V_N}")
    e("v_lshlrev_b32 v4, 12, v4")
    e(f"v_and_b32 v5, 1, v{V_N}")
    e("v_lshl_add_u32 v4, v5, 5, v4")
    e(f"v_and_b32 v5, 1, v{V_J}")
    e("v_lshl_add_u32 v4, v5, 6, v4")
    e(f"v_lshrrev_b32 v5, 1, v{V_J}")
    e("v_lshl_add_u32 v23, v5, 4, v4")
    e(f"s_mov_b32 s{S_D}, 0")
    e(f"s_mov_b32 s{S_D+1}, -1")
    k.sexpr(S_TMP, [(S_P + 1, 0, None, 17), (2, 0, None, 12)])
    k.addr(SF, S_WS, S_TMP, WS_OUTP)
    k.sexpr(S_TMP, [(S_P + 1, 0, None, 10), (2, 0, None, 5)])
    k.addr(SO, S_OUT, S_TMP)
    e("v_bfe_u32 v4, v0, 2, 1")
    e("v_lshlrev_b32 v4, 11, v4")
    e("v_and_b32 v5, 3, v0")
    e("v_lshl_add_u32 v27, v5, 3, v4")
    e("v_bfe_u32 v4, v0, 4, 1")
    e("v_lshl_add_u32 v27, v4, 2, v27")
    e("v_lshrrev_b32 v4, 5, v0")
    e("v_lshl_add_u32 v27, v4, 1, v27")
    if o.get("touch", 0) & 1:
        k.sexpr(S_TMP, [(3, 0, 3, 10)])
        e(f"v_add_u32 v4, s{S_TMP}, v31")
        k.ld4(12, 4, SF, 0, "sc1")
    k.stamp(4)
    X = R[4]
    PA = [R[6] + 8 * kg for kg in range(4)]
    PD = [R[5] + 16 + 4 * i for i in range(4)] + [R[6] + 4 + 8 * i for i in range(4)]

    def proj():
        for kg in range(4):
            for i in range(8):
                d = vr(PD[i], 4)
                e(f"v_mfma_f32_16x16x32_bf16 {d}, {vr(PA[kg],4)}, {vr(R[kg]+4*i,4)}, {'0' if kg == 0 else d}")

    def publish():
        for i in range(4):
            e(f"v_cndmask_b32 v{8+i}, v{PD[i]}, v{PD[4+i]}, {sr(S_D)}")
        k.tag4(8)
        k.vm(f"global_store_dwordx4 v23, v[8:11], {sr(S_C)} sc1")

    e("s_cmp_ge_u32 s3, 4")
    e("s_cbranch_scc1 L_tailB")
    base = k.vm_n
    e(f"s_lshl_b32 s{S_TMP}, s2, {3 if o.get('lt', 1) else 9}")
    k.addr(S_A, S_WS, S_TMP, WS_LSEA)
    e(f"v_lshlrev_b32 v22, {8 if o.get('lt', 1) else 3}, v0")
    k.sexpr(S_TMP, [(2, 0, None, 16), (3, 0, None, 8)])
    LB = [98, 100, sW, S_B]
    k.addr(LB[0], S_WS, S_TMP, WS_LATP)
    for i in range(1, 4):
        k.addr(LB[i], LB[0], None, (i >> 1) * 32768 + (i & 1) * 4096)
    sIss, sBlk = 92, 94
    top, done = k.newlabel("L_lat"), k.newlabel("L_latok")
    e(f"s_mov_b64 {sr(sIss)}, 0")
    e(f"v_lshlrev_b32 v21, 3, v{V_J}")
    e(f"s_mov_b32 s{S_SPIN}, {SPIN_MAX}")
    sN = 91
    k.await_cnt(CNT, 8)
    if o.get("go", 0):
        e(f"s_lshl_b32 s{S_TMP}, s2, 7")
        k.addr(S_P + 5, S_WS, S_TMP, WS_GO)
        e("v_mov_b32 v4, 0")

        def gopoll():
            k.poll(lambda: k.vm(f"global_load_dword v9, v4, {sr(S_P + 5)} sc1"), lambda: e(f"v_cmp_ne_u32 {sr(S_BAD)}, v9, v{V_T}"))
            k.arrive(CNT + 12)

        k.when("s_cmp_eq_u32 s3, 0", gopoll)
        k.await_cnt(CNT + 12, 1)
    e(f"s_mov_b32 s{S_SPIN}, {SPIN_MAX}")
    k.cond += 1
    k.vm(f"global_load_dwordx2 v[8:9], v22, {sr(S_A)} sc1")
    e(f"s_mov_b32 s{sN}, 0")
    k.label(top)
    e(f"s_sub_u32 s{S_SPIN}, s{S_SPIN}, 1")
    e(f"s_cbranch_scc1 {done}")
    if o.get("dbg_sleep"):
        e(f"s_sleep {o['dbg_sleep']}")
    got = k.newlabel("L_lw")
    for n in (8, 4, 2, 1):
        e(f"s_waitcnt vmcnt({n})")
        e(f"s_cmp_ge_u32 s{sN}, {n}")
        e(f"s_cbranch_scc1 {got}")
    e("s_waitcnt vmcnt(0)")
    k.label(got)
    e(f"v_cmp_ne_u32 {sr(S_BAD)}, v9, v{V_T}")
    e("v_mov_b32 v12, v8")
    e(f"s_mov_b32 s{sN}, 0")
    k.vm(f"global_load_dwordx2 v[8:9], v22, {sr(S_A)} sc1")
    e(f"s_nor_b64 {sr(sBlk)}, {sr(S_BAD)}, {sr(sIss)}")
    e(f"s_cbranch_scc0 {top}")
    e(f"s_or_b64 {sr(sIss)}, {sr(sIss)}, {sr(sBlk)}")
    for b_ in range(2):
        skb = k.newlabel("L_lskb")
        e(f"s_cmp_eq_u32 s{sBlk+b_}, 0")
        e(f"s_cbranch_scc1 {skb}")
        e(f"v_lshrrev_b32 v10, v21, s{sBlk+b_}")
        for t in range(8):
            sk = k.newlabel("L_lsk")
            e(f"v_and_b32 v11, {1 << t}, v10")
            e(f"v_cmp_ne_u32 vcc, 0, v11")
            e(f"s_and_saveexec_b64 {sr(S_TMP)}, vcc")
            e(f"s_cbranch_execz {sk}")
            k.ld4(R[5] + 32 * b_ + 4 * t, 29, LB[2 * b_ + (t >> 2)], (t & 3) * 1024, ['sc1', 'sc1 nt', 'sc0 sc1 nt'][o.get('lat_ld', 1)])
            e(f"s_add_u32 s{sN}, s{sN}, 1")
            k.label(sk)
            k.exec_all()
        k.label(skb)
    e(f"s_cmp_lg_u64 {sr(sIss)}, -1")
    e(f"s_cbranch_scc1 {top}")
    k.cond -= 1
    k.label(done)
    k.stamp(5)

    def retag():
        e("v_lshlrev_b32 v4, 2, v0")
        k.exec_set(0xffffffff, 0)
        k.vm(f"global_store_dword v4, v{V_T}, {sr(S_WS)}")
        k.exec_all()

    e(f"s_or_b32 s{S_TMP}, s2, s3")
    k.when(f"s_cmp_eq_u32 s{S_TMP}, 0", retag)
    if o.get("prio", 0):
        e("s_setprio 2")

    def red32(op, r, tmp):
        for sh in (8, 4, 2, 1):
            e(f"{op}_dpp v{r}, v{r}, v{r} row_ror:{sh} row_mask:0xf bank_mask:0xf")
        k.xrow(op, [r], [tmp], (16,))

    e("v_mov_b32 v10, v12")
    red32("v_max_f32", 10, 11)
    e("v_sub_f32 v12, v12, v10")
    e("v_exp_f32 v12, v12")
    e("v_lshrrev_b32 v4, 5, v0")
    e("v_mov_b32 v10, v12")
    red32("v_add_f32", 10, 11)
    e("v_rcp_f32 v10, v10")
    e("v_lshlrev_b32 v4, 7, v4")
    e("v_mul_f32 v12, v12, v10")
    e("v_cvt_pk_bf16_f32 v13, v12, v12")
    e("v_and_b32 v10, 0xffff0000, v13")
    e("v_sub_f32 v12, v12, v10")
    e("v_cvt_pk_bf16_f32 v10, v12, v12")
    e("v_and_b32 v5, 31, v0")
    e("v_lshl_add_u32 v4, v5, 1, v4")
    e(f"v_add_u32 v4, s{S_P}, v4")
    k.ds("ds_write_b16 v4, v13")
    k.ds("ds_write_b16 v4, v10 offset:64")
    e(f"v_and_b32 v4, 1, v{V_N}")
    e("v_lshlrev_b32 v4, 6, v4")
    e(f"v_lshl_add_u32 v4, v{V_J}, 4, v4")
    e(f"v_add_u32 v4, s{S_P}, v4")
    k.lgwait()
    k.ds(f"ds_read_b128 {vr(R[4]+24,4)}, v4")
    k.ds("ds_read_b128 v[12:15], v4 offset:128")
    e(f"v_lshlrev_b32 v4, 4, v{V_N}")
    e(f"v_add_u32 v4, s{S_P}, v4")
    e(f"v_add_u32 v5, s{S_P}, v25")
    k.lgwait()
    e("s_waitcnt vmcnt(0)")
    k.stamp(6)
    for i in range(4):
        e(f"v_mov_b32 v{8+i}, v{R[4]+24+i}")
    for b_ in range(2):
        for i in range(8):
            x = 16
            k.frag(x, R[5 + b_], i, 8)
            e(f"v_mfma_f32_16x16x32_bf16 {vr(X+4*i,4)}, {vr(8+4*b_,4)}, {vr(x,4)}, 0")
        for i in range(8):
            e(f"v_add_f32 v{X+4*i}, v{X+4*i}, v{X+4*i+1}")
        for i in range(4):
            e(f"v_cvt_pk_bf16_f32 v{R[5+b_]+i}, v{X+8*i}, v{X+8*i+4}")
        k.exec_set(0xffff, 0)
        k.ds(f"ds_write_b128 v4, {vr(R[5+b_],4)} offset:{256+b_*256}")
        k.exec_all()
    k.lgwait()
    AF = R[5]
    for kg in range(4):
        k.ds(f"ds_read_b128 {vr(AF+4*kg,4)}, v5 offset:{256+kg*64}")
    k.sexpr(S_TMP, [(3, 0, None, 10)], CS)
    e(f"v_lshlrev_b32 v4, 5, v{V_N}")
    e(f"v_lshl_add_u32 v4, v{V_J}, 9, v4")
    e(f"v_add_u32 v4, s{S_TMP}, v4")
    k.lgwait()
    for kg in range(4):
        for i in range(8):
            d = vr(X + 4 * i, 4)
            e(f"v_mfma_f32_16x16x32_bf16 {d}, {vr(AF+4*kg,4)}, {vr(R[kg]+4*i,4)}, {'0' if kg == 0 else d}")
    k.sexpr(S_TMP, [(3, 0, None, 15)], WOL)
    e(f"v_add_u32 v30, s{S_TMP}, v31")
    k.exec_set(0xffffffff, 0)
    for i in range(0, 8, 2):
        k.ds(f"ds_write2_b32 v4, v{X+4*i}, v{X+4*i+4} offset0:{i} offset1:{i+1}")
    k.arrive(CNT + 4)
    for f in range(32):
        k.ds(f"ds_read_b128 {vr(R[0]+4*f,4)}, v30 offset:{f*1024}")
    e(f"v_add_u32 v4, {CS}, v31")
    k.stamp(12)
    k.await_cnt(CNT + 4, 4)
    k.stamp(11)
    for w in range(4):
        k.ds(f"ds_read_b128 {vr(X+4*w,4)}, v4 offset:{w*1024}")
    e(f"v_add_u32 v4, s{S_P}, v24")
    k.lgwait()
    k.tree_add4(X, 4)
    e(f"v_cvt_pk_bf16_f32 v8, v{X}, v{X+1}")
    e(f"v_cvt_pk_bf16_f32 v9, v{X+2}, v{X+3}")
    k.ds("ds_write_b64 v4, v[8:9]")
    k.lgwait()
    for kg in range(4):
        k.ds(f"ds_read_b128 {vr(PA[kg],4)}, v5 offset:{kg*64}")
    k.lgwait()
    proj()
    e("s_branch L_proj")
    k.c("================ GQA tail")
    k.label("L_tailB")
    k.vm_n = base
    Y = R[4]

    def issue_o(i):
        for c in range(4):
            k.ld4(Y + 16 * i + 4 * c, 21 - (c >> 1), S_B, (c & 1) * 512, "sc1")

    def check_o(i):
        k.chkn([Y + 16 * i + 4 * c for c in range(4)], 6, 7)

    def comb(i):
        k.untag(Y + 16 * i, 16)
        k.lgwait()
        for r in range(4):
            e(f"v_mul_f32 v{8+r}, v12, v{Y+16*i+r}")
        for c in range(1, 4):
            for r in range(4):
                e(f"v_fmac_f32 v{8+r}, v{12+c}, v{Y+16*i+4*c+r}")

    e(f"s_lshl_b32 s{S_TMP}, s2, 9")
    k.addr(S_A, S_WS, S_TMP, WS_LSEB)
    e("v_lshrrev_b32 v4, 5, v0")
    e("v_lshlrev_b32 v5, 8, v4")
    e(f"v_min_u32 v6, {NCB-1}, v{V_N}")
    e("v_lshl_add_u32 v22, v6, 4, v5")
    e(f"v_cmp_gt_u32 {sr(98)}, {NCB}, v{V_N}")
    e(f"s_mul_i32 s{S_TMP}, s2, {2*NCB*512}")
    k.sexpr(S_P + 2, [(3, 0, 3, 11)])
    e(f"s_add_u32 s{S_TMP}, s{S_TMP}, s{S_P+2}")
    k.addr(S_B, S_WS, S_TMP, WS_OP)
    e(f"v_mul_u32_u24 v4, {NCB*512}, v4")
    e("v_and_b32 v5, 31, v0")
    e("v_lshl_add_u32 v21, v5, 4, v4")
    e("v_add_u32 v20, 0x400, v21")
    k.sexpr(S_TMP, [(3, 0, 3, 8)], TBW)
    e(f"v_lshlrev_b32 v4, 2, v0")
    e(f"v_add_u32 v19, s{S_TMP}, v4")
    e("v_lshrrev_b32 v4, 5, v0")
    e("v_lshlrev_b32 v4, 7, v4")
    k.sexpr(S_P + 2, [(3, 0, 3, 4), (S_TMP, 0, None, 0)])
    e(f"v_add_u32 v18, s{S_P+2}, v4")
    k.sexpr(S_TMP, [(3, 0, 3, 9)], OB)
    e(f"v_add_u32 v17, s{S_TMP}, v24")
    e(f"v_and_b32 v4, 3, v{V_N}")
    e("v_lshl_add_u32 v4, v4, 9, v25")
    e(f"v_add_u32 v16, {OB}, v4")
    if o.get("touch", 0) & 2:
        issue_o(0)
    k.poll_pipe(o.get("np_l", 1), 1, lambda i: k.ld4(Y + 48 + 4 * i, 22, S_A, 0, "sc1"), lambda i: k.chk_full(Y + 48 + 4 * i, 6, 7),
                lambda i: e(f"v_and_b32 v8, s{S_X2}, v{Y+48+4*i}"))
    e("v_mov_b32 v9, 0xff800000")
    e(f"v_cndmask_b32 v8, v9, v8, {sr(98)}")
    e("v_mov_b32 v10, v8")
    for sh in (8, 4, 2, 1):
        e(f"v_max_f32_dpp v10, v10, v10 row_ror:{sh} row_mask:0xf bank_mask:0xf")
    e("v_sub_f32 v8, v8, v10")
    e("v_exp_f32 v8, v8")
    e("v_mov_b32 v10, v8")
    for sh in (8, 4, 2, 1):
        e(f"v_add_f32_dpp v10, v10, v10 row_ror:{sh} row_mask:0xf bank_mask:0xf")
    e("v_rcp_f32 v10, v10")
    e("v_mul_f32 v8, v8, v10")
    k.ds("ds_write_b32 v19, v8")
    k.lgwait()
    k.ds("ds_read_b128 v[12:15], v18")
    k.stamp(7)

    k.poll_pipe(o.get("np_o", 1), 4, issue_o, check_o, comb)
    k.stamp(8)
    e("v_cvt_pk_bf16_f32 v8, v8, v9")
    e("v_cvt_pk_bf16_f32 v9, v10, v11")
    k.ds("ds_write_b64 v17, v[8:9]")
    k.arrive(CNTB)
    k.await_cnt(CNTB, 4)
    k.stamp(11)
    if o.get("prio", 0):
        e("s_setprio 3")
    for kg in range(4):
        k.ds(f"ds_read_b128 {vr(PA[kg],4)}, v16 offset:{kg*64}")
    k.lgwait()

    def rowsum(i):
        e(f"v_add_f32 v{PD[i]}, v{PD[i]}, v{PD[i]+1}")
        e(f"v_add_f32 v{PD[i]+2}, v{PD[i]+2}, v{PD[i]+3}")
        e(f"v_add_f32 v{PD[i]}, v{PD[i]}, v{PD[i]+2}")

    for i in range(8):
        for kg in range(4):
            d = vr(PD[i], 4)
            e(f"v_mfma_f32_16x16x32_bf16 {d}, {vr(PA[kg],4)}, {vr(R[kg]+4*i,4)}, {'0' if kg == 0 else d}")
            if i >= 2 and kg == 1:
                rowsum(i - 2)
    rowsum(6)
    rowsum(7)
    k.c("================ publish the head's partial output, final sum over heads")
    k.label("L_proj")
    publish()
    k.stamp(9)
    e("s_and_b32 s62, s3, 3")
    e("s_cbranch_scc1 L_fin")
    F = R[0]

    def issue(i):
        for q in range(4):
            k.ld4(F + 16 * i + 4 * q, 31, SF, q * 1024, "sc1")

    def check(i):
        k.chkn([F + 16 * i + 4 * q for q in range(4)], 6, 7)

    def fin(i):
        k.untag(F + 16 * i, 16)
        for r in range(8):
            e(f"v_add_f32 v{12+r}, v{F+16*i+r}, v{F+16*i+8+r}")

    lab, lab2 = k.newlabel("L_fa"), k.newlabel("L_fb")
    e("s_cmp_eq_u32 s3, 0")
    e(f"s_cbranch_scc1 {lab}")
    k.poll_pipe(o.get("np_f", 1), 4, issue, check, fin)
    e(f"s_branch {lab2}")
    k.label(lab)
    k.poll_pipe(1, 4, issue, check, fin)
    k.label(lab2)
    k.stamp(10)
    k.tree_add4(12, 2)
    e("v_permlane32_swap_b32 v12, v13")
    e("v_permlane32_swap_b32 v14, v15")
    e("v_add_f32 v12, v12, v13")
    e("v_add_f32 v14, v14, v15")
    e("v_permlane16_swap_b32 v12, v14")
    e("v_add_f32 v12, v12, v14")
    e("v_add_f32_dpp v12, v12, v12 row_ror:8 row_mask:0xf bank_mask:0xf")
    e("v_cvt_pk_bf16_f32 v12, v12, v12")
    k.exec_set(0x00ff00ff, 0x00ff00ff)
    k.vm(f"global_store_short v27, v12, {sr(SO)}")
    e("s_branch L_fin")


def finish(k):
    e = k.e
    k.label("L_fin")
    if k.o.get("stamps"):
        k.exec_all()
        k.stamp(15)
        k.sexpr(S_TMP, [(S_DBG, 0, None, 7)])
        e(f"s_load_dwordx2 {sr(S_WS)}, s[0:1], 104")
        e("s_waitcnt lgkmcnt(0)")
        k.addr(S_A, S_WS, S_TMP, WS_STAMP)
        e("s_waitcnt lgkmcnt(0)")
        e("v_mov_b32 v4, 0")
        k.exec_set(1, 0)
        for i in range(8):
            for q in range(4):
                e(f"v_mov_b32 v{8+q}, s{S_STAMP+4*i+q}")
            e(f"global_store_dwordx4 v4, v[8:11], {sr(S_A)} offset:{i*16}")
    k.label("L_end")
    e("s_endpgm")


def tile_table(o):
    late, par, b2 = o.get("adj_late", 0), o.get("adj_par", 0), o.get("adj_b2", -2 if o.get("t_one", 0) else 0)
    tot = 512 - 32 * o.get("a_t", 1) - 8 * o.get("t_t", 2)
    kind = lambda i: (i >= 128, (i & 7) >= 4, (i >> 3) & 1 if i < 128 else 0)
    members = [[] for _ in range(16)]
    for i in range(NB):
        members[(((i >> 4) if i < 128 else (i >> 3)) & 1) * 8 + (i & 7)].append(i)
    out = [0] * NB
    n2 = o.get("n2", 30)
    for p, m in enumerate(members):
        w = []
        for i in m:
            isb2, isl, odd = kind(i)
            ae, ao = o.get("adj_e", 0), o.get("adj_o", 0)
            w.append(n2 if isb2 else (tot - 2 * n2) / 8 + ((ae if odd else -ae) if isl else 0))
        n = [int(v // 1) for v in w]
        for j in sorted(range(10), key=lambda j: n[j] - w[j])[:tot - sum(n)]:
            n[j] += 1
        assert sum(n) == tot
        st = 0
        for ch, (i, v) in enumerate(zip(m, n)):
            lo = 24 if i >= 128 else 40
            assert lo <= v <= (32 if i >= 128 else 56)
            out[i] = st | min(v - lo, 8) << 16 | max(v - lo - 8, 0) << 20 | p << 24 | ch << 28
            st += v
    return out


def generate(**opt):
    k = K(opt)
    head = [l.rstrip("\n") for l in open(REF) if l.startswith(";") and "@launch" not in l and "Override" not in l and "grid=ceil" not in l]
    L = k.L
    L += head
    L += ABOUT.split("\n")
    L.append("; @launch grid=(256,1,1) block=(512,1,1) lds=163840")
    L.append('.amdgcn_target "amdgcn-amd-amdhsa--gfx950"')
    L += [".text", f".globl {NAME}_kernel", ".p2align 8", f".type {NAME}_kernel,@function", f"{NAME}_kernel:"]
    if opt.get("stamps"):
        for r in range(S_STAMP, S_STAMP + 32):
            k.e(f"s_mov_b32 s{r}, 0")
    k.prologue()
    k.e(f"s_cmp_ge_u32 s2, {NT+NA}")
    k.e("s_cbranch_scc1 L_roleB")
    k.e(f"s_cmp_ge_u32 s2, {NT}")
    k.e("s_cbranch_scc1 L_roleA")
    base = k.vm_n
    role_T(k)
    k.vm_n = base
    k.remap = {}
    role_A(k)
    k.vm_n = base
    role_B(k)
    finish(k)
    L.append(".p2align 2")
    L.append(".type L_tiles,@object")
    L.append("L_tiles:")
    L += [f".long {w:#x}" for w in tile_table(opt)]
    L += ['.section .rodata,"a"', ".p2align 6", f".amdhsa_kernel {NAME}_kernel",
          "  .amdhsa_next_free_vgpr 256", "  .amdhsa_next_free_sgpr 102", "  .amdhsa_accum_offset 256",
          "  .amdhsa_group_segment_fixed_size 0", "  .amdhsa_kernarg_size 112", "  .amdhsa_user_sgpr_count 2",
          "  .amdhsa_user_sgpr_kernarg_segment_ptr 1", "  .amdhsa_system_sgpr_workgroup_id_x 1", ".end_amdhsa_kernel"]
    return k.text()


if __name__ == "__main__":
    opt = {}
    for a in sys.argv[2:]:
        kk, v = a.split("=")
        opt[kk] = int(v)
    open(sys.argv[1], "w").write(generate(**opt))
```

```python
import sys, struct
from asmlib import Gen, vr, sr

NAME = "concat_heads__compressed_kv_cla__gqa_block_cached__decode"
REF = "cdna_kernels/" + NAME + ".s.ref"

NT, NA, NB = 32, 64, 160
WOL, TBW, OB, CNTB = 32768, 26624, 27648, 29696
NCB = 16
WS_QP = 0x010000
WS_QA = 0x060000
WS_LSEA = 0x090000
WS_GO = 0x098000
WS_XID = 0x09C000
WS_LSEB = 0x0A0000
WS_OP = 0x0B0000
WS_OUTP = 0x140000
WS_LATP = 0x200000
WS_STAMP = 128 << 20
SCALE = (128 ** -0.5) * 1.4426950408889634

ABOUT = """;
; Hand-offs between workgroups go through d_ws; every piece carries this launch's tag (previous tag + 0x01010101,
;"""


def f2u(x):
    return struct.unpack("<I", struct.pack("<f", x))[0]


S_AX, S_CKV, S_WQA, S_WUK, S_WUV, S_WOA, S_BX, S_K, S_V, S_WQB, S_WOB, S_OUT, S_DBG, S_WS = range(4, 32, 2)
S_E, S_T = 32, 33
S_SEL = 34
S_LO, S_HI = 38, 39
S_A, S_B, S_C, S_D = 40, 42, 44, 46
S_X0, S_X1, S_X2 = 48, 49, 50
S_SC = 51
S_SPIN = 52
S_P = 53
S_BAD = 60
S_TMP = 62
S_STAMP = 64
S_EVEN = 96
S_SL = 100
S_LOC = 90
V_L, V_N, V_J, V_T = 0, 1, 2, 3
SPIN_MAX = 1 << 18
PUBW = 7


class K(Gen):
    def __init__(self, opt):
        super().__init__()
        self.o = opt
        self.remap = {}
        self.role7 = False

    def stamp(self, k):
        if self.o.get("stamps"):
            self.e(f"s_memrealtime {sr(S_STAMP + 2 * self.remap.get(k, k))}")

    def addr(self, dst, base, off_s=None, off_i=0):
        if off_s is not None:
            self.e(f"s_add_u32 s{dst}, s{base}, s{off_s}")
            self.e(f"s_addc_u32 s{dst+1}, s{base+1}, 0")
            base = dst
        if off_i or off_s is None:
            self.e(f"s_add_u32 s{dst}, s{base}, {off_i}")
            self.e(f"s_addc_u32 s{dst+1}, s{base+1}, 0")

    def adv(self, a, n):
        self.e(f"s_add_u32 s{a}, s{a}, {n}")
        self.e(f"s_addc_u32 s{a+1}, s{a+1}, 0")

    def sexpr(self, dst, terms, const=0):
        first = True
        for reg, shr, mask, shl in terms:
            t = dst if first else S_TMP + 1
            src = reg
            if shr:
                self.e(f"s_lshr_b32 s{t}, s{src}, {shr}"); src = t
            if mask is not None:
                self.e(f"s_and_b32 s{t}, s{src}, {mask}"); src = t
            if shl or src != t:
                self.e(f"s_lshl_b32 s{t}, s{src}, {shl}")
            if not first:
                self.e(f"s_add_u32 s{dst}, s{dst}, s{t}")
            first = False
        if const:
            self.e(f"s_add_u32 s{dst}, s{dst}, {const}")

    def ld4(self, dst, voff, sbase, off=0, fl="nt"):
        return self.vm(f"global_load_dwordx4 {vr(dst,4)}, v{voff}, {sr(sbase)} offset:{off} {fl}")

    def throttle(self, d):
        if d:
            self.e(f"s_waitcnt vmcnt({d-1})")

    def tag4(self, r):
        for k in range(4):
            self.e(f"v_perm_b32 v{r+k}, v{r+k}, v{V_T}, s{S_SEL+k}")

    def untag(self, r, n=4):
        for i in range(n):
            self.e(f"v_and_b32 v{r+i}, s{S_X2}, v{r+i}")

    def chkn(self, regs, acc, tmp):
        if self.o.get("nodep"):
            self.e(f"s_mov_b64 {sr(S_BAD)}, 0")
            return
        for i, r in enumerate(regs):
            self.e(f"v_perm_b32 v{tmp}, v{r+3}, v{r}, s{S_X0}")
            if len(regs) == 1:
                self.e(f"v_cmp_ne_u32 {sr(S_BAD)}, s{S_X1}, v{tmp}")
                return
            if i == 0:
                self.e(f"v_xor_b32 v{acc}, s{S_X1}, v{tmp}")
            else:
                self.e(f"v_xad_u32 v{acc}, v{tmp}, s{S_X1}, v{acc}")
        self.e(f"v_cmp_ne_u32 {sr(S_BAD)}, 0, v{acc}")

    def chk4(self, r, tmp, first):
        self.chkn([r], tmp, tmp)

    def chk_full(self, r, a, b):
        if self.o.get("nodep"):
            self.e(f"s_mov_b64 {sr(S_BAD)}, 0")
            return
        self.e(f"v_perm_b32 v{a}, v{r+1}, v{r}, s{S_X0}")
        self.e(f"v_perm_b32 v{b}, v{r+3}, v{r+2}, s{S_X0}")
        self.e(f"v_lshl_or_b32 v{a}, v{b}, 16, v{a}")
        self.e(f"v_cmp_ne_u32 {sr(S_BAD)}, v{a}, v{V_T}")

    def poll(self, issue, check, pre_issued=None, light=None):
        top, done = self.newlabel("L_poll"), self.newlabel("L_got")
        self.e(f"s_mov_b32 s{S_SPIN}, {SPIN_MAX}")
        if pre_issued is not None:
            self.vmwait(pre_issued)
            check()
            self.e(f"s_cmp_eq_u64 {sr(S_BAD)}, 0")
            self.e(f"s_cbranch_scc1 {done}")
        self.label(top)
        self.cond += 1
        self.e(f"s_sub_u32 s{S_SPIN}, s{S_SPIN}, 1")
        self.e(f"s_cbranch_scc1 {done}")
        if light:
            light[0]()
            self.e("s_waitcnt vmcnt(0)")
            light[1]()
            self.e(f"s_cmp_eq_u64 {sr(S_BAD)}, 0")
            self.e(f"s_cbranch_scc0 {top}")
        issue()
        self.e("s_waitcnt vmcnt(0)")
        check()
        self.cond -= 1
        self.e(f"s_cmp_eq_u64 {sr(S_BAD)}, 0")
        self.e(f"s_cbranch_scc0 {top}")
        self.label(done)

    def poll_pipe(self, nset, nld, issue, check, finish):
        top, done = self.newlabel("L_pp"), self.newlabel("L_ppok")
        oks = [self.newlabel("L_ppv") for _ in range(nset)]
        self.cond += 1
        self.e(f"s_mov_b32 s{S_SPIN}, {SPIN_MAX}")
        for i in range(nset - 1):
            issue(i)
        self.label(top)
        if self.o.get("dbg_sleep2") and nld == 1:
            self.e(f"s_sleep {self.o['dbg_sleep2']}")
        for i in range(nset):
            issue((i + nset - 1) % nset)
            self.e(f"s_waitcnt vmcnt({nld * (nset - 1)})")
            check(i)
            self.e(f"s_cmp_eq_u64 {sr(S_BAD)}, 0")
            self.e(f"s_cbranch_scc1 {oks[i]}")
        self.e(f"s_sub_u32 s{S_SPIN}, s{S_SPIN}, 1")
        self.e(f"s_cbranch_scc0 {top}")
        for i in reversed(range(nset)):
            self.label(oks[i])
            finish(i)
            if i:
                self.e(f"s_branch {done}")
        self.label(done)
        self.cond -= 1

    def when(self, cmp, fn):
        lab = self.newlabel("L_skip")
        self.e(cmp)
        self.e(f"s_cbranch_scc0 {lab}")
        self.cond += 1
        fn()
        self.cond -= 1
        self.label(lab)

    def arrive(self, cnt):
        self.e("v_mov_b32 v6, 1")
        self.e(f"v_mov_b32 v7, {cnt}")
        self.exec_set(1, 0)
        self.ds("ds_add_u32 v7, v6")
        self.exec_all()

    def await_cnt(self, cnt, n):
        top, done = self.newlabel("L_cnt"), self.newlabel("L_cntok")
        e = self.e
        e(f"v_mov_b32 v7, {cnt}")
        e(f"s_mov_b32 s{S_SPIN}, {SPIN_MAX*16}")
        self.label(top)
        if self.o.get("dbg_sleep3"):
            e(f"s_sleep {self.o['dbg_sleep3']}")
        e("ds_read_b32 v6, v7")
        e(f"s_sub_u32 s{S_SPIN}, s{S_SPIN}, 1")
        e(f"s_cbranch_scc1 {done}")
        e("s_waitcnt lgkmcnt(0)")
        e(f"v_readfirstlane_b32 s{S_TMP}, v6")
        e(f"s_cmp_lt_u32 s{S_TMP}, {n}")
        e(f"s_cbranch_scc1 {top}")
        self.label(done)

    def xrow(self, op, regs, tmps, which=(16, 32)):
        for w in which:
            for r, t in zip(regs, tmps):
                self.e(f"v_mov_b32 v{t}, v{r}")
            for r, t in zip(regs, tmps):
                self.e(f"v_permlane{w}_swap_b32 v{t}, v{r}")
            for r, t in zip(regs, tmps):
                self.e(f"{op} v{r}, v{r}, v{t}")

    def frag(self, dst, raw, i, nld):
        for p in range(nld // 2):
            self.e(f"v_perm_b32 v{dst+p}, v{raw + 4*(2*p+1) + (i >> 1)}, v{raw + 4*(2*p) + (i >> 1)}, s{S_HI if i & 1 else S_LO}")

    def swap_pairs(self, pairs):
        dpp = "quad_perm:[1,0,3,2] row_mask:0xf bank_mask:0xf"
        self.e(f"s_mov_b64 vcc, {sr(S_EVEN)}")
        for d, a, b in pairs:
            for k in range(4):
                self.e(f"v_cndmask_b32_dpp v{d+k}, v{b+k}, v{a+k}, vcc {dpp}")
                self.e(f"v_xor_b32 v{a+k}, v{a+k}, v{d+k}")
            for k in range(4):
                self.e(f"v_xor_b32_dpp v{b+k}, v{a+k}, v{b+k} {dpp}")

    def tree_add4(self, r, n):
        st = n // 2
        while st:
            for w in range(st):
                for k in range(4):
                    self.e(f"v_add_f32 v{r+4*w+k}, v{r+4*w+k}, v{r+4*(w+st)+k}")
            st //= 2

    def chain(self, op3, op2, dst, regs):
        regs = list(regs)
        if len(regs) >= 3 and op3:
            self.e(f"{op3} v{dst}, v{regs[0]}, v{regs[1]}, v{regs[2]}")
            rest = regs[3:]
            while len(rest) >= 2:
                self.e(f"{op3} v{dst}, v{dst}, v{rest[0]}, v{rest[1]}")
                rest = rest[2:]
        else:
            self.e(f"{op2} v{dst}, v{regs[0]}, v{regs[1]}")
            rest = regs[2:]
        for r in rest:
            self.e(f"{op2} v{dst}, v{dst}, v{r}")

    def exec_set(self, lo, hi):
        self.e(f"s_mov_b32 exec_lo, {lo:#x}")
        self.e(f"s_mov_b32 exec_hi, {hi:#x}")

    def exec_all(self):
        self.e("s_mov_b64 exec, -1")

    def prologue(self):
        e = self.e
        e("s_cmp_ge_u32 s2, 256")
        e("s_cbranch_scc1 L_end")
        self.stamp(0)
        if self.o.get("stamps"):
            pass
        e("s_load_dwordx16 s[4:19], s[0:1], 0")
        e("s_load_dwordx8 s[20:27], s[0:1], 64")
        e("s_load_dwordx4 s[28:31], s[0:1], 96")
        e("v_lshrrev_b32 v4, 6, v0")
        e("v_and_b32 v0, 63, v0")
        e("v_readfirstlane_b32 s3, v4")
        e(f"v_and_b32 v{V_N}, 15, v0")
        e(f"v_lshrrev_b32 v{V_J}, 4, v0")

    def consts(self):
        e = self.e
        if self.o.get("wsoff"):
            self.adv(S_WS, self.o["wsoff"] << 20)
        e(f"s_load_dword s{S_E}, {sr(S_WS)}, 0")
        if self.o.get("cpf"):
            def pf():
                lab = self.newlabel("L_cp")
                e(f"s_getpc_b64 {sr(S_BAD)}")
                self.label(lab)
                e(f"s_sub_u32 s{S_BAD}, s{S_BAD}, {lab}-{NAME}_kernel")
                e(f"s_subb_u32 s{S_BAD+1}, s{S_BAD+1}, 0")
                self.sexpr(S_TMP, [(2, 3, None, 11)])
                e(f"s_min_u32 s{S_TMP}, s{S_TMP}, L_tiles-{NAME}_kernel-2048")
                self.addr(S_BAD, S_BAD, S_TMP)
                e("v_lshlrev_b32 v247, 5, v0")
                self.vm(f"global_load_dword v246, v247, {sr(S_BAD)}")
            self.when("s_cmp_eq_u32 s3, 1", pf)
        for k in range(4):
            e(f"s_mov_b32 s{S_SEL+k}, {0x07060500 + k:#x}")
        e(f"s_mov_b32 s{S_LO}, 0x05040100")
        e(f"s_mov_b32 s{S_HI}, 0x07060302")
        e(f"s_mov_b32 s{S_X0}, 0x0c0c0400")
        e(f"s_mov_b32 s{S_SC}, {f2u(SCALE):#x}")
        e(f"s_mov_b32 s{S_EVEN}, 0x55555555")
        e(f"s_mov_b32 s{S_EVEN+1}, 0x55555555")
        self.xid_publish(246)
        if self.o.get("stamps"):
            e(f"s_lshl_b32 s{S_DBG}, s2, 3")
            e(f"s_add_u32 s{S_DBG}, s{S_DBG}, s3")

    def bitmasks(self, r):
        e = self.e
        e("v_and_b32 v4, 3, v0")
        e("v_lshlrev_b32 v4, 3, v4")
        e(f"v_lshrrev_b32 v4, v4, v{V_T}")
        for q in range(4):
            e(f"v_bfe_u32 v5, v4, {2*q+1}, 1")
            e(f"v_bfe_u32 v{r+q}, v4, {2*q}, 1")
            e(f"v_lshl_or_b32 v{r+q}, v5, 16, v{r+q}")

    def xword(self, dst, tag):
        self.e(f"s_getreg_b32 s{S_TMP}, hwreg(HW_REG_XCC_ID)")
        self.e(f"s_and_b32 s{S_TMP}, s{S_TMP}, 15")
        self.e(f"s_and_b32 s{dst}, s{tag}, -16")
        self.e(f"s_or_b32 s{dst}, s{dst}, s{S_TMP}")

    def xid_publish(self, r):
        def go():
            e = self.e
            self.sexpr(S_TMP, [(2, 0, 7, 7), (2, 3, None, 2)])
            self.addr(S_BAD, S_WS, S_TMP, WS_XID)
            e("s_waitcnt lgkmcnt(0)")
            e(f"s_add_u32 s{S_LOC}, s{S_E}, 0x01010101")
            self.xword(S_LOC, S_LOC)
            e(f"v_mov_b32 v{r}, 0")
            e(f"v_mov_b32 v{r+1}, s{S_LOC}")
            self.exec_set(1, 0)
            self.vm(f"global_store_dword v{r}, v{r+1}, {sr(S_BAD)}" + (" sc1" if self.o.get("xsc", 0) else ""))
            self.exec_all()
        if self.o.get("xid", 1):
            self.when(f"s_cmp_eq_u32 s3, {self.o.get('xw', 1)}", go)
        self.e(f"s_mov_b32 s{S_LOC}, {self.o.get('force', 0)}")

    def xid_load(self, r, sG):
        self.sexpr(S_TMP, [(sG, 0, 7, 7)])
        self.addr(S_BAD, S_WS, S_TMP, WS_XID)
        self.e(f"v_and_b32 v{r}, 31, v0")
        self.e(f"v_lshlrev_b32 v{r}, 2, v{r}")
        return self.vm(f"global_load_dword v{r}, v{r}, {sr(S_BAD)} sc1")

    def xid_eval(self, r):
        if not self.o.get("loc", 1) or not self.o.get("xid", 1):
            return
        self.e(f"v_cmp_ne_u32 {sr(S_BAD)}, s{S_T}, v{r}")
        self.e(f"s_cmp_eq_u64 {sr(S_BAD)}, 0")
        self.e(f"s_cselect_b32 s{S_LOC}, 1, 0")

    def st_group(self, t):
        l1, l2 = self.newlabel("L_sl"), self.newlabel("L_sd")
        self.e(f"s_cmp_lg_u32 s{S_LOC}, 0")
        self.e(f"s_cbranch_scc1 {l1}")
        tok = self.vm(t + " sc1")
        self.e(f"s_branch {l2}")
        self.label(l1)
        self.e(t)
        self.label(l2)
        return tok

    def settag(self):
        self.e(f"s_add_u32 s{S_T}, s{S_E}, 0x01010101")
        self.e(f"v_mov_b32 v{V_T}, s{S_T}")
        self.e(f"s_lshr_b32 s{S_X1}, s{S_T}, 16")
        self.e(f"s_and_b32 s{S_X1}, s{S_X1}, 0xff00")
        self.e(f"s_and_b32 s{S_X2}, s{S_T}, 0xff")
        self.e(f"s_or_b32 s{S_X1}, s{S_X1}, s{S_X2}")
        self.e(f"s_mov_b32 s{S_X2}, 0xffffff00")
        self.xword(S_T, S_T)

    def p1_issue(self, sSl, sW, sX, xr, wr, first=True):
        e = self.e
        if first:
            e(f"v_lshlrev_b32 v4, 15, v{V_J}")
            e(f"v_lshl_add_u32 v4, v{V_N}, 4, v4")
            e(f"v_bfe_u32 v5, v{V_N}, 2, 1")
            e("v_lshlrev_b32 v5, 10, v5")
            e(f"v_lshl_add_u32 v5, v{V_J}, 3, v5")
        self.sexpr(S_TMP, [(sSl, 0, 3, 7), (3, 0, None, 4)])
        self.sexpr(S_A, [(S_TMP, 0, None, 13), (sSl, 2, 31, 8)])
        e(f"s_lshl_b32 s{S_TMP}, s{S_TMP}, 1")
        if first:
            e("s_waitcnt lgkmcnt(0)")
        sW(); sX()
        self.vm(f"global_load_dwordx2 {vr(xr, 2)}, v5, {sr(S_B)}")
        for t in range(4):
            tok = self.ld4(wr + 4 * t, 4, S_A)
            if t < 3:
                self.adv(S_A, 8192)
        if first:
            e("s_barrier")
        return tok

    def p1_plain(self, sSl, W, X, xr, wr, first=True):
        def sW():
            self.e(f"s_add_u32 s{S_A}, s{W}, s{S_A}")
            self.e(f"s_addc_u32 s{S_A+1}, s{W+1}, 0")
        return self.p1_issue(sSl, sW, lambda: self.addr(S_B, X, S_TMP), xr, wr, first)

    def p1_compute(self, sSl, tok, xr, wr, d0, X, lds=0, first=True):
        e = self.e
        e(f"v_lshlrev_b32 v4, 5, v{V_N}")
        e(f"v_lshl_add_u32 v4, v{V_J}, 9, v4")
        self.sexpr(S_TMP, [(3, 0, None, 10)], lds)
        e(f"v_add_u32 v4, s{S_TMP}, v4")
        if first and self.o.get("xid", 1) and self.o.get("xp1", 1):
            self.sexpr(S_LOC, [(sSl, 4, None, 0)])
            self.when(f"s_cmp_eq_u32 s3, {PUBW}", lambda: self.xid_load(245, S_LOC))
            e(f"s_mov_b32 s{S_LOC}, 0")
        self.vmwait(tok)
        for i in range(8):
            t = X + 2 * (i & 3)
            self.frag(t, wr, i, 4)
            e(f"v_mfma_f32_16x16x16_bf16 {vr(d0+4*i,4)}, {vr(xr,2)}, {vr(t,2)}, 0")
        self.exec_set(0xffffffff, 0)
        for i in range(0, 8, 2):
            self.ds(f"ds_write2_b32 v4, v{d0+4*i}, v{d0+4*i+4} offset0:{i} offset1:{i+1}")
        self.exec_all()
        e("s_waitcnt lgkmcnt(0)")
        if first:
            self.settag()
        e("s_barrier")

        def pub():
            e("v_lshlrev_b32 v4, 4, v0")
            for w in range(8):
                self.ds(f"ds_read_b128 {vr(d0+4*w,4)}, v4 offset:{lds+w*1024}")
            e(f"s_lshl_b32 s{S_TMP}, s{sSl}, 10")
            self.addr(S_B, S_WS, S_TMP, WS_QP)
            e("s_waitcnt lgkmcnt(0)")
            self.tree_add4(d0, 8)
            self.tag4(d0)
            if first and self.o.get("xid", 1) and self.o.get("xp1", 1):
                e("s_waitcnt vmcnt(0)")
                self.xid_eval(245)
            self.st_group(f"global_store_dwordx4 v4, {vr(d0,4)}, {sr(S_B)}")

        self.when(f"s_cmp_eq_u32 s3, {PUBW}", pub)
        if first:
            self.stamp(1)

    def p1_multi(self, offs, pre, d0, lds):
        e = self.e
        sl, raw, tok = [S_SL, S_SL + 1], [16, 32], []
        self.sexpr(S_SL + 1, [(2, 0, 7, 4), (2, 3, 3, 0)])
        e(f"s_add_u32 s{S_SL}, s{S_SL+1}, {offs[0]}")
        e(f"s_add_u32 s{S_SL+1}, s{S_SL+1}, {offs[1]}")
        for i in range(2):
            tok.append(self.p1_plain(sl[i], S_WQB if i else S_WQA, S_BX if i else S_AX, 8 + 2 * i, raw[i], first=not i))
        self.consts()
        self.sexpr(S_TMP, [(2, 0, 7, 2), (2, 3, 3, 0)])
        e(f"s_mov_b32 s2, s{S_TMP}")
        pre()
        for i in range(2):
            self.p1_compute(sl[i], tok[i], 8 + 2 * i, raw[i], d0, 48, lds[i], first=not i)


class Chunk:
    QS, ST, OS = 8192, 9216, 10240

    def __init__(self, k, nb, extra, KR, VR, QF, SR, ACC, X, VA, CNT, sK, sV, sQ, QG=8, w0=0, lds=None, XR=12):
        self.k, self.nb, self.extra, self.QG, self.w0 = k, nb, extra, QG, w0
        self.XR = XR
        if lds:
            self.QS, self.ST, self.OS = lds
        self.KR, self.VR, self.QF, self.SR, self.ACC, self.X = KR, VR, QF, SR, ACC, X
        self.vK, self.vV, self.vQ, self.vF = VA, VA + 1, VA + 2, VA + 3
        self.CNT, self.sK, self.sV, self.sQ = CNT, sK, sV, sQ
        self.sPair, self.sChunk, self.sTile, self.sNx = S_P, S_P + 1, S_P + 2, [S_P + 3, S_P + 5]
        self.ktok, self.vtok = {}, {}

    def ifx(self, i, fn):
        self.k.when(f"s_cmp_lt_u32 s3, s{self.sNx[i]}", fn)

    def setup(self):
        k = self.k; e = k.e
        k.sexpr(S_TMP, [(self.sPair, 0, None, 21), (self.sTile, 0, None, 12)])
        k.addr(self.sK, S_K, S_TMP)
        k.addr(self.sV, S_V, S_TMP)
        a, b = self.vQ, self.vF
        e(f"v_bfe_u32 v{a}, v0, 1, 1")
        e(f"v_lshlrev_b32 v{a}, 11, v{a}")
        e(f"v_bfe_u32 v{b}, v0, 2, 2")
        e(f"v_lshl_add_u32 v{a}, v{b}, 8, v{a}")
        e(f"v_lshl_add_u32 v{a}, v{V_J}, 5, v{a}")
        e(f"v_and_b32 v{b}, 1, v0")
        e(f"v_lshl_add_u32 v{self.vK}, v{b}, 4, v{a}")
        e(f"v_lshlrev_b32 v{self.vV}, 4, v0")
        e(f"v_lshlrev_b32 v{self.vQ}, 10, v{V_J}")
        e(f"v_lshl_add_u32 v{self.vQ}, v{V_N}, 4, v{self.vQ}")

    def qaddr(self):
        k = self.k
        if self.w0 == 0:
            k.sexpr(S_TMP, [(self.sPair, 0, 7, 14), (3, 1, None, 12), (self.sPair, 3, None, 9), (3, 0, 1, 8)])
        else:
            k.sexpr(S_TMP, [(self.sPair, 0, 7, 14), (3, 0, 3, 12), (self.sPair, 3, None, 9)])
        k.addr(self.sQ, S_WS, S_TMP, WS_QP + 128 * 1024)

    def kload(self, t, d=0, lo=0, hi=4):
        for ks in range(lo, hi):
            self.k.throttle(d)
            r = (ks >> 1) + 2 * (ks & 1)
            self.ktok[t] = self.k.ld4(self.KR[t] + 4 * r, self.vK, self.sK, (ks >> 1) * 1024 + (ks & 1) * 128)
        if hi == 4:
            self.k.adv(self.sK, 4096)

    def vload(self, t, d=0, lo=0, hi=4):
        for i in range(lo, hi):
            self.k.throttle(d)
            self.vtok[t] = self.k.ld4(self.VR[t] + 4 * i, self.vV, self.sV, i * 1024)
        if hi == 4:
            self.k.adv(self.sV, 4096)

    def qissue(self, first=False):
        if first and self.k.o.get("xid", 1):
            self.k.when("s_cmp_ge_u32 s3, 6", lambda: self.k.xid_load(self.XR, self.sPair))
        for i in range(2 if self.w0 else 1):
            t = self.k.ld4(self.QG + 4 * i, self.vQ, self.sQ, i * 256, "sc1")
        return t

    def qpiece(self, tok=None):
        k = self.k; e = k.e
        g, n = self.QG, 2 if self.w0 else 1
        k.poll(self.qissue, lambda: k.chkn([g + 4 * i for i in range(n)], 4, 5), pre_issued=tok)
        k.when("s_cmp_ge_u32 s3, 6", lambda: k.xid_eval(self.XR))
        k.untag(g, 4 * n)
        for i in range(n):
            r = g + 4 * i
            k.xrow("v_add_f32", [r, r + 1, r + 2, r + 3], [self.X + j for j in range(4)])
            e(f"v_cvt_pk_bf16_f32 v{r}, v{r}, v{r+1}")
            e(f"v_cvt_pk_bf16_f32 v{r+1}, v{r+2}, v{r+3}")
        k.sexpr(S_TMP, [(3, 0, 3 if self.w0 else None, 6 + n)])
        e(f"v_lshlrev_b32 v4, 3, v{V_N}")
        e(f"v_add_u32 v4, s{S_TMP}, v4")
        k.exec_set(0xffff, 0)
        for i in range(n):
            k.ds(f"ds_write_b64 v4, {vr(g+4*i,2)} offset:{self.QS+i*128}")
        k.arrive(self.CNT)

    def qread(self):
        k = self.k; e = k.e
        k.await_cnt(self.CNT, 8 - self.w0)
        e(f"v_lshrrev_b32 v4, 2, v{V_N}")
        e("v_lshlrev_b32 v4, 8, v4")
        e(f"v_lshl_add_u32 v4, v{V_J}, 5, v4")
        for ks in range(4):
            k.ds(f"ds_read_b128 {vr(self.QF+4*ks,4)}, v4 offset:{self.QS+(ks>>1)*128+(ks&1)*16}")
        for r in range(4 * self.extra):
            e(f"v_mov_b32 v{self.SR+4*self.nb+r}, 0xff800000")

    def qk(self, t):
        k = self.k
        k.vmwait(self.ktok[t])
        k0, x = self.KR[t], self.X + 8 * (t & 1)
        k.swap_pairs([(x, k0, k0 + 4), (x + 4, k0 + 8, k0 + 12)])
        d = vr(self.SR + 4 * t, 4)
        for ks, f in enumerate((x, k0 + 4, x + 4, k0 + 12)):
            k.e(f"v_mfma_f32_16x16x32_bf16 {d}, {vr(f,4)}, {vr(self.QF+4*ks,4)}, {'0' if ks == 0 else d}")

    def softmax(self):
        k = self.k; e = k.e
        SR = self.SR
        n = 4 * (self.nb + self.extra)
        k.chain("v_max3_f32", "v_max_f32", 4, range(SR, SR + n))
        k.xrow("v_max_f32", [4], [5])
        e(f"v_mul_f32 v4, s{S_SC}, v4")
        for i in range(n):
            e(f"v_fma_f32 v{SR+i}, v{SR+i}, s{S_SC}, -v4")
        for i in range(n):
            e(f"v_exp_f32 v{SR+i}, v{SR+i}")
        k.chain(None, "v_add_f32", 5, range(SR, SR + n))
        for i in range(n // 2):
            e(f"v_cvt_pk_bf16_f32 v{SR+i}, v{SR+2*i}, v{SR+2*i+1}")
        k.xrow("v_add_f32", [5], [6])
        e(f"s_lshl_b32 s{S_TMP}, s3, 5")
        e(f"v_lshlrev_b32 v6, 1, v{V_N}")
        e(f"v_add_u32 v6, s{S_TMP}, v6")
        k.exec_set(0x1111, 0)
        k.ds(f"ds_write_b64 v6, v[4:5] offset:{self.ST}")
        k.arrive(self.CNT + 4)

    def pv(self, t, n, first=False):
        k = self.k
        k.vmwait(self.vtok[t + n - 1])
        for i in range(8):
            x = self.X + 4 * (i & 3)
            k.frag(x, self.VR[t], i, 4 * n)
            d = vr(self.ACC + 4 * i, 4)
            op = "v_mfma_f32_16x16x32_bf16" if n == 2 else "v_mfma_f32_16x16x16_bf16"
            k.e(f"{op} {d}, {vr(self.SR+2*t,2*n)}, {vr(x,2*n)}, {'0' if first else d}")

    def factor(self, T0):
        k = self.k; e = k.e
        nw = 8 - self.w0
        k.await_cnt(self.CNT + 4, nw)
        e(f"v_lshlrev_b32 v6, 3, v{V_J}")
        for w in range(nw):
            k.ds(f"ds_read_b64 {vr(T0+2*w,2)}, v6 offset:{self.ST+(self.w0+w)*32}")
        e(f"s_lshl_b32 s{S_TMP}, s3, 5")
        e(f"v_add_u32 v6, s{S_TMP}, v6")
        k.ds(f"ds_read_b64 v[4:5], v6 offset:{self.ST}")
        k.lgwait()
        k.chain("v_max3_f32", "v_max_f32", 7, range(T0, T0 + 2 * nw, 2))
        for w in range(nw):
            e(f"v_sub_f32 v{T0+2*w}, v{T0+2*w}, v7")
        e("v_sub_f32 v4, v4, v7")
        for w in range(nw):
            e(f"v_exp_f32 v{T0+2*w}, v{T0+2*w}")
        e("v_exp_f32 v4, v4")
        e(f"v_mul_f32 v5, v{T0}, v{T0+1}")
        for w in range(1, nw):
            e(f"v_fmac_f32 v5, v{T0+2*w}, v{T0+2*w+1}")
        e("v_rcp_f32 v6, v5")
        e("v_log_f32 v5, v5")
        e(f"v_mul_f32 v{self.vF}, v4, v6")

        def lse():
            for i in range(4):
                e(f"v_add_f32 v{8+i}, v5, v7")
            k.tag4(8)
            k.sexpr(S_TMP, [(self.sPair, 0, 7, 11), (self.sPair, 3, None, 8), (self.sChunk, 0, None, 4)])
            k.addr(self.sQ, S_WS, S_TMP, WS_LSEB)
            e(f"v_lshlrev_b32 v4, 9, v{V_J}")
            k.exec_set(0x00010001, 0x00010001)
            k.st_group(f"global_store_dwordx4 v4, v[8:11], {sr(self.sQ)}")
            k.exec_all()

        k.when(f"s_cmp_eq_u32 s3, {PUBW}", lse)
        k.sexpr(S_TMP, [(self.sPair, 0, 7, 3), (3, 0, 1, 2), (self.sPair, 3, None, 0)])
        e(f"s_mul_i32 s{S_TMP}, s{S_TMP}, {NCB}")
        e(f"s_add_u32 s{S_TMP}, s{S_TMP}, s{self.sChunk}")
        e(f"s_lshl_b32 s{S_TMP}, s{S_TMP}, 9")
        k.addr(self.sQ, S_WS, S_TMP, WS_OP)
        e("v_lshrrev_b32 v4, 5, v0")
        e(f"v_mul_u32_u24 v4, {2*NCB*512}, v4")
        e("v_and_b32 v5, 31, v0")
        e(f"v_lshl_add_u32 v{self.vQ}, v5, 4, v4")
        e(f"s_lshl_b32 s{S_TMP}, s3, 11")
        e(f"v_lshlrev_b32 v4, 9, v{V_J}")
        e(f"v_lshl_add_u32 v4, v{V_N}, 5, v4")
        e(f"v_add_u32 v{self.vK}, s{S_TMP}, v4")
        k.sexpr(S_TMP, [(3, 0, 1, 10)])
        e(f"v_add_u32 v{T0}, s{S_TMP}, v{self.vV}")
        self.vR = T0

    def finish(self, T0, st, cont=False):
        k = self.k; e = k.e
        k.stamp(st)
        T0 += 4
        for i in range(8):
            e(f"v_mul_f32 v{T0+i}, v{self.vF}, v{self.ACC+4*i}")
        k.ds(f"ds_write_b128 v{self.vK}, {vr(T0,4)} offset:{self.OS}")
        k.ds(f"ds_write_b128 v{self.vK}, {vr(T0+4,4)} offset:{self.OS+16}")
        nw = 8 - self.w0
        if self.w0:
            k.arrive(self.CNT + 8)
        else:
            k.barrier()

        def pub():
            if self.w0:
                k.await_cnt(self.CNT + 8, nw)
            for w in range(nw):
                k.ds(f"ds_read_b128 {vr(T0+4*w,4)}, v{self.vR} offset:{self.OS+(self.w0+w)*2048}")
            k.lgwait()
            k.tree_add4(T0, nw)
            k.tag4(T0)
            k.st_group(f"global_store_dwordx4 v{self.vQ}, {vr(T0,4)}, {sr(self.sQ)}")
            k.stamp(st + 1)

        k.when("s_cmp_ge_u32 s3, 6", pub)
        if not cont:
            e("s_branch L_fin")


def role_B(k):
    e, o = k.e, k.o
    D1, D, DV, SW = o.get("depth_b1", 3), o.get("depth_b", 6), o.get("depth_v", 8), o.get("b_sw", 2)
    KR = [160 + 16 * t for t in range(6)] + [144]
    VR = [16, 32, KR[0], KR[1], KR[2], KR[3], KR[4]]
    CNT, QS2, QAS, UK = 9728, 9856, 40960, 144
    c = Chunk(k, 5, 2, KR, VR, QF=128, SR=100, ACC=64, X=48, VA=96, CNT=CNT, sK=S_C, sV=S_D, sQ=S_A)
    sI = S_P + 4
    dep = lambda t: D1 if t < SW else D
    npre, bpre = o.get("p2_at", 2), o.get("b_pre", 1)

    def kstream(lo, hi, thr, c=c):
        for n in range(lo, hi):
            c.kload(n >> 2, dep(n >> 2) if thr else 0, n & 3, (n & 3) + 1)

    def params(c=c):
        e("s_waitcnt lgkmcnt(0)")
        e(f"s_bfe_u32 s{c.sNx[0]}, s{c.sTile}, 0x40010")
        e(f"s_bfe_u32 s{c.sNx[1]}, s{c.sTile}, 0x40014")
        e(f"s_bfe_u32 s{c.sPair}, s{c.sTile}, 0x40018")
        e(f"s_lshr_b32 s{c.sChunk}, s{c.sTile}, 28")
        e(f"s_and_b32 s{c.sTile}, s{c.sTile}, 0xffff")
        e(f"s_mul_i32 s{S_TMP}, s3, {c.nb}")
        e(f"s_add_u32 s{c.sTile}, s{c.sTile}, s{S_TMP}")
        for i in range(2):
            e(f"s_min_u32 s{S_TMP}, s3, s{c.sNx[i]}")
            e(f"s_add_u32 s{c.sTile}, s{c.sTile}, s{S_TMP}")
        c.setup()
        for r in range(124, 128):
            e(f"v_mov_b32 v{r}, 0")
        e(f"v_mov_b32 v123, {CNT}")
        k.ds("ds_write_b128 v123, v[124:127]")

    k.c("================ role B1")
    k.label("L_roleB")
    e(f"s_sub_u32 s{sI}, s2, {NT+NA}")
    e(f"s_getpc_b64 {sr(S_C)}")
    k.label("L_pc")
    e(f"s_lshl_b32 s{S_TMP}, s{sI}, 2")
    e(f"s_add_u32 s{S_C}, s{S_C}, L_tiles-L_pc")
    e(f"s_addc_u32 s{S_C+1}, s{S_C+1}, 0")
    e(f"s_load_dword s{c.sTile}, {sr(S_C)}, s{S_TMP}")
    e("s_cmp_ge_u32 s2, 224")
    e("s_cbranch_scc1 L_roleB2")
    base = k.vm_n
    k.sexpr(S_TMP, [(sI, 0, 7, 4), (sI, 3, None, 0)])
    e(f"s_mov_b32 s{sI}, s{S_TMP}")
    e(f"s_bitcmp1_b32 s{sI}, 3")
    e(f"s_cselect_b32 s{S_SL}, 120, 8")
    e(f"s_add_u32 s{S_SL}, s{S_SL}, s{sI}")

    def selW():
        e(f"s_cmp_lt_u32 s{S_SL}, 128")
        e(f"s_cselect_b32 s{S_C}, s{S_WQA}, s{S_WQB}")
        e(f"s_cselect_b32 s{S_C+1}, s{S_WQA+1}, s{S_WQB+1}")
        e(f"s_cselect_b32 s{S_B}, s{S_AX}, s{S_BX}")
        e(f"s_cselect_b32 s{S_B+1}, s{S_AX+1}, s{S_BX+1}")
        e(f"s_add_u32 s{S_A}, s{S_C}, s{S_A}")
        e(f"s_addc_u32 s{S_A+1}, s{S_C+1}, 0")

    tok = k.p1_issue(S_SL, selW, lambda: k.addr(S_B, S_B, S_TMP), 8, 16)
    k.sexpr(S_TMP, [(sI, 0, 3, 20), (3, 0, None, 17), (sI, 2, None, 8)])
    k.addr(S_C, S_WUK, S_TMP)
    e("v_bfe_u32 v33, v0, 1, 3")
    e("v_lshlrev_b32 v33, 14, v33")
    e(f"v_lshl_add_u32 v33, v{V_J}, 5, v33")
    e("v_and_b32 v32, 1, v0")
    e("v_lshl_add_u32 v33, v32, 4, v33")
    e("v_add_u32 v32, 0x2000, v33")
    for ks in range(4):
        uktok = k.ld4(UK + 4 * ((ks >> 1) + 2 * (ks & 1)), 33 - (ks >> 1), S_C, (ks & 1) * 128)
    k.consts()
    params()
    kstream(0, bpre, False)
    k.p1_compute(S_SL, tok, 8, 16, c.ACC, 48)
    kstream(bpre, npre, False)
    k.sexpr(S_TMP, [(sI, 2, None, 12), (3, 0, 3, 8)])
    k.addr(S_B, S_WS, S_TMP, WS_QP)

    def p2_piece():
        e(f"s_waitcnt vmcnt({o.get('p2_w', 0)})")
        k.poll(lambda: k.ld4(8, c.vQ, S_B, 0, "sc1"), lambda: k.chk4(8, 4, True))
        k.untag(8)
        k.xrow("v_add_f32", [8, 9, 10, 11], [12, 13, 14, 15])
        e("v_cvt_pk_bf16_f32 v8, v8, v9")
        e("v_cvt_pk_bf16_f32 v9, v10, v11")
        k.sexpr(S_TMP, [(3, 0, 3, 7)])
        e(f"v_lshlrev_b32 v4, 3, v{V_N}")
        e(f"v_add_u32 v4, s{S_TMP}, v4")
        k.exec_set(0xffff, 0)
        k.ds(f"ds_write_b64 v4, v[8:9] offset:{QS2}")
        k.arrive(CNT + 8)

    k.vmwait(uktok)
    k.swap_pairs([(48, UK, UK + 4), (52, UK + 8, UK + 12)])
    k.when("s_cmp_ge_u32 s3, 4", p2_piece)
    k.stamp(7)
    k.sexpr(S_TMP, [(sI, 2, None, 10), (sI, 0, 3, 8)])
    k.addr(S_B, S_WS, S_TMP, WS_QA)
    k.bitmasks(12)
    e("v_mov_b32 v16, 0xfffefffe")
    e(f"v_lshlrev_b32 v17, 15, v{V_J}")
    e(f"v_lshl_add_u32 v17, v{V_N}, 4, v17")
    e(f"v_lshlrev_b32 v5, 8, v{V_N}")
    e(f"v_lshl_add_u32 v5, v{V_J}, 3, v5")
    e(f"s_lshl_b32 s{S_TMP}, s3, 5")
    e(f"v_add_u32 v5, s{S_TMP}, v5")
    e(f"v_and_b32 v4, 1, v{V_N}")
    e("v_lshlrev_b32 v4, 8, v4")
    e(f"v_lshl_add_u32 v4, v{V_J}, 5, v4")
    k.await_cnt(CNT + 8, 4)
    for ks in range(4):
        k.ds(f"ds_read_b128 {vr(c.QF+4*ks,4)}, v4 offset:{QS2+(ks>>1)*128+(ks&1)*16}")
    k.lgwait()
    for ks, f in enumerate((48, UK + 4, 52, UK + 12)):
        e(f"v_mfma_f32_16x16x32_bf16 v[8:11], {vr(f,4)}, {vr(c.QF+4*ks,4)}, {'0' if ks == 0 else 'v[8:11]'}")
    for i in range(4):
        e(f"v_add_u32 v{8+i}, 0x10000, v{8+i}")
    e(f"v_perm_b32 v8, v9, v8, s{S_HI}")
    e(f"v_perm_b32 v9, v11, v10, s{S_HI}")
    k.exec_set(0x00030003, 0x00030003)
    k.ds(f"ds_write_b64 v5, v[8:9] offset:{QAS}")
    k.arrive(CNT + 12)

    def qa_pub():
        k.await_cnt(CNT + 12, 8)
        k.ds(f"ds_read_b128 v[8:11], v{c.vV} offset:{QAS}")
        k.lgwait()
        for q in range(4):
            e(f"v_and_or_b32 v{8+q}, v{8+q}, v16, v{12+q}")
        k.exec_set(0xffffffff, 0)
        k.vm(f"global_store_dwordx4 v17, v[8:11], {sr(S_B)} sc1")
        k.exec_all()

    k.when(f"s_cmp_eq_u32 s3, {o.get('qaw', 3)}", qa_pub)
    k.stamp(8)
    c.qaddr()
    qat = o.get("b_qat", 2)
    for t in range(5):
        if t == qat:
            qtok = c.qissue(True)
        kstream(max(4 * t, npre), max(4 * t + 4, npre), True)
        if t == o.get("b_qchk", 4):
            k.stamp(2)
            c.qpiece(qtok)
            k.stamp(3)
    c.ifx(0, lambda: c.kload(5, D))
    c.ifx(1, lambda: c.kload(6, D))
    c.qread()
    c.vload(0, DV)
    k.lgwait()
    c.qk(0); c.qk(1)
    c.vload(1, DV)
    c.qk(2); c.qk(3)
    c.vload(2, DV)
    c.qk(4)
    c.ifx(0, lambda: c.qk(5))
    c.ifx(1, lambda: c.qk(6))
    c.vload(3, DV)
    k.stamp(4)
    c.softmax()
    c.vload(4, DV)
    c.pv(0, 2, first=True)
    c.ifx(0, lambda: c.vload(5, DV))
    c.factor(16)
    c.ifx(1, lambda: c.vload(6, DV))
    c.pv(2, 2)
    c.pv(4, 1)
    c.ifx(0, lambda: c.pv(5, 1))
    c.ifx(1, lambda: c.pv(6, 1))
    c.finish(16, 5)
    k.c("================ role B2")
    k.label("L_roleB2")
    k.vm_n = base
    K2 = [160, 176, 192, 208]
    c = Chunk(k, 3, 1, K2, [16, 32, K2[0], K2[1]], QF=128, SR=100, ACC=64, X=48, VA=96, CNT=CNT, sK=S_C, sV=S_D, sQ=S_A)
    k.p1_multi([4, 140], lambda: (params(c), kstream(0, bpre, False, c)), c.ACC, [0, 16384])
    D2 = o.get("depth_b2", 5)
    SW2 = 98
    k.sexpr(S_TMP, [(2, 0, 31, 17), (3, 2, None, 16), (3, 0, 3, 8)])
    k.addr(SW2, S_WOB, S_TMP)
    e(f"v_lshlrev_b32 v144, 13, v{V_J}")
    e(f"v_lshl_add_u32 v144, v{V_N}, 4, v144")
    k.sexpr(S_TMP, [(3, 0, 3, 15), (3, 2, None, 14)], WOL)
    e(f"v_add_u32 v145, s{S_TMP}, v{c.vV}")
    c.qaddr()
    for n in range(bpre, 12):
        if n == 8:
            qtok = c.qissue(True)
        c.kload(n >> 2, D2, n & 3, (n & 3) + 1)
    c.ifx(0, lambda: c.kload(3, D2))
    c.vload(0, D2)
    c.qpiece(qtok)
    c.vload(1, D2)
    c.qread()
    k.lgwait()
    c.qk(0); c.qk(1); c.qk(2)
    c.ifx(0, lambda: c.qk(3))
    c.vload(2, D2)
    c.ifx(0, lambda: c.vload(3, D2))
    k.stamp(4)
    c.softmax()
    wtok = {}

    def wload(g):
        for t in range(8):
            k.throttle(D2)
            wtok[g] = k.ld4((224, 192)[g] + 4 * t, 144, SW2, (t & 3) * 1024)
            if t & 3 == 3:
                k.adv(SW2, 4096 if t == 3 else 4096 * 7)

    c.pv(0, 2, first=True)
    c.factor(16)
    wload(0)
    c.pv(2, 1)
    c.ifx(0, lambda: c.pv(3, 1))
    c.finish(16, 5, cont=True)
    wload(1)
    for r in range(4, 8):
        e(f"v_mov_b32 v{r}, 0")
    e(f"v_mov_b32 v8, {CNTB}")
    k.ds("ds_write_b128 v8, v[4:7]")
    for g in range(2):
        k.vmwait(wtok[g])
        for i in range(8):
            x = 8 + 4 * (i & 3)
            k.frag(x, (224, 192)[g], i, 8)
            k.ds(f"ds_write_b128 v145, {vr(x,4)} offset:{g*8192+i*1024}")
    k.barrier()
    e("s_cmp_ge_u32 s3, 4")
    e("s_cbranch_scc1 L_fin")
    k.sexpr(S_TMP, [(3, 0, None, 15)], WOL)
    e("v_lshlrev_b32 v31, 4, v0")
    e(f"v_add_u32 v30, s{S_TMP}, v31")
    for f in range(32):
        k.ds(f"ds_read_b128 {vr(32+4*f,4)}, v30 offset:{f*1024}")
    e("s_and_b32 s2, s2, 31")
    e("s_add_u32 s3, s3, 4")
    e("s_branch L_ldok")


def role_A(k):
    e, o = k.e, k.o
    C0, G, QT, SR, ACC = 128, 64, 64, 48, 96
    Q = 131072
    PB, ST, ST2, CNT = Q, Q + 16384, Q + 17408, 9728
    sB, sCh, sA = S_P + 4, S_P + 5, S_P + 6
    AT = o.get("a_t", 1)
    c = Chunk(k, AT, 0, KR=[128, 144][:AT], VR=[160, 176][:AT], QF=64, SR=48, ACC=96, X=80, VA=28, CNT=CNT, sK=S_C, sV=S_D, sQ=S_B, QG=22, XR=32)
    k.c("================ role A")
    k.label("L_roleA")
    e(f"s_sub_u32 s{sA}, s2, {NT}")
    k.sexpr(S_TMP, [(sA, 0, None, 18), (3, 0, None, 14)])
    e("v_bfe_u32 v32, v0, 1, 3")
    e("v_lshlrev_b32 v32, 11, v32")
    e(f"v_lshl_add_u32 v32, v{V_J}, 5, v32")
    e("v_and_b32 v33, 1, v0")
    e("v_lshl_add_u32 v32, v33, 4, v32")
    e("s_waitcnt lgkmcnt(0)")
    SCK = 98
    k.addr(SCK, S_CKV, S_TMP)
    DA = o.get("depth_a", 5)
    coff = lambda ks: (ks & 1) * 1024 + (ks >> 1) * 128
    CF = []
    for p in range(16):
        CF += [C0 + 8 * p - 8 if p else 124, C0 + 8 * p + 4]
    ctok = {}
    st = {"n": 0}
    sVal = 92

    def pump(upto):
        while st["n"] < min(upto, 32):
            n = st["n"]
            if n == 16:
                k.adv(SCK, 131072)
            m = (n & ~3) | ((n & 1) << 1) | ((n >> 1) & 1)
            ctok[m] = k.ld4(C0 + 4 * m, 32, SCK, coff(m & 15))
            st["n"] += 1

    pump(DA)
    k.consts()
    e(f"s_lshr_b32 s{sB}, s{sA}, 5")
    e(f"s_and_b32 s{sCh}, s{sA}, 31")
    e(f"v_bfe_u32 v4, v{V_N}, 1, 2")
    e(f"v_and_b32 v5, 3, v{V_N}")
    e("v_lshl_add_u32 v4, v5, 2, v4")
    e(f"v_lshlrev_b32 v5, 1, v{V_J}")
    e("v_xor_b32 v4, v4, v5")
    e(f"s_lshl_b32 s{S_TMP}, s3, 14")
    e(f"v_lshlrev_b32 v5, 10, v{V_N}")
    e(f"v_add_u32 v5, s{S_TMP}, v5")
    e("v_lshl_add_u32 v40, v4, 4, v5")
    kx = lambda q: (q >> 1) * 128 + (q & 1) * 16
    for q in range(1, 4):
        e(f"v_xor_b32 v{40+q}, {kx(q)}, v40")
    k.sexpr(S_TMP, [(sB, 0, None, 15), (3, 0, None, 12)])
    k.addr(S_A, S_WS, S_TMP, WS_QA)
    e("v_lshlrev_b32 v33, 4, v0")
    e(f"v_lshlrev_b32 v4, 1, v{V_J}")
    e(f"v_xor_b32 v4, v4, v{V_N}")
    e(f"v_lshlrev_b32 v5, 10, v{V_N}")
    e(f"v_add_u32 v5, {Q}, v5")
    e("v_lshl_add_u32 v44, v4, 4, v5")
    for q in range(1, 4):
        e(f"v_xor_b32 v{44+q}, {kx(q)}, v44")
    e(f"v_lshlrev_b32 v4, 5, v{V_N}")
    e(f"v_add_u32 v35, {ST}, v4")
    e(f"s_lshl_b32 s{S_TMP}, s3, 2")
    e(f"v_add_u32 v36, s{S_TMP}, v35")
    e("v_and_b32 v6, 31, v0")
    e("v_lshlrev_b32 v4, 5, v6")
    e(f"v_add_u32 v37, {ST}, v4")
    e(f"v_lshrrev_b32 v7, 1, v{V_J}")
    e(f"s_lshl_b32 s{S_TMP}, s3, 1")
    e(f"v_add_u32 v7, s{S_TMP}, v7")
    e(f"v_xor_b32 v7, v7, v{V_N}")
    e("v_lshlrev_b32 v7, 4, v7")
    e(f"v_lshl_add_u32 v7, v{V_N}, 9, v7")
    e(f"v_and_b32 v8, 1, v{V_J}")
    e("v_lshl_add_u32 v7, v8, 3, v7")
    e(f"v_add_u32 v38, {PB}, v7")
    e("v_lshrrev_b32 v4, 5, v0")
    e(f"v_xor_b32 v7, v4, v{V_N}")
    e("v_lshlrev_b32 v7, 4, v7")
    e("v_lshl_add_u32 v7, v6, 9, v7")
    e(f"v_add_u32 v20, {PB}, v7")
    k.sexpr(S_TMP, [(3, 0, 1, 3)])
    e(f"v_xor_b32 v7, s{S_TMP}, v{V_N}")
    e("v_lshlrev_b32 v7, 4, v7")
    e("v_lshl_add_u32 v7, v6, 10, v7")
    e("v_lshl_add_u32 v7, v4, 3, v7")
    k.sexpr(S_TMP, [(3, 1, None, 8)], Q)
    e(f"v_add_u32 v39, s{S_TMP}, v7")
    k.sexpr(S_TMP, [(3, 0, 3, 2)])
    e(f"v_xor_b32 v7, s{S_TMP}, v0")
    e("v_lshlrev_b32 v7, 4, v7")
    k.sexpr(S_TMP, [(3, 0, None, 12)], Q)
    e(f"v_add_u32 v27, s{S_TMP}, v7")
    e("v_bfe_u32 v5, v0, 2, 2")
    e("v_lshl_add_u32 v6, v4, 3, v5")
    e("v_lshlrev_b32 v6, 10, v6")
    e("v_and_b32 v7, 1, v0")
    e("v_lshl_add_u32 v6, v7, 3, v6")
    k.sexpr(S_TMP, [(3, 1, None, 8)])
    e(f"v_add_u32 v6, s{S_TMP}, v6")
    e("v_bfe_u32 v7, v0, 4, 1")
    e("v_bfe_u32 v8, v0, 1, 1")
    e("v_lshl_add_u32 v7, v7, 1, v8")
    k.sexpr(S_TMP, [(3, 0, 1, 3)])
    e(f"v_add_u32 v7, s{S_TMP}, v7")
    e("v_lshrrev_b32 v8, 1, v5")
    e("v_lshlrev_b32 v5, 2, v5")
    e("v_xor_b32 v7, v7, v5")
    e("v_xor_b32 v7, v7, v8")
    for mt in range(2):
        for ee in range(2):
            r = 16 + 2 * mt + ee
            e(f"v_xor_b32 v{r}, {4*mt + 2*ee}, v7")
            e(f"v_lshl_add_u32 v{r}, v{r}, 4, v6")
            if ee:
                e(f"v_add_u32 v{r}, 4096, v{r}")
    e(f"s_and_b32 s{c.sPair}, s{sA}, 15")
    k.sexpr(c.sChunk, [(sA, 4, None, 0)], 10)
    k.sexpr(c.sTile, [(sA, 4, None, 2 + AT), (3, 0, None, AT - 1)], 512 - 32 * AT)
    c.setup()
    SL, SFL = 94, 100
    k.sexpr(S_TMP, [(3, 0, None, 18), (sB, 0, None, 15), (sCh, 0, None, 10)])
    k.addr(SL, S_WS, S_TMP, WS_LATP)
    k.sexpr(S_TMP, [(sA, 0, None, 8 if o.get("lt", 1) else 3)])
    k.addr(SFL, S_WS, S_TMP, WS_LSEA)
    e("s_waitcnt lgkmcnt(0)")
    k.settag()
    k.bitmasks(G + 16)

    def cwrite(ks):
        k.ds(f"ds_write_b128 v{40+(ks&3)}, {vr(CF[ks],4)} offset:{((ks&15)>>2)*256}")

    def qload(q):
        return k.ld4(G + 4 * q, 33, S_A, q * 1024, "sc1")

    gat, gq = o.get("a_gat", 10), o.get("a_gq", 12)

    def cproc(p):
        pump(2 * p + 2 + DA)
        if p == gat:
            for q in range(4):
                st["g"] = qload(q)
        k.vmwait(ctok[2 * p + 1])
        k.swap_pairs([(CF[2 * p], C0 + 8 * p, C0 + 8 * p + 4)])
        if p < 8:
            cwrite(2 * p); cwrite(2 * p + 1)

    for p in range(gq + 1):
        cproc(p)
    pump(2 * gq + 4 + DA)
    k.stamp(2)
    top, chk, done = k.newlabel("L_qa"), k.newlabel("L_qachk"), k.newlabel("L_qaok")
    e(f"s_mov_b32 s{sVal}, 0")
    e(f"s_mov_b32 s{S_SPIN}, {SPIN_MAX}")
    k.vmwait(st["g"])
    e(f"s_branch {chk}")
    k.label(top)
    k.cond += 1
    e(f"s_sub_u32 s{S_SPIN}, s{S_SPIN}, 1")
    e(f"s_cbranch_scc1 {done}")
    for q in range(4):
        lab = k.newlabel("L_qsk")
        e(f"s_bitcmp1_b32 s{sVal}, {q}")
        e(f"s_cbranch_scc1 {lab}")
        qload(q)
        k.label(lab)
    e("s_waitcnt vmcnt(0)")
    k.label(chk)
    for q in range(4):
        for i in range(4):
            e(f"v_xor_b32 v{4+i}, v{G+4*q+i}, v{G+16+i}")
        e("v_or3_b32 v4, v4, v5, v6")
        e("v_or_b32 v4, v4, v7")
        e("v_and_b32 v4, 0x10001, v4")
        e(f"v_cmp_ne_u32 {sr(S_BAD)}, 0, v4")
        e(f"s_cmp_eq_u64 {sr(S_BAD)}, 0")
        e(f"s_cselect_b32 s{S_TMP}, {1 << q}, 0")
        e(f"s_or_b32 s{sVal}, s{sVal}, s{S_TMP}")
    e(f"s_cmp_lg_u32 s{sVal}, 15")
    e(f"s_cbranch_scc1 {top}")
    k.cond -= 1
    k.label(done)
    k.stamp(3)
    for q in range(4):
        for i in range(4):
            e(f"v_xor_b32 v{G+4*q+i}, v{G+4*q+i}, v{G+16+i}")
        e(f"v_xor_b32 v{4+q}, {q*16}, v27")
        k.ds(f"ds_write_b128 v{4+q}, {vr(G+4*q,4)} offset:{q*1024}")
    k.barrier()
    tk = {}

    def qread(ks):
        for hh in range(2):
            tk[ks] = k.ds(f"ds_read_b128 {vr(QT+8*(ks&3)+4*hh,4)}, v{44+(ks&3)} offset:{hh*16384+(ks>>2)*256}")

    for ks in range(3):
        qread(ks)
    for ks in range(16):
        if ks + 3 < 16:
            qread(ks + 3)
        if ks & 1 == 0 and 8 + ks // 2 > gq:
            cproc(8 + ks // 2)
        k.lgwait(tk[ks])
        for hh in range(2):
            for rnd in range(2):
                d = vr(SR + 8 * hh + 4 * rnd, 4)
                e(f"v_mfma_f32_16x16x32_bf16 {d}, {vr(CF[16*rnd+ks],4)}, {vr(QT+8*(ks&3)+4*hh,4)}, {'0' if ks == 0 else d}")
        if ks < 2 * (gq - 7) and ks & 1:
            pump(st["n"] + 1)
    c.kload(0, 0, 0, 2)
    k.stamp(4)
    for hh in range(2):
        k.chain("v_max3_f32", "v_max_f32", 4 + hh, range(SR + 8 * hh, SR + 8 * hh + 8))
    k.xrow("v_max_f32", [4, 5], [6, 7])
    k.barrier()
    k.exec_set(0xffff, 0)
    for hh in range(2):
        k.ds(f"ds_write_b32 v36, v{4+hh} offset:{hh*512}")
    k.exec_all()
    c.kload(0, 0, 2, 4)
    k.barrier()
    for hh in range(2):
        for q in range(2):
            k.ds(f"ds_read_b128 {vr(64+8*hh+4*q,4)}, v35 offset:{hh*512+q*16}")
    for q in range(2):
        k.ds(f"ds_read_b128 {vr(80+4*q,4)}, v37 offset:{q*16}")
    k.lgwait()
    for i, dst in enumerate((4, 5, 26)):
        k.chain("v_max3_f32", "v_max_f32", dst, range(64 + 8 * i, 72 + 8 * i))
        e(f"v_mul_f32 v{dst}, s{S_SC}, v{dst}")
    for i in range(16):
        e(f"v_fma_f32 v{SR+i}, v{SR+i}, s{S_SC}, -v{4+(i>>3)}")
    for i in range(16):
        e(f"v_exp_f32 v{SR+i}, v{SR+i}")
    for hh in range(2):
        k.chain(None, "v_add_f32", 6 + hh, range(SR + 8 * hh, SR + 8 * hh + 8))
    for i in range(8):
        e(f"v_cvt_pk_bf16_f32 v{SR+i}, v{SR+2*i}, v{SR+2*i+1}")
    for hh in range(2):
        for rnd in range(2):
            k.ds(f"ds_write_b64 v38, {vr(SR+4*hh+2*rnd,2)} offset:{hh*8192+rnd*256}")
    k.xrow("v_add_f32", [6, 7], [8, 9])
    k.exec_set(0xffff, 0)
    for hh in range(2):
        k.ds(f"ds_write_b32 v36, v{6+hh} offset:{ST2-ST+hh*512}")
    k.exec_all()
    if AT == 2:
        c.kload(1, 0)
    k.barrier()
    FR = 48

    def go(point):
        if o.get("go", 0) != point:
            return

        def st_():
            k.addr(S_A, S_WS, None, WS_GO)
            e("v_lshlrev_b32 v4, 7, v0")
            k.exec_set(0xffffffff, 0)
            k.vm(f"global_store_dword v4, v{V_T}, {sr(S_A)} sc1")
            k.exec_all()

        k.sexpr(S_TMP, [(sA, 0, None, 3), (3, 0, None, 0)])
        k.when(f"s_cmp_eq_u32 s{S_TMP}, {o.get('go_wg', 63) * 8 + 6}", st_)

    go(1)

    def pvpart(rnd, u0, u1):
        tk = {}

        def rd(u):
            f = FR + 12 * (u % 3)
            if u == 4:
                for r in range(16, 20):
                    e(f"v_add_u32 v{r}, 0x10000, v{r}")
            e(f"v_xor_b32 v21, {u*32}, v20")
            k.ds(f"ds_read_b128 {vr(f+8,4)}, v21 offset:{rnd*256}")
            for mt in range(2):
                for ee in range(2):
                    tk[u] = k.ds(f"ds_read_b64_tr_b16 {vr(f+4*mt+2*ee,2)}, v{16+2*mt+ee} offset:{(u&3)*16384}")

        rd(u0); rd(u0 + 1)
        for u in range(u0, u1):
            if u + 2 < u1:
                rd(u + 2)
            k.lgwait(tk[u])
            f = FR + 12 * (u % 3)
            for mt in range(2):
                d = vr(ACC + 16 * mt, 16)
                e(f"v_mfma_f32_32x32x16_bf16 {d}, {vr(f+4*mt,4)}, {vr(f+8,4)}, {'0' if (rnd == 0 and u == 0) else d}")
        if u1 == 8 and rnd == 0:
            for r in range(16, 20):
                e(f"v_subrev_u32 v{r}, 0x10000, v{r}")

    def cw1():
        for ks in range(16, 32):
            cwrite(ks)

    if o.get("a_ovl", 0):
        pvpart(0, 0, 4)
        k.barrier()
        k.when("s_cmp_lt_u32 s3, 4", cw1)
        pvpart(0, 4, 8)
        k.stamp(5)
        c.qaddr()
        qtok = c.qissue(True)
        if o.get("a_ve", 1):
            c.vload(0, 0)
        k.barrier()
        k.when("s_cmp_ge_u32 s3, 4", cw1)
        pvpart(1, 0, 4)
        k.barrier()
        k.stamp(6)
        pvpart(1, 4, 8)
    else:
        pvpart(0, 0, 8)
        k.stamp(5)
        k.barrier()
        c.qaddr()
        qtok = c.qissue(True)
        cw1()
        if o.get("a_ve", 1):
            c.vload(0, 0)
        k.barrier()
        k.stamp(6)
        go(2)
        pvpart(1, 0, 8)
    k.stamp(10)
    for q in range(2):
        k.ds(f"ds_read_b128 {vr(64+4*q,4)}, v37 offset:{ST2-ST+q*16}")
    for r in range(12, 16):
        e(f"v_mov_b32 v{r}, 0")
    e(f"v_mov_b32 v11, {CNT}")
    k.lgwait()
    k.chain(None, "v_add_f32", 9, range(64, 72))
    e("v_rcp_f32 v10, v9")
    e("v_log_f32 v9, v9")
    e("v_add_f32 v26, v26, v9")
    e("s_barrier")
    k.ds("ds_write_b128 v11, v[12:15]")
    for g in range(8):
        for i in range(4):
            e(f"v_mul_f32 v{ACC+4*g+i}, v10, v{ACC+4*g+i}")
        e(f"v_cvt_pk_bf16_f32 v{ACC+4*g}, v{ACC+4*g}, v{ACC+4*g+1}")
        e(f"v_cvt_pk_bf16_f32 v{ACC+4*g+1}, v{ACC+4*g+2}, v{ACC+4*g+3}")
        e(f"v_xor_b32 v{40+g}, {g*16}, v39")
        k.ds(f"ds_write_b64 v{40+g}, {vr(ACC+4*g,2)}")
    k.barrier()
    tk = []
    for q in range(4):
        e(f"v_xor_b32 v{16+q}, {q*16}, v27")
        tk.append(k.ds(f"ds_read_b128 {vr(192+4*q,4)}, v{16+q} offset:{q*1024}"))
    for q in range(4):
        k.lgwait(tk[q])
        stok = k.vm(f"global_store_dwordx4 v33, {vr(192+4*q,4)}, {sr(SL)} sc1")
        if q < 3:
            k.adv(SL, 65536)
    go(3)
    if AT == 2 and o.get("a_v1", 0):
        c.vload(1, 0)
    k.stamp(11)
    c.qpiece(qtok)
    c.qread()
    e(f"v_lshlrev_b32 v40, {3 if o.get('lt', 1) else 9}, v0")
    e(f"v_mov_b32 v27, v{V_T}")
    k.lgwait()
    for t in range(AT):
        c.qk(t)
    c.softmax()
    k.vmwait(stok)
    e("s_barrier")

    def flag():
        k.exec_set(0xffffffff, 0)
        k.vm(f"global_store_dwordx2 v40, v[26:27], {sr(SFL)} sc1")
        k.exec_all()

    k.when(f"s_cmp_eq_u32 s3, {PUBW}", flag)
    if not o.get("a_ve", 1):
        c.vload(0, 0)
    if AT == 2 and not o.get("a_v1", 0):
        c.vload(1, 0)
    k.stamp(7)
    c.factor(208)
    c.pv(0, AT, first=True)
    c.finish(208, 8)


def role_T(k):
    e, o = k.e, k.o
    D = o.get("depth_t", 3)
    R = [32 + 32 * i for i in range(7)]
    CNT, WSC, CS, P1B = 16384, 16640, 21504, 8192
    sStr, sW = S_P + 2, S_P + 3
    SF, SO = 86, 88
    k.c("================ role T")
    k.label("L_roleT")
    k.remap = {11: 2, 12: 3}
    tok = {}

    def pre():
        e(f"v_lshlrev_b32 v{R[4]}, 13, v{V_J}")
        e(f"v_lshl_add_u32 v{R[4]}, v{V_N}, 4, v{R[4]}")
        for r in range(4):
            e(f"v_mov_b32 v{R[4]+4+r}, 0")
        e(f"v_mov_b32 v{R[4]+1}, {CNT}")
        k.ds(f"ds_write_b128 v{R[4]+1}, {vr(R[4]+4,4)}")
        k.ds(f"ds_write_b128 v{R[4]+1}, {vr(R[4]+4,4)} offset:{CNTB-CNT}")

    k.p1_multi([0, 136], pre, R[1], [0, P1B])
    e(f"v_mov_b32 v29, v{R[4]}")
    k.sexpr(S_TMP, [(3, 0, 3, 20), (2, 0, None, 8)])
    k.addr(S_A, S_WUV, S_TMP)
    k.sexpr(S_TMP, [(2, 0, None, 17), (3, 2, None, 16), (3, 0, 3, 8)])
    k.addr(S_C, S_WOA, S_TMP)
    e(f"v_lshlrev_b32 v28, 16, v{V_J}")
    e(f"v_lshl_add_u32 v28, v{V_N}, 4, v28")
    k.sexpr(S_TMP, [(3, 0, 3, 15), (3, 2, None, 14)], WOL)
    e("v_lshlrev_b32 v31, 4, v0")
    e(f"v_add_u32 v30, s{S_TMP}, v31")
    k.sexpr(S_P, [(3, 0, None, 10)], WSC)
    DA_, DB_ = o.get("depth_ta", 3), o.get("depth_tb", 3)

    def wperm(g):
        k.vmwait(tok["w", g])
        for i in range(8):
            k.frag(R[g] + 4 * i, R[g + 1], i, 8)

    def operm(g):
        k.vmwait(tok["o", g])
        for i in range(8):
            x = 8 + 4 * (i & 3)
            k.frag(x, R[5 + g], i, 8)
            k.ds(f"ds_write_b128 v30, {vr(x,4)} offset:{g*8192+i*1024}")

    for n in range(16):
        k.throttle(D)
        tok["o", n >> 3] = k.ld4(R[5] + 4 * n, 29, S_C, (n & 3) * 1024)
        if n & 3 == 3:
            k.adv(S_C, 4096 if n & 4 == 0 else 4096 * 7)
        if n == 11:
            operm(0)
    e("s_cmp_ge_u32 s3, 4")
    e("s_cbranch_scc1 L_ldB")
    base = k.vm_n
    for n in range(32):
        k.throttle(DA_ if n < o.get("ta_sw", 16) else o.get("depth_ta2", 4))
        tok["w", n >> 3] = k.ld4(R[1] + 4 * n, 28, S_A)
        k.adv(S_A, 8192 if n & 7 < 7 else 8192 * 25)
        if n == 3:
            operm(1)
            k.arrive(CNT)
        if n & 7 == 3 and n > 8:
            wperm((n >> 3) - 1)
    wperm(3)
    e("s_branch L_ldok")
    k.label("L_ldB")
    k.vm_n = base
    TT = o.get("t_t", 2)
    c = Chunk(k, TT, 0, KR=[32, 48, 64, 80], VR=[96, 112, 128, 144], QF=160, SR=176, ACC=192, X=224, VA=24, CNT=CNTB,
              sK=S_A, sV=S_D, sQ=S_B, w0=4, lds=(TBW, OB, 0), XR=16)
    k.sexpr(c.sPair, [(2, 0, 1, 3), (2, 2, None, 0)])
    k.sexpr(c.sChunk, [(2, 1, 1, 0)], 14)
    k.sexpr(c.sTile, [(2, 1, 1, 2), (3, 0, 3, 0)])
    e(f"s_mul_i32 s{c.sTile}, s{c.sTile}, {TT}")
    e(f"s_add_u32 s{c.sTile}, s{c.sTile}, {512 - 32 * o.get('a_t', 1) - 8 * TT}")
    c.setup()
    c.qaddr()
    DC = o.get("depth_tc", 3)
    c.kload(0, DC)
    operm(1)
    k.arrive(CNT)
    qtok = c.qissue(True)
    for t in range(1, TT):
        c.kload(t, DC)
    c.vload(0, DC)
    c.qpiece(qtok)
    c.vload(1, DC)
    c.qread()
    k.lgwait()
    for t in range(TT):
        c.qk(t)
    if TT > 2:
        c.vload(2, DC)
    c.softmax()
    if TT > 3:
        c.vload(3, DC)
    c.pv(0, 2, first=True)
    c.factor(32)
    if TT > 2:
        c.pv(2, TT - 2)
    k.remap = {8: 7, 9: 8}
    c.finish(32, 8)
    k.remap = {11: 2, 12: 3}
    k.label("L_ldok")
    e(f"v_bfe_u32 v26, v{V_N}, 2, 1")
    e("v_lshlrev_b32 v25, 8, v26")
    e(f"v_lshl_add_u32 v25, v{V_J}, 4, v25")
    e("v_lshlrev_b32 v24, 3, v0")
    e(f"s_lshr_b32 s{S_P+1}, s3, 2")
    k.sexpr(S_TMP, [(S_P + 1, 0, None, 17), (3, 0, 3, 15), (2, 0, None, 7)])
    k.addr(S_C, S_WS, S_TMP, WS_OUTP)
    e(f"v_lshrrev_b32 v4, 1, v{V_N}")
    e("v_lshlrev_b32 v4, 12, v4")
    e(f"v_and_b32 v5, 1, v{V_N}")
    e("v_lshl_add_u32 v4, v5, 5, v4")
    e(f"v_and_b32 v5, 1, v{V_J}")
    e("v_lshl_add_u32 v4, v5, 6, v4")
    e(f"v_lshrrev_b32 v5, 1, v{V_J}")
    e("v_lshl_add_u32 v23, v5, 4, v4")
    e(f"s_mov_b32 s{S_D}, 0")
    e(f"s_mov_b32 s{S_D+1}, -1")
    k.sexpr(S_TMP, [(S_P + 1, 0, None, 17), (2, 0, None, 12)])
    k.addr(SF, S_WS, S_TMP, WS_OUTP)
    k.sexpr(S_TMP, [(S_P + 1, 0, None, 10), (2, 0, None, 5)])
    k.addr(SO, S_OUT, S_TMP)
    e("v_bfe_u32 v4, v0, 2, 1")
    e("v_lshlrev_b32 v4, 11, v4")
    e("v_and_b32 v5, 3, v0")
    e("v_lshl_add_u32 v27, v5, 3, v4")
    e("v_bfe_u32 v4, v0, 4, 1")
    e("v_lshl_add_u32 v27, v4, 2, v27")
    e("v_lshrrev_b32 v4, 5, v0")
    e("v_lshl_add_u32 v27, v4, 1, v27")
    if o.get("touch", 0) & 1:
        k.sexpr(S_TMP, [(3, 0, 3, 10)])
        e(f"v_add_u32 v4, s{S_TMP}, v31")
        k.ld4(12, 4, SF, 0, "sc1")
    k.stamp(4)
    X = R[4]
    PA = [R[6] + 8 * kg for kg in range(4)]
    PD = [R[5] + 16 + 4 * i for i in range(4)] + [R[6] + 4 + 8 * i for i in range(4)]

    def proj():
        for kg in range(4):
            for i in range(8):
                d = vr(PD[i], 4)
                e(f"v_mfma_f32_16x16x32_bf16 {d}, {vr(PA[kg],4)}, {vr(R[kg]+4*i,4)}, {'0' if kg == 0 else d}")

    def publish():
        for i in range(4):
            e(f"v_cndmask_b32 v{8+i}, v{PD[i]}, v{PD[4+i]}, {sr(S_D)}")
        k.tag4(8)
        k.vm(f"global_store_dwordx4 v23, v[8:11], {sr(S_C)} sc1")

    e("s_cmp_ge_u32 s3, 4")
    e("s_cbranch_scc1 L_tailB")
    base = k.vm_n
    e(f"s_lshl_b32 s{S_TMP}, s2, {3 if o.get('lt', 1) else 9}")
    k.addr(S_A, S_WS, S_TMP, WS_LSEA)
    e(f"v_lshlrev_b32 v22, {8 if o.get('lt', 1) else 3}, v0")
    k.sexpr(S_TMP, [(2, 0, None, 16), (3, 0, None, 8)])
    LB = [98, 100, sW, S_B]
    k.addr(LB[0], S_WS, S_TMP, WS_LATP)
    for i in range(1, 4):
        k.addr(LB[i], LB[0], None, (i >> 1) * 32768 + (i & 1) * 4096)
    sIss, sBlk = 92, 94
    top, done = k.newlabel("L_lat"), k.newlabel("L_latok")
    e(f"s_mov_b64 {sr(sIss)}, 0")
    e(f"v_lshlrev_b32 v21, 3, v{V_J}")
    e(f"s_mov_b32 s{S_SPIN}, {SPIN_MAX}")
    sN = 91
    k.await_cnt(CNT, 8)
    if o.get("go", 0):
        e(f"s_lshl_b32 s{S_TMP}, s2, 7")
        k.addr(S_P + 5, S_WS, S_TMP, WS_GO)
        e("v_mov_b32 v4, 0")

        def gopoll():
            k.poll(lambda: k.vm(f"global_load_dword v9, v4, {sr(S_P + 5)} sc1"), lambda: e(f"v_cmp_ne_u32 {sr(S_BAD)}, v9, v{V_T}"))
            k.arrive(CNT + 12)

        k.when("s_cmp_eq_u32 s3, 0", gopoll)
        k.await_cnt(CNT + 12, 1)
    e(f"s_mov_b32 s{S_SPIN}, {SPIN_MAX}")
    k.cond += 1
    k.vm(f"global_load_dwordx2 v[8:9], v22, {sr(S_A)} sc1")
    e(f"s_mov_b32 s{sN}, 0")
    k.label(top)
    e(f"s_sub_u32 s{S_SPIN}, s{S_SPIN}, 1")
    e(f"s_cbranch_scc1 {done}")
    if o.get("dbg_sleep"):
        e(f"s_sleep {o['dbg_sleep']}")
    got = k.newlabel("L_lw")
    for n in (8, 4, 2, 1):
        e(f"s_waitcnt vmcnt({n})")
        e(f"s_cmp_ge_u32 s{sN}, {n}")
        e(f"s_cbranch_scc1 {got}")
    e("s_waitcnt vmcnt(0)")
    k.label(got)
    e(f"v_cmp_ne_u32 {sr(S_BAD)}, v9, v{V_T}")
    e("v_mov_b32 v12, v8")
    e(f"s_mov_b32 s{sN}, 0")
    k.vm(f"global_load_dwordx2 v[8:9], v22, {sr(S_A)} sc1")
    e(f"s_nor_b64 {sr(sBlk)}, {sr(S_BAD)}, {sr(sIss)}")
    e(f"s_cbranch_scc0 {top}")
    e(f"s_or_b64 {sr(sIss)}, {sr(sIss)}, {sr(sBlk)}")
    for b_ in range(2):
        skb = k.newlabel("L_lskb")
        e(f"s_cmp_eq_u32 s{sBlk+b_}, 0")
        e(f"s_cbranch_scc1 {skb}")
        e(f"v_lshrrev_b32 v10, v21, s{sBlk+b_}")
        for t in range(8):
            sk = k.newlabel("L_lsk")
            e(f"v_and_b32 v11, {1 << t}, v10")
            e(f"v_cmp_ne_u32 vcc, 0, v11")
            e(f"s_and_saveexec_b64 {sr(S_TMP)}, vcc")
            e(f"s_cbranch_execz {sk}")
            k.ld4(R[5] + 32 * b_ + 4 * t, 29, LB[2 * b_ + (t >> 2)], (t & 3) * 1024, ['sc1', 'sc1 nt', 'sc0 sc1 nt'][o.get('lat_ld', 1)])
            e(f"s_add_u32 s{sN}, s{sN}, 1")
            k.label(sk)
            k.exec_all()
        k.label(skb)
    e(f"s_cmp_lg_u64 {sr(sIss)}, -1")
    e(f"s_cbranch_scc1 {top}")
    k.cond -= 1
    k.label(done)
    k.stamp(5)

    def retag():
        e("v_lshlrev_b32 v4, 2, v0")
        k.exec_set(0xffffffff, 0)
        k.vm(f"global_store_dword v4, v{V_T}, {sr(S_WS)}")
        k.exec_all()

    e(f"s_or_b32 s{S_TMP}, s2, s3")
    k.when(f"s_cmp_eq_u32 s{S_TMP}, 0", retag)
    if o.get("prio", 0):
        e("s_setprio 2")

    def red32(op, r, tmp):
        for sh in (8, 4, 2, 1):
            e(f"{op}_dpp v{r}, v{r}, v{r} row_ror:{sh} row_mask:0xf bank_mask:0xf")
        k.xrow(op, [r], [tmp], (16,))

    e("v_mov_b32 v10, v12")
    red32("v_max_f32", 10, 11)
    e("v_sub_f32 v12, v12, v10")
    e("v_exp_f32 v12, v12")
    e("v_lshrrev_b32 v4, 5, v0")
    e("v_mov_b32 v10, v12")
    red32("v_add_f32", 10, 11)
    e("v_rcp_f32 v10, v10")
    e("v_lshlrev_b32 v4, 7, v4")
    e("v_mul_f32 v12, v12, v10")
    e("v_cvt_pk_bf16_f32 v13, v12, v12")
    e("v_and_b32 v10, 0xffff0000, v13")
    e("v_sub_f32 v12, v12, v10")
    e("v_cvt_pk_bf16_f32 v10, v12, v12")
    e("v_and_b32 v5, 31, v0")
    e("v_lshl_add_u32 v4, v5, 1, v4")
    e(f"v_add_u32 v4, s{S_P}, v4")
    k.ds("ds_write_b16 v4, v13")
    k.ds("ds_write_b16 v4, v10 offset:64")
    e(f"v_and_b32 v4, 1, v{V_N}")
    e("v_lshlrev_b32 v4, 6, v4")
    e(f"v_lshl_add_u32 v4, v{V_J}, 4, v4")
    e(f"v_add_u32 v4, s{S_P}, v4")
    k.lgwait()
    k.ds(f"ds_read_b128 {vr(R[4]+24,4)}, v4")
    k.ds("ds_read_b128 v[12:15], v4 offset:128")
    e(f"v_lshlrev_b32 v4, 4, v{V_N}")
    e(f"v_add_u32 v4, s{S_P}, v4")
    e(f"v_add_u32 v5, s{S_P}, v25")
    k.lgwait()
    e("s_waitcnt vmcnt(0)")
    k.stamp(6)
    for i in range(4):
        e(f"v_mov_b32 v{8+i}, v{R[4]+24+i}")
    for b_ in range(2):
        for i in range(8):
            x = 16
            k.frag(x, R[5 + b_], i, 8)
            e(f"v_mfma_f32_16x16x32_bf16 {vr(X+4*i,4)}, {vr(8+4*b_,4)}, {vr(x,4)}, 0")
        for i in range(8):
            e(f"v_add_f32 v{X+4*i}, v{X+4*i}, v{X+4*i+1}")
        for i in range(4):
            e(f"v_cvt_pk_bf16_f32 v{R[5+b_]+i}, v{X+8*i}, v{X+8*i+4}")
        k.exec_set(0xffff, 0)
        k.ds(f"ds_write_b128 v4, {vr(R[5+b_],4)} offset:{256+b_*256}")
        k.exec_all()
    k.lgwait()
    AF = R[5]
    for kg in range(4):
        k.ds(f"ds_read_b128 {vr(AF+4*kg,4)}, v5 offset:{256+kg*64}")
    k.sexpr(S_TMP, [(3, 0, None, 10)], CS)
    e(f"v_lshlrev_b32 v4, 5, v{V_N}")
    e(f"v_lshl_add_u32 v4, v{V_J}, 9, v4")
    e(f"v_add_u32 v4, s{S_TMP}, v4")
    k.lgwait()
    for kg in range(4):
        for i in range(8):
            d = vr(X + 4 * i, 4)
            e(f"v_mfma_f32_16x16x32_bf16 {d}, {vr(AF+4*kg,4)}, {vr(R[kg]+4*i,4)}, {'0' if kg == 0 else d}")
    k.sexpr(S_TMP, [(3, 0, None, 15)], WOL)
    e(f"v_add_u32 v30, s{S_TMP}, v31")
    k.exec_set(0xffffffff, 0)
    for i in range(0, 8, 2):
        k.ds(f"ds_write2_b32 v4, v{X+4*i}, v{X+4*i+4} offset0:{i} offset1:{i+1}")
    k.arrive(CNT + 4)
    for f in range(32):
        k.ds(f"ds_read_b128 {vr(R[0]+4*f,4)}, v30 offset:{f*1024}")
    e(f"v_add_u32 v4, {CS}, v31")
    k.stamp(12)
    k.await_cnt(CNT + 4, 4)
    k.stamp(11)
    for w in range(4):
        k.ds(f"ds_read_b128 {vr(X+4*w,4)}, v4 offset:{w*1024}")
    e(f"v_add_u32 v4, s{S_P}, v24")
    k.lgwait()
    k.tree_add4(X, 4)
    e(f"v_cvt_pk_bf16_f32 v8, v{X}, v{X+1}")
    e(f"v_cvt_pk_bf16_f32 v9, v{X+2}, v{X+3}")
    k.ds("ds_write_b64 v4, v[8:9]")
    k.lgwait()
    for kg in range(4):
        k.ds(f"ds_read_b128 {vr(PA[kg],4)}, v5 offset:{kg*64}")
    k.lgwait()
    proj()
    e("s_branch L_proj")
    k.c("================ GQA tail")
    k.label("L_tailB")
    k.vm_n = base
    Y = R[4]

    def issue_o(i):
        for c in range(4):
            k.ld4(Y + 16 * i + 4 * c, 21 - (c >> 1), S_B, (c & 1) * 512, "sc1")

    def check_o(i):
        k.chkn([Y + 16 * i + 4 * c for c in range(4)], 6, 7)

    def comb(i):
        k.untag(Y + 16 * i, 16)
        k.lgwait()
        for r in range(4):
            e(f"v_mul_f32 v{8+r}, v12, v{Y+16*i+r}")
        for c in range(1, 4):
            for r in range(4):
                e(f"v_fmac_f32 v{8+r}, v{12+c}, v{Y+16*i+4*c+r}")

    e(f"s_lshl_b32 s{S_TMP}, s2, 9")
    k.addr(S_A, S_WS, S_TMP, WS_LSEB)
    e("v_lshrrev_b32 v4, 5, v0")
    e("v_lshlrev_b32 v5, 8, v4")
    e(f"v_min_u32 v6, {NCB-1}, v{V_N}")
    e("v_lshl_add_u32 v22, v6, 4, v5")
    e(f"v_cmp_gt_u32 {sr(98)}, {NCB}, v{V_N}")
    e(f"s_mul_i32 s{S_TMP}, s2, {2*NCB*512}")
    k.sexpr(S_P + 2, [(3, 0, 3, 11)])
    e(f"s_add_u32 s{S_TMP}, s{S_TMP}, s{S_P+2}")
    k.addr(S_B, S_WS, S_TMP, WS_OP)
    e(f"v_mul_u32_u24 v4, {NCB*512}, v4")
    e("v_and_b32 v5, 31, v0")
    e("v_lshl_add_u32 v21, v5, 4, v4")
    e("v_add_u32 v20, 0x400, v21")
    k.sexpr(S_TMP, [(3, 0, 3, 8)], TBW)
    e(f"v_lshlrev_b32 v4, 2, v0")
    e(f"v_add_u32 v19, s{S_TMP}, v4")
    e("v_lshrrev_b32 v4, 5, v0")
    e("v_lshlrev_b32 v4, 7, v4")
    k.sexpr(S_P + 2, [(3, 0, 3, 4), (S_TMP, 0, None, 0)])
    e(f"v_add_u32 v18, s{S_P+2}, v4")
    k.sexpr(S_TMP, [(3, 0, 3, 9)], OB)
    e(f"v_add_u32 v17, s{S_TMP}, v24")
    e(f"v_and_b32 v4, 3, v{V_N}")
    e("v_lshl_add_u32 v4, v4, 9, v25")
    e(f"v_add_u32 v16, {OB}, v4")
    if o.get("touch", 0) & 2:
        issue_o(0)
    k.poll_pipe(o.get("np_l", 1), 1, lambda i: k.ld4(Y + 48 + 4 * i, 22, S_A, 0, "sc1"), lambda i: k.chk_full(Y + 48 + 4 * i, 6, 7),
                lambda i: e(f"v_and_b32 v8, s{S_X2}, v{Y+48+4*i}"))
    e("v_mov_b32 v9, 0xff800000")
    e(f"v_cndmask_b32 v8, v9, v8, {sr(98)}")
    e("v_mov_b32 v10, v8")
    for sh in (8, 4, 2, 1):
        e(f"v_max_f32_dpp v10, v10, v10 row_ror:{sh} row_mask:0xf bank_mask:0xf")
    e("v_sub_f32 v8, v8, v10")
    e("v_exp_f32 v8, v8")
    e("v_mov_b32 v10, v8")
    for sh in (8, 4, 2, 1):
        e(f"v_add_f32_dpp v10, v10, v10 row_ror:{sh} row_mask:0xf bank_mask:0xf")
    e("v_rcp_f32 v10, v10")
    e("v_mul_f32 v8, v8, v10")
    k.ds("ds_write_b32 v19, v8")
    k.lgwait()
    k.ds("ds_read_b128 v[12:15], v18")
    k.stamp(7)

    k.poll_pipe(o.get("np_o", 1), 4, issue_o, check_o, comb)
    k.stamp(8)
    e("v_cvt_pk_bf16_f32 v8, v8, v9")
    e("v_cvt_pk_bf16_f32 v9, v10, v11")
    k.ds("ds_write_b64 v17, v[8:9]")
    k.arrive(CNTB)
    k.await_cnt(CNTB, 4)
    k.stamp(11)
    if o.get("wb", 0) == 1:
        k.when("s_cmp_eq_u32 s3, 7", lambda: e("buffer_wbl2 sc1"))
    if o.get("prio", 0):
        e("s_setprio 3")
    for kg in range(4):
        k.ds(f"ds_read_b128 {vr(PA[kg],4)}, v16 offset:{kg*64}")
    k.lgwait()

    def rowsum(i):
        e(f"v_add_f32 v{PD[i]}, v{PD[i]}, v{PD[i]+1}")
        e(f"v_add_f32 v{PD[i]+2}, v{PD[i]+2}, v{PD[i]+3}")
        e(f"v_add_f32 v{PD[i]}, v{PD[i]}, v{PD[i]+2}")

    for i in range(8):
        for kg in range(4):
            d = vr(PD[i], 4)
            e(f"v_mfma_f32_16x16x32_bf16 {d}, {vr(PA[kg],4)}, {vr(R[kg]+4*i,4)}, {'0' if kg == 0 else d}")
            if i >= 2 and kg == 1:
                rowsum(i - 2)
    rowsum(6)
    rowsum(7)
    k.c("================ publish the head's partial output, final sum over heads")
    k.label("L_proj")
    publish()
    k.stamp(9)
    if o.get("wb", 0) == 2:
        k.when("s_cmp_eq_u32 s3, 7", lambda: e("buffer_wbl2 sc1"))
    e("s_and_b32 s62, s3, 3")
    e("s_cbranch_scc1 L_fin")
    F = R[0]

    def issue(i):
        for q in range(4):
            k.ld4(F + 16 * i + 4 * q, 31, SF, q * 1024, "sc1")

    def check(i):
        k.chkn([F + 16 * i + 4 * q for q in range(4)], 6, 7)

    def fin(i):
        k.untag(F + 16 * i, 16)
        for r in range(8):
            e(f"v_add_f32 v{12+r}, v{F+16*i+r}, v{F+16*i+8+r}")

    lab, lab2 = k.newlabel("L_fa"), k.newlabel("L_fb")
    e("s_cmp_eq_u32 s3, 0")
    e(f"s_cbranch_scc1 {lab}")
    k.poll_pipe(o.get("np_f", 1), 4, issue, check, fin)
    e(f"s_branch {lab2}")
    k.label(lab)
    k.poll_pipe(1, 4, issue, check, fin)
    k.label(lab2)
    k.stamp(10)
    k.tree_add4(12, 2)
    e("v_permlane32_swap_b32 v12, v13")
    e("v_permlane32_swap_b32 v14, v15")
    e("v_add_f32 v12, v12, v13")
    e("v_add_f32 v14, v14, v15")
    e("v_permlane16_swap_b32 v12, v14")
    e("v_add_f32 v12, v12, v14")
    e("v_add_f32_dpp v12, v12, v12 row_ror:8 row_mask:0xf bank_mask:0xf")
    e("v_cvt_pk_bf16_f32 v12, v12, v12")
    k.exec_set(0x00ff00ff, 0x00ff00ff)
    k.vm(f"global_store_short v27, v12, {sr(SO)}")
    e("s_branch L_fin")


def finish(k):
    e = k.e
    k.label("L_fin")
    if k.o.get("stamps"):
        k.exec_all()
        k.stamp(15)
        k.sexpr(S_TMP, [(S_DBG, 0, None, 7)])
        e(f"s_load_dwordx2 {sr(S_WS)}, s[0:1], 104")
        e("s_waitcnt lgkmcnt(0)")
        k.addr(S_A, S_WS, S_TMP, WS_STAMP)
        e("s_waitcnt lgkmcnt(0)")
        e("v_mov_b32 v4, 0")
        k.exec_set(1, 0)
        for i in range(8):
            for q in range(4):
                e(f"v_mov_b32 v{8+q}, s{S_STAMP+4*i+q}")
            e(f"global_store_dwordx4 v4, v[8:11], {sr(S_A)} offset:{i*16}")
    k.label("L_end")
    e("s_endpgm")


def tile_table(o):
    late, par, b2 = o.get("adj_late", 0), o.get("adj_par", 0), o.get("adj_b2", -2 if o.get("t_one", 0) else 0)
    tot = 512 - 32 * o.get("a_t", 1) - 8 * o.get("t_t", 2)
    kind = lambda i: (i >= 128, (i & 7) >= 4, (i >> 3) & 1 if i < 128 else 0)
    members = [[] for _ in range(16)]
    for i in range(NB):
        members[(((i >> 4) if i < 128 else (i >> 3)) & 1) * 8 + (i & 7)].append(i)
    out = [0] * NB
    n2 = o.get("n2", 30)
    for p, m in enumerate(members):
        w = []
        for i in m:
            isb2, isl, odd = kind(i)
            ae, ao = o.get("adj_e", 0), o.get("adj_o", 0)
            w.append(n2 if isb2 else (tot - 2 * n2) / 8 + ((ae if odd else -ae) if isl else 0))
        n = [int(v // 1) for v in w]
        for j in sorted(range(10), key=lambda j: n[j] - w[j])[:tot - sum(n)]:
            n[j] += 1
        assert sum(n) == tot
        st = 0
        for ch, (i, v) in enumerate(zip(m, n)):
            lo = 24 if i >= 128 else 40
            assert lo <= v <= (32 if i >= 128 else 56)
            out[i] = st | min(v - lo, 8) << 16 | max(v - lo - 8, 0) << 20 | p << 24 | ch << 28
            st += v
    return out


def generate(**opt):
    k = K(opt)
    head = [l.rstrip("\n") for l in open(REF) if l.startswith(";") and "@launch" not in l and "Override" not in l and "grid=ceil" not in l]
    L = k.L
    L += head
    L += ABOUT.split("\n")
    L.append("; @launch grid=(256,1,1) block=(512,1,1) lds=163840")
    L.append('.amdgcn_target "amdgcn-amd-amdhsa--gfx950"')
    L += [".text", f".globl {NAME}_kernel", ".p2align 8", f".type {NAME}_kernel,@function", f"{NAME}_kernel:"]
    if opt.get("stamps"):
        for r in range(S_STAMP, S_STAMP + 32):
            k.e(f"s_mov_b32 s{r}, 0")
    k.prologue()
    k.e(f"s_cmp_ge_u32 s2, {NT+NA}")
    k.e("s_cbranch_scc1 L_roleB")
    k.e(f"s_cmp_ge_u32 s2, {NT}")
    k.e("s_cbranch_scc1 L_roleA")
    base = k.vm_n
    role_T(k)
    k.vm_n = base
    k.remap = {}
    role_A(k)
    k.vm_n = base
    role_B(k)
    finish(k)
    L.append(".p2align 2")
    L.append(".type L_tiles,@object")
    L.append("L_tiles:")
    L += [f".long {w:#x}" for w in tile_table(opt)]
    L += ['.section .rodata,"a"', ".p2align 6", f".amdhsa_kernel {NAME}_kernel",
          "  .amdhsa_next_free_vgpr 256", "  .amdhsa_next_free_sgpr 102", "  .amdhsa_accum_offset 256",
          "  .amdhsa_group_segment_fixed_size 0", "  .amdhsa_kernarg_size 112", "  .amdhsa_user_sgpr_count 2",
          "  .amdhsa_user_sgpr_kernarg_segment_ptr 1", "  .amdhsa_system_sgpr_workgroup_id_x 1", ".end_amdhsa_kernel"]
    return k.text()


if __name__ == "__main__":
    opt = {}
    for a in sys.argv[2:]:
        kk, v = a.split("=")
        opt[kk] = int(v)
    open(sys.argv[1], "w").write(generate(**opt))
```
